```python
import torch

def _softmax(x, axis=-1):
    return torch.softmax(x, dim=axis)
def _gelu(x):
    return torch.nn.functional.gelu(x, approximate="tanh")
def _silu(x):
    return torch.nn.functional.silu(x)
def _sigmoid(x):
    return torch.sigmoid(x)
def _layernorm(x, axis=-1, eps=1e-5):
    m = x.mean(dim=axis, keepdim=True)
    v = x.var(dim=axis, keepdim=True, unbiased=False)
    return (x - m) / torch.sqrt(v + eps)
def _scatter_add(tgt, idx, src, axis=0):
    return tgt.clone().index_add_(axis, idx, src)
def _segment_sum(src, seg, n):
    out = torch.zeros((n,) + src.shape[1:], dtype=src.dtype)
    return out.index_add_(0, seg, src)
def _pad(x, pw):
    flat = tuple(v for pair in reversed(pw) for v in pair)
    return torch.nn.functional.pad(x, flat)

kernel_name = 'recurrent_scan__linear_attn_block__mixer_s_mlp__prompt'

def setup_inputs():

    _w = (lambda a: (lambda t: t.to(torch.bfloat16) if t.is_floating_point() else t)(torch.as_tensor(a)))
    def _A_setup():
        B, S, D = 1, 2048, 512
        return {
            "x": _w((lambda *s: torch.randn(*s, dtype=torch.bfloat16) * 0.05)(B, S, D)),
            "wqkv": _w((lambda *s: torch.randn(*s, dtype=torch.bfloat16) * 0.05)(D, 3 * D)),
            "wo": _w((lambda *s: torch.randn(*s, dtype=torch.bfloat16) * 0.05)(D, D)),
        }
    _A_in = _A_setup()

    def _B_setup():
        B, S, D, F = 1, 2048, 512, 1792
        return {
            "x":  _w((lambda *s: torch.randn(*s, dtype=torch.bfloat16) * 0.05)(B, S, D)),
            "w1": _w((lambda *s: torch.randn(*s, dtype=torch.bfloat16) * 3.2)(D, D) * (D ** -0.5)),
            "w2": _w((lambda *s: torch.randn(*s, dtype=torch.bfloat16) * 3.2)(D, D) * (D ** -0.5)),
            "w3": _w((lambda *s: torch.randn(*s, dtype=torch.bfloat16) * 3.2)(D, F) * (D ** -0.5)),
            "w4": _w((lambda *s: torch.randn(*s, dtype=torch.bfloat16) * 1.6)(F, D) * (F ** -0.5)),
        }
    _B_in = _B_setup()

    return {
        "A_x": _A_in["x"],
        "A_wqkv": _A_in["wqkv"],
        "A_wo": _A_in["wo"],
        "B_x": _B_in["x"],
        "B_w1": _B_in["w1"],
        "B_w2": _B_in["w2"],
        "B_w3": _B_in["w3"],
        "B_w4": _B_in["w4"],
    }

def reference(A_x, A_wqkv, A_wo, B_x, B_w1, B_w2, B_w3, B_w4):
    def _A_ref(x, wqkv, wo):
        B, S, D = x.shape
        H = 32; Dh = D // H
        qkv = (lambda x, *d: x.permute(*d))((x @ wqkv).reshape(B, S, 3, H, Dh), 2, 0, 3, 1, 4)
        q, k, v = qkv[0], qkv[1], qkv[2]
        phi = lambda t: torch.where(t > 0, t + 1, torch.exp(t)) + 1e-6
        pq, pk = phi(q), phi(k)
        kv = torch.einsum("bhsd,bhse->bhde", pk, v)
        z = torch.einsum("bhsd->bhd", pk)
        num = torch.einsum("bhqd,bhde->bhqe", pq, kv)
        den = torch.einsum("bhqd,bhd->bhq", pq, z)[..., None] + 1e-6
        o = num / den
        return (lambda x, *d: x.permute(*d))(o, 0, 2, 1, 3).reshape(B, S, D) @ wo

    def _B_ref(x, w1, w2, w3, w4):
        B, S, D = x.shape
        h = _gelu(_layernorm(x, axis=-1) @ w1)
        c = D // 4
        g0 = _pad(h[:, :, 0*c:1*c], ((0, 0), (1, 0), (0, 0)))[:, :S, :]
        g1 = _pad(h[:, :, 1*c:2*c], ((0, 0), (0, 1), (0, 0)))[:, 1:, :]
        g2 = _pad(h[:, :, 2*c:3*c], ((0, 0), (2, 0), (0, 0)))[:, :S, :]
        g3 = _pad(h[:, :, 3*c:   ], ((0, 0), (0, 2), (0, 0)))[:, 2:, :]
        hs = torch.concatenate([g0, g1, g2, g3], axis=-1) @ w2
        x1 = x + hs
        h2 = _gelu(_layernorm(x1, axis=-1) @ w3) @ w4
        return x1 + h2

    x = A_x
    xn = _layernorm(x, axis=-1)
    s = _A_ref(xn, A_wqkv, A_wo)
    g = _silu(_B_ref(xn, B_w1, B_w2, B_w3, B_w4))
    return x + s * g
```

```python
import re

def v(n, c=1):
    return f"v{n}" if c == 1 else f"v[{n}:{n+c-1}]"
def s(n, c=1):
    return f"s{n}" if c == 1 else f"s[{n}:{n+c-1}]"

_REG = re.compile(r"^(-|\|)?([vsa])(\d+)\|?$")
_RNG = re.compile(r"^(-)?([vsa])\[(\d+):(\d+)\]$")

def regs_of(op):
    op = op.strip()
    m = _REG.match(op)
    if m: return {(m.group(2), int(m.group(3)))}
    m = _RNG.match(op)
    if m: return {(m.group(2), i) for i in range(int(m.group(3)), int(m.group(4)) + 1)}
    if op == "vcc": return {("s", 106), ("s", 107)}
    if op == "vcc_lo": return {("s", 106)}
    if op == "vcc_hi": return {("s", 107)}
    if op == "exec": return {("x", 0)}
    if op == "m0": return {("m", 0)}
    return set()

TRANS = ("v_exp_f32", "v_log_f32", "v_rcp_f32", "v_rsq_f32", "v_sqrt_f32", "v_sin_f32", "v_cos_f32")
NODST_S = ("s_cmp", "s_waitcnt", "s_barrier", "s_branch", "s_cbranch", "s_nop", "s_endpgm", "s_setprio",
           "s_bitcmp", "s_sleep", "s_sethalt", "s_setreg", "s_sendmsg")

class Ins:
    __slots__ = ("text", "op", "ops", "dst", "src", "kind", "label", "A", "B", "C", "mods", "width", "cmt")
    def __init__(self, text):
        self.label = None
        t = text.split(";")[0].strip()
        self.text = text
        if t.endswith(":"):
            self.label = t[:-1]; self.kind = "label"; self.op = ""; self.dst = set(); self.src = set(); return
        if not t or t.startswith("."):
            self.kind = "dir"; self.op = ""; self.dst = set(); self.src = set(); return
        parts = t.split(None, 1)
        self.op = op = parts[0]
        rest = parts[1] if len(parts) > 1 else ""
        ops = []; cur = ""; depth = 0
        for ch in rest:
            if ch == "[": depth += 1
            if ch == "]": depth -= 1
            if ch == "," and depth == 0:
                ops.append(cur.strip()); cur = ""
            else: cur += ch
        if cur.strip(): ops.append(cur.strip())
        mods = []
        if ops:
            toks = ops[-1].split()
            ops[-1] = toks[0]
            mods = toks[1:]
        self.ops = ops; self.mods = mods
        R = [regs_of(o) for o in ops]
        dst = set(); src = set()
        self.A = self.B = self.C = set()
        self.width = 0
        base = op.replace("_e32", "").replace("_e64", "")
        if op.startswith("v_mfma"):
            self.kind = "mfma"; dst = R[0]; self.A, self.B, self.C = R[1], R[2], R[3]
            src = R[1] | R[2] | R[3]
        elif op.startswith("v_"):
            self.kind = "valu"
            if base.startswith("v_permlane") and "swap" in base:
                dst = R[0] | R[1]; src = R[0] | R[1]
            else:
                dst = R[0]
                for r in R[1:]: src |= r
                if base in ("v_fmac_f32", "v_dot2c_f32_bf16", "v_mac_f32", "v_pk_fmac_f16"): src |= R[0]
                if base.startswith("v_add_co") or base.startswith("v_addc_co") or base.startswith("v_sub_co"):
                    dst = R[0] | R[1]; src = set()
                    for r in R[2:]: src |= r
                if base.startswith("v_cmpx"): dst = dst | {("x", 0)}
        elif op.startswith("buffer_") or op.startswith("global_"):
            self.kind = "vmem"
            lds = "lds" in mods or (ops and ops[-1] == "lds")
            if "load" in op and not lds and "load_lds" not in op:
                dst = R[0]
                for r in R[1:]: src |= r
            elif "atomic" in op and ("sc0" in mods):
                dst = R[0]
                for r in R: src |= r
            else:
                for r in R: src |= r
                if lds or "load_lds" in op: src |= {("m", 0)}
            if "store" in op:
                self.width = 4 if "x4" in op else 3 if "x3" in op else 2 if "x2" in op else 1
        elif op.startswith("ds_"):
            self.kind = "ds"
            if op.startswith("ds_read") or op.startswith("ds_bpermute") or op.startswith("ds_permute") or op.startswith("ds_swizzle") or "_rtn" in op:
                dst = R[0]
                for r in R[1:]: src |= r
            else:
                for r in R: src |= r
        elif op.startswith("s_"):
            self.kind = "salu"
            if op.startswith("s_load") or op.startswith("s_buffer_load") or op.startswith("s_memtime") or op.startswith("s_memrealtime"):
                self.kind = "smem"
            if any(op.startswith(p) for p in NODST_S):
                for r in R: src |= r
            else:
                dst = R[0] if R else set()
                for r in R[1:]: src |= r
                if op.startswith("s_and_saveexec") or op.startswith("s_or_saveexec"): dst = dst | {("x", 0)}
        else:
            raise ValueError("unknown instruction: " + text)
        self.dst = dst; self.src = src

    def states(self):
        if self.kind in ("label", "dir"): return 0
        if self.op == "s_nop": return int(self.ops[0], 0) + 1
        return 1

def vg(sset):
    return {r for r in sset if r[0] in ("v", "a")}
def sg(sset):
    return {r for r in sset if r[0] == "s"}

def required(p, c):
    need = 0
    pb = p.op.replace("_e32", "").replace("_e64", "")
    cb = c.op.replace("_e32", "").replace("_e64", "")
    if p.kind == "mfma":
        passes = 8 if "32x32x16" in p.op else 4 if "16x16x32" in p.op else 16
        big = {4: 8, 8: 12, 16: 20}[passes]; ovl = {4: 6, 8: 10, 16: 18}[passes]; war = {4: 3, 8: 7, 16: 15}[passes]
        D = p.dst
        if c.kind == "mfma":
            if D & (c.A | c.B): need = max(need, big)
            if D & c.C:
                if c.C == D and c.op == p.op: pass
                else: need = max(need, ovl)
            if (D & c.dst) and not (c.dst == D): need = max(need, ovl)
            if (D & c.dst) and c.dst == D and c.C != D: need = max(need, ovl)
        elif c.kind in ("valu",):
            if D & (c.src | c.dst): need = max(need, big)
            if p.C & vg(c.dst): need = max(need, war)
        elif c.kind in ("vmem", "ds"):
            if D & (c.src | c.dst): need = max(need, big)
    elif p.kind == "valu":
        pv = vg(p.dst); ps = sg(p.dst)
        isdot = pb.startswith("v_dot")
        if c.kind == "mfma":
            if pv & c.src: need = max(need, 3 if isdot else 2)
            if ("x", 0) in p.dst: need = max(need, 4)
        elif c.kind == "valu":
            if isdot:
                if cb == pb:
                    ab = set()
                    for o in c.ops[1:3]: ab |= regs_of(o)
                    if pv & ab: need = max(need, 3)
                elif pv & (c.src | c.dst): need = max(need, 3)
            if pb in TRANS and cb not in TRANS and (pv & c.src): need = max(need, 1)
            if pb in TRANS and cb in TRANS and (pv & c.src): need = max(need, 1)
            if ps & c.src:
                need = max(need, 4 if cb in ("v_readlane_b32", "v_writelane_b32") else 2)
            if cb in ("v_readfirstlane_b32", "v_readlane_b32") and (pv & c.src): need = max(need, 1)
            if cb.startswith("v_permlane") and (pv & c.src): need = max(need, 2)
            if any(m.startswith(("row_", "quad_perm", "wave_", "row_bcast")) for m in c.mods) and (pv & c.src): need = max(need, 2)
            if any(m.startswith("op_sel") for m in p.mods) and not pb.startswith("v_pk") and not isdot and (pv & (c.src)): need = max(need, 1)
        elif c.kind == "vmem":
            if ps & c.src: need = max(need, 5)
            if isdot and (pv & c.src): need = max(need, 3)
        elif c.kind == "ds":
            if isdot and (pv & c.src): need = max(need, 3)
    elif p.kind == "salu":
        if ("m", 0) in p.dst and c.kind == "vmem" and ("m", 0) in c.src: need = max(need, 1)
    elif p.kind == "vmem":
        if p.width >= 3:
            data = regs_of(p.ops[0])
            if c.kind == "valu" and (data & c.dst): need = max(need, 2)
            elif c.kind in ("vmem", "ds") and (data & c.dst): need = max(need, 1)
    return need

MAXW = 20

class Kern:
    def __init__(self):
        self.ins = []
        self.uid = 0
    def I(self, text):
        for line in text.split("\n"):
            if line.strip(): self.ins.append(Ins(line.strip()))
    def __call__(self, text): self.I(text)
    def label(self, name): self.I(name + ":")
    def newlabel(self, base="L"):
        self.uid += 1
        return f"{base}_{self.uid}"
    def cmt(self, t): self.ins.append(Ins("; " + t))

    def succ(self, i, lab):
        x = self.ins[i]
        if x.op == "s_endpgm": return []
        if x.op == "s_branch": return [lab[x.ops[0]]]
        if x.op.startswith("s_cbranch"): return [lab[x.ops[0]], i + 1]
        return [i + 1]

    def fix_hazards(self, verbose=True):
        total = 0
        report = []
        while True:
            lab = {x.label: i for i, x in enumerate(self.ins) if x.kind == "label"}
            n = len(self.ins)
            need = {}
            for i, p in enumerate(self.ins):
                if p.kind not in ("mfma", "valu", "salu", "vmem"): continue
                if p.kind == "salu" and ("m", 0) not in p.dst: continue
                if p.kind == "vmem" and p.width < 3: continue
                lim = 20 if p.kind == "mfma" else 5
                stack = [(j, 0) for j in self.succ(i, lab)]
                seen = {}
                while stack:
                    j, d = stack.pop()
                    if j >= n or d >= lim: continue
                    if j in seen and seen[j] <= d: continue
                    seen[j] = d
                    c = self.ins[j]
                    if c.kind not in ("label", "dir"):
                        r = required(p, c)
                        if r > d:
                            if need.get(j, (0,))[0] < r - d: need[j] = (r - d, i)
                    d2 = d + c.states()
                    for k in self.succ(j, lab): stack.append((k, d2))
            if not need: break
            picks = []
            last = -100
            for j in sorted(need):
                if j - last > 24:
                    picks.append(j); last = j
            for j in reversed(picks):
                cnt, i = need[j]
                report.append((cnt, self.ins[i].text, self.ins[j].text))
                total += cnt
                k = cnt
                new = []
                while k > 0:
                    t = min(k, 16)
                    new.append(Ins(f"s_nop {t-1}"))
                    k -= t
                self.ins[j:j] = new
        if verbose:
            for cnt, a, b in report:
                print(f"  [hazard] +{cnt} between '{a}' -> '{b}'")
        return report

    def text(self):
        out = []
        for x in self.ins:
            if x.kind == "label": out.append(x.text)
            else: out.append("  " + x.text)
        return "\n".join(out) + "\n"
```

```python
from asmlib import *
import struct

NAME = "recurrent_scan__linear_attn_block__mixer_s_mlp__prompt"
MB = 1 << 20
WS_PQ, WS_H, WS_X1, WS_O, WS_S = 0, 2*MB, 4*MB, 6*MB, 8*MB
WS_H3 = 10*MB
WS_W3P = 18*MB
WS_W4P = 20*MB
WS_WOP = 22*MB
WS_KVP = 23*MB
WS_ST = 24*MB
WS_X1ST = 25*MB
WS_CS3 = 26*MB
SZ_X1ST = 2048*128
SZ_CS3 = 1792*64
SZ_ACT = 2*MB
SZ_H3 = 64*112*1024
SZ_W3P = 56*32*1024
SZ_W4P = 16*112*1024
SZ_WOP = 16*32*1024
SZ_KVP = 32*16*2048
SZ_ST = 2048*8

def f2u(x):
    return struct.unpack("<I", struct.pack("<f", x))[0]
def hx(x):
    return "0x%08x" % f2u(x)

LOG2E = 1.4426950408889634
GA = -2.0 * LOG2E * 0.7978845608028654
GB = GA * 0.044715
EPS_LN = 1e-5
EPS_PHI = 1e-6

P_X, P_WQKV, P_WO, P_W1, P_W2, P_W3, P_W4 = 4, 6, 8, 12, 14, 16, 18
P_OUT, P_DBG, P_WS = 20, 22, 24

def prologue(k, nwg=256):
    k(f"s_cmp_ge_u32 s2, {nwg}")
    k("s_cbranch_scc1 " + k.end)
    k("s_load_dwordx16 s[4:19], s[0:1], 0")
    k("s_load_dwordx4 s[20:23], s[0:1], 64")
    k("s_load_dwordx2 s[24:25], s[0:1], 80")

def srd(k, d, pbase, size, off=0):
    if off:
        k(f"s_add_u32 s{d}, s{pbase}, {hex(off)}")
        k(f"s_addc_u32 s{d+1}, s{pbase+1}, 0")
    else:
        k(f"s_mov_b32 s{d}, s{pbase}")
        k(f"s_mov_b32 s{d+1}, s{pbase+1}")
    k(f"s_mov_b32 s{d+2}, {hex(size)}")
    k(f"s_mov_b32 s{d+3}, 0x00020000")

def descriptor(name, vgprs=256, sgprs=102):
    return f""".section .rodata,"a"
.p2align 6
.amdhsa_kernel {name}
  .amdhsa_next_free_vgpr {vgprs}
  .amdhsa_next_free_sgpr {sgprs}
  .amdhsa_accum_offset {vgprs}
  .amdhsa_group_segment_fixed_size 0
  .amdhsa_kernarg_size 88
  .amdhsa_user_sgpr_count 2
  .amdhsa_user_sgpr_kernarg_segment_ptr 1
  .amdhsa_system_sgpr_workgroup_id_x 1
.end_amdhsa_kernel
"""

def header(name):
    return f""".text
.globl {name}
.p2align 8
.type {name},@function
{name}:
"""

def csel(k, d, a, b):
    k(f"s_mov_b32 s{d}, {hex(b)}")
    k(f"s_cselect_b32 s{d}, {hex(a)}, s{d}")

WS_DBG = 32*MB
STAMPS = False
def set_stamps(on):
    global STAMPS
    STAMPS = on
def stamp(k, i):
    if STAMPS: k(f"s_memtime s[{84+2*i}:{85+2*i}]")
def stamp_flush(k, kidx, swave):
    if not STAMPS: return
    k("s_waitcnt lgkmcnt(0)")
    srd(k, 80, P_WS, 65536, WS_DBG + kidx*65536)
    for i in range(8): k(f"v_mov_b32 v{2+i}, s{84+2*i}")
    k("s_lshl_b32 s100, s2, 8")
    k(f"s_lshl_b32 s101, s{swave}, 5")
    k("s_add_u32 s100, s100, s101")
    k("v_mov_b32 v1, s100")
    k("s_mov_b64 exec, 1")
    k("buffer_store_dwordx4 v[2:5], v1, s[80:83], 0 offen")
    k("buffer_store_dwordx4 v[6:9], v1, s[80:83], 0 offen offset:16")
    k("s_waitcnt vmcnt(0)")
def stamp_init(k):
    if not STAMPS: return
    for i in range(8): k(f"s_mov_b64 s[{84+2*i}:{85+2*i}], 0")
```

```python
from common import *

def gen_k1(name="k1_kernel", stamps=False):
    k = Kern(); k.end = "K1_END"
    K1_TB = 131072
    T_M, T_R, T_RH, T_CS = K1_TB, K1_TB + 512, K1_TB + 1024, K1_TB + 1536
    T_RP = K1_TB + 2048
    LDS = T_RP + 16384
    SX, SW, SO, SRS, SRD_, SST = 28, 32, 36, 40, 44, 48
    sWave, sTb, sSlot, sType, sPitch, sColb = 26, 27, 52, 54, 55, 56
    stamp_init(k)
    stamp(k, 0)
    prologue(k)
    k("v_lshrrev_b32 v1, 6, v0")
    k("v_and_b32 v0, 63, v0")
    k(f"v_readfirstlane_b32 s{sWave}, v1")
    k(f"s_and_b32 s{sTb}, s2, 7")
    k(f"s_lshl_b32 s{sTb}, s{sTb}, 1")
    k(f"s_lshr_b32 s{sSlot}, s2, 3")
    k(f"s_lshr_b32 s53, s{sSlot}, 4")
    k(f"s_add_u32 s{sTb}, s{sTb}, s53")
    k(f"s_and_b32 s{sSlot}, s{sSlot}, 15")
    k(f"s_lshr_b32 s{sType}, s{sSlot}, 2")
    k(f"s_min_u32 s{sType}, s{sType}, 2")
    vT31, vHf, vR, vQ, vCh = 1, 2, 3, 4, 5
    k(f"v_and_b32 v{vT31}, 31, v0")
    k(f"v_lshrrev_b32 v{vHf}, 5, v0")
    k(f"v_bfe_u32 v{vR}, v0, 2, 2")
    k(f"v_and_b32 v{vQ}, 3, v0")
    k(f"v_bfe_u32 v{vCh}, v0, 4, 1")
    k(f"s_lshl_b32 s{sColb}, s{sSlot}, 8")
    k(f"s_cmp_eq_u32 s{sType}, 1")
    k(f"s_cselect_b32 s57, 1024, 0")
    csel(k, sPitch, 1024, 3072)
    k(f"s_sub_u32 s{sColb}, s{sColb}, s57")
    k(f"s_lshl_b32 s57, s{sSlot}, 7")
    k(f"s_cmp_eq_u32 s{sType}, 2")
    k(f"s_cselect_b32 s{sColb}, s57, s{sColb}")
    k(f"s_cselect_b32 s58, 1, 2")
    k(f"s_cselect_b32 s59, 896, 0")
    k("s_waitcnt lgkmcnt(0)")
    stamp(k, 1)
    srd(k, SX, P_X, 2*MB)
    k(f"s_cmp_eq_u32 s{sType}, 1")
    k(f"s_cselect_b32 s{SW}, s{P_W1}, s{P_WQKV}")
    k(f"s_cselect_b32 s{SW+1}, s{P_W1+1}, s{P_WQKV+1}")
    csel(k, SW+2, 512*1024, 512*3072)
    k(f"s_mov_b32 s{SW+3}, 0x00020000")
    k(f"s_cmp_ge_u32 s{sWave}, 4")
    k("s_cbranch_scc1 K1_LOADER")

    ACC = 128
    def FX(b, t): return 32 + 24*b + 4*t
    def FW(b, n): return 32 + 24*b + 16 + 4*n
    xa = [16, 17, 18, 19]; wa = [20, 21]; xb = 22; wb = [23, 24]
    sSlotOff = 60; sCnt = 61
    for i in range(64): k(f"v_mov_b32 v{ACC+i}, 0")
    k(f"v_bfe_u32 v6, v{vT31}, 1, 3")
    k(f"v_xor_b32 v6, v6, v{vHf}")
    k(f"v_lshlrev_b32 v6, 4, v6")
    k(f"v_lshl_add_u32 v{xb}, v{vT31}, 7, v6")
    k(f"v_lshl_add_u32 v7, v{vHf}, 3, v{vR}")
    k(f"v_lshlrev_b32 v7, 8, v7")
    k(f"v_and_b32 v8, 1, v{vQ}")
    k(f"v_lshl_add_u32 v7, v8, 3, v7")
    k(f"v_add_u32 v7, 16384, v7")
    k(f"v_lshrrev_b32 v9, 1, v{vQ}")
    k(f"s_cmp_eq_u32 s{sType}, 2")
    k("s_cbranch_scc1 K1_KV")

    def addr_update():
        k(f"v_add_u32 v{xa[0]}, s{sSlotOff}, v{xb}")
        k(f"v_add_u32 v{wa[0]}, s{sSlotOff}, v{wb[0]}")
        k(f"v_add_u32 v{wa[1]}, s{sSlotOff}, v{wb[1]}")
        for j in range(1, 4): k(f"v_xor_b32 v{xa[j]}, {32*j}, v{xa[0]}")
        k(f"s_add_u32 s{sSlotOff}, s{sSlotOff}, 0x8000")
        k(f"s_and_b32 s{sSlotOff}, s{sSlotOff}, 0x18000")

    def mainloop(kv, tag):
        ntt = 4 if kv else 2
        nnt = 1 if kv else 2
        nrd = ntt + 2*nnt
        def reads(ks, b):
            for t in range(ntt):
                k(f"ds_read_b128 {v(FX(b,t),4)}, v{xa[ks]} offset:{4096*t}")
            for n in range(nnt):
                k(f"ds_read_b64_tr_b16 {v(FW(b,n),2)}, v{wa[n]} offset:{16*ks*256}")
                k(f"ds_read_b64_tr_b16 {v(FW(b,n)+2,2)}, v{wa[n]} offset:{(16*ks+4)*256}")
        def mfmas(b):
            if kv:
                for t in range(4):
                    a = ACC + 16*t
                    k(f"v_mfma_f32_32x32x16_bf16 {v(a,16)}, {v(FX(b,t),4)}, {v(FW(b,0),4)}, {v(a,16)}")
            else:
                for t in range(2):
                    for n in range(2):
                        a = ACC + 16*(2*t+n)
                        k(f"v_mfma_f32_32x32x16_bf16 {v(a,16)}, {v(FW(b,n),4)}, {v(FX(b,t),4)}, {v(a,16)}")
        k(f"s_mov_b32 s{sSlotOff}, 0")
        k(f"s_mov_b32 s{sCnt}, 8")
        addr_update()
        k("s_barrier")
        stamp(k, 2)
        reads(0, 0)
        k.label(f"K1_{tag}_LOOP")
        for ks in range(3):
            reads(ks+1, (ks+1) & 1)
            if ks == 2: addr_update()
            k(f"s_waitcnt lgkmcnt({nrd})")
            mfmas(ks & 1)
        k("s_waitcnt lgkmcnt(0)")
        k("s_barrier")
        reads(0, 0)
        mfmas(1)
        k(f"s_sub_u32 s{sCnt}, s{sCnt}, 1")
        k(f"s_cmp_lg_u32 s{sCnt}, 0")
        k(f"s_cbranch_scc1 K1_{tag}_LOOP")
        stamp(k, 3)

    k(f"s_lshr_b32 s62, s{sWave}, 1")
    k(f"s_and_b32 s63, s{sWave}, 1")
    k(f"s_lshl_b32 s64, s62, 13")
    k(f"v_add_u32 v{xb}, s64, v{xb}")
    for n in range(2):
        k(f"s_lshl_b32 s64, s63, 1")
        k(f"s_add_u32 s64, s64, {n}")
        k(f"v_xor_b32 v10, s64, v{vR}")
        k(f"v_lshlrev_b32 v10, 2, v10")
        k(f"v_lshl_add_u32 v10, v{vCh}, 1, v10")
        k(f"v_add_u32 v10, v10, v9")
        k(f"v_lshl_add_u32 v{wb[n]}, v10, 4, v7")
    mainloop(False, "T")
    CS = 32
    vM = [96, 97]; vRr = [98, 99]
    k(f"s_lshl_b32 s64, s62, 8")
    k(f"v_lshl_add_u32 v6, v{vT31}, 2, s64")
    k(f"s_cmp_eq_u32 s{sType}, 1")
    csel(k, 65, T_RH, T_R)
    k(f"v_add_u32 v8, s65, v6")
    k(f"v_add_u32 v6, {T_M}, v6")
    for t in range(2):
        k(f"ds_read_b32 v{vM[t]}, v6 offset:{128*t}")
        k(f"ds_read_b32 v{vRr[t]}, v8 offset:{128*t}")
    k(f"s_lshl_b32 s64, s63, 8")
    k(f"s_add_u32 s64, s64, {T_CS}")
    k(f"v_lshl_add_u32 v10, v{vHf}, 4, s64")
    for n in range(2):
        for g in range(4):
            k(f"ds_read_b128 {v(CS+16*n+4*g,4)}, v10 offset:{128*n + 32*g}")
    k(f"s_cmp_eq_u32 s{sType}, 1")
    k(f"s_cselect_b32 s64, {hex(WS_H)}, {hex(WS_PQ)}")
    k(f"s_add_u32 s{SO}, s{P_WS}, s64")
    k(f"s_addc_u32 s{SO+1}, s{P_WS+1}, 0")
    k(f"s_mov_b32 s{SO+2}, {hex(SZ_ACT)}")
    k(f"s_mov_b32 s{SO+3}, 0x00020000")
    k(f"s_lshl_b32 s64, s{sTb}, 2")
    k(f"s_lshl_b32 s65, s62, 1")
    k(f"s_add_u32 s64, s64, s65")
    k(f"s_lshl_b32 s64, s64, 15")
    k(f"s_and_b32 s65, s{sSlot}, 3")
    k(f"s_lshl_b32 s65, s65, 13")
    k(f"s_add_u32 s64, s64, s65")
    k(f"s_lshl_b32 s65, s63, 12")
    k(f"s_add_u32 s64, s64, s65")
    vOut = 11
    k(f"v_lshl_add_u32 v{vOut}, v0, 4, s64")
    k("s_mov_b32 s66, 0x8000")
    k(f"s_mov_b32 s67, {hx(EPS_PHI)}")
    T0, T1, PK = 100, 108, 116
    k("s_waitcnt lgkmcnt(0)")
    k(f"s_cmp_eq_u32 s{sType}, 1")
    k("s_cbranch_scc1 K1_EPI_H")
    def store_unit(t, n, hfi, pk):
        so = "s66" if t else "0"
        k(f"buffer_store_dwordx4 {v(pk,4)}, v{vOut}, s[{SO}:{SO+3}], {so} offen offset:{(2*n+hfi)*1024}")
    vRL = [12, 13]
    for t in range(2): k(f"v_mul_f32 v{vRL[t]}, {hx(LOG2E)}, v{vRr[t]}")
    u = 0
    for t in range(2):
        for n in range(2):
            for hfi in range(2):
                a = ACC + 16*(2*t+n) + 8*hfi; c = CS + 16*n + 8*hfi
                for i in range(8): k(f"v_fma_f32 v{T0+i}, -v{vM[t]}, v{c+i}, v{a+i}")
                for i in range(8): k(f"v_mul_f32 v{T1+i}, v{vRL[t]}, v{T0+i}")
                for i in range(8): k(f"v_fma_f32 v{T0+i}, v{T0+i}, v{vRr[t]}, s67")
                for i in range(8): k(f"v_exp_f32 v{T1+i}, v{T1+i} clamp")
                for i in range(8): k(f"v_max_f32 v{T0+i}, s67, v{T0+i}")
                for i in range(8): k(f"v_add_f32 v{T0+i}, v{T0+i}, v{T1+i}")
                pk = PK + 4*(u & 1)
                for i in range(4): k(f"v_cvt_pk_bf16_f32 v{pk+i}, v{T0+2*i}, v{T0+2*i+1}")
                store_unit(t, n, hfi, pk); u += 1
    k("s_branch K1_FIN")
    k.label("K1_EPI_H")
    vAr = [12, 13]; vBr = [14, 15]; vRi = [25, 26]
    for t in range(2):
        k(f"v_mul_f32 v{vAr[t]}, {hx(GA)}, v{vRr[t]}")
        k(f"v_mul_f32 v{vBr[t]}, v{vRr[t]}, v{vRr[t]}")
        k(f"v_rcp_f32 v{vRi[t]}, v{vRr[t]}")
        k(f"v_mul_f32 v{vBr[t]}, v{vBr[t]}, v{vRr[t]}")
        k(f"v_mul_f32 v{vBr[t]}, {hx(GB)}, v{vBr[t]}")
    u = 0
    for t in range(2):
        for n in range(2):
            for hfi in range(2):
                a = ACC + 16*(2*t+n) + 8*hfi; c = CS + 16*n + 8*hfi
                emit_gelu8(k, a, c, vM[t], vAr[t], vBr[t], vRi[t], T0, T1, PK + 4*(u & 1))
                store_unit(t, n, hfi, PK + 4*(u & 1)); u += 1
    k("s_branch K1_FIN")

    k.label("K1_KV")
    k(f"s_lshl_b32 s64, s{sWave}, 1")
    k(f"v_lshl_add_u32 v10, v{vCh}, 3, v9")
    k(f"v_add_u32 v10, s64, v10")
    k(f"v_lshlrev_b32 v8, 1, v{vR}")
    k(f"v_xor_b32 v10, v10, v8")
    k(f"v_lshl_add_u32 v{wb[0]}, v10, 4, v7")
    k(f"v_mov_b32 v{wb[1]}, v{wb[0]}")
    mainloop(True, "N")
    vCs = 96
    k(f"s_lshl_b32 s64, s{sWave}, 7")
    k(f"s_add_u32 s64, s64, {T_CS}")
    k(f"v_lshl_add_u32 v6, v{vT31}, 2, s64")
    k(f"ds_read_b32 v{vCs}, v6")
    k(f"v_lshlrev_b32 v8, 4, v{vHf}")
    k(f"v_add_u32 v8, {T_M}, v8")
    MM, RR = 32, 48
    def kv_tab(t, buf):
        for g in range(4):
            k(f"ds_read_b128 {v(MM+32*buf+4*g,4)}, v8 offset:{128*t + 32*g}")
            k(f"ds_read_b128 {v(RR+32*buf+4*g,4)}, v8 offset:{512 + 128*t + 32*g}")
    kv_tab(0, 0)
    vC1, vC2, vC3, vL, vCC, vOne = 97, 98, 99, 12, 13, 14
    k(f"v_cmp_gt_u32 s[68:69], 16, v{vT31}")
    k(f"v_mov_b32 v15, {hx(EPS_PHI)}")
    k(f"v_cndmask_b32 v{vC1}, 0, v15, s[68:69]")
    k(f"v_mov_b32 v25, 0xff7fffff")
    k(f"v_cndmask_b32 v{vC2}, v25, v15, s[68:69]")
    k(f"v_cndmask_b32 v{vC3}, 0, 1.0, s[68:69]")
    k(f"v_mov_b32 v{vL}, {hx(LOG2E)}")
    k(f"v_mov_b32 v{vCC}, {hx(-EPS_PHI*LOG2E)}")
    k(f"v_mov_b32 v{vOne}, 0x3f803f80")
    T0, T1, PA, PB, KV = 100, 108, 116, 120, 192
    first = True
    for t in range(4):
        buf = t & 1
        if t < 3: kv_tab(t+1, buf ^ 1)
        k(f"s_waitcnt lgkmcnt({8 if t < 3 else 0})")
        for hfi in range(2):
            a = ACC + 16*t + 8*hfi; m = MM + 32*buf + 8*hfi; r = RR + 32*buf + 8*hfi
            for i in range(8): k(f"v_fma_f32 v{T0+i}, -v{m+i}, v{vCs}, v{a+i}")
            for i in range(8): k(f"v_fma_f32 v{T0+i}, v{T0+i}, v{r+i}, v{vC1}")
            for i in range(8): k(f"v_fma_f32 v{T1+i}, v{T0+i}, v{vL}, v{vCC}")
            for i in range(8): k(f"v_exp_f32 v{T1+i}, v{T1+i} clamp")
            for i in range(8): k(f"v_max_f32 v{T0+i}, v{T0+i}, v{vC2}")
            for i in range(8): k(f"v_fma_f32 v{T0+i}, v{T1+i}, v{vC3}, v{T0+i}")
            pa = [116, 208][hfi]; pb = [120, 212][hfi]
            for i in range(4): k(f"v_cvt_pk_bf16_f32 v{pa+i}, v{T0+2*i}, v{T0+2*i+1}")
            for i in range(4): k(f"v_cndmask_b32 v{pb+i}, v{pa+i}, v{vOne}, s[68:69]")
            c = "0" if first else v(KV,16)
            k(f"v_mfma_f32_32x32x16_bf16 {v(KV,16)}, {v(pa,4)}, {v(pb,4)}, {c}")
            first = False
    srd(k, SO, P_WS, SZ_KVP, WS_KVP)
    k(f"s_sub_u32 s64, s{sSlot}, 8")
    k(f"s_lshl_b32 s64, s64, 2")
    k(f"s_add_u32 s64, s64, s{sWave}")
    k(f"s_lshl_b32 s64, s64, 4")
    k(f"s_add_u32 s64, s64, s{sTb}")
    k(f"s_lshl_b32 s64, s64, 11")
    k(f"v_lshl_add_u32 v11, v0, 4, s64")
    k(f"buffer_store_dwordx4 {v(KV,4)}, v11, s[{SO}:{SO+3}], 0 offen")
    k(f"buffer_store_dwordx4 {v(KV+4,4)}, v11, s[{SO}:{SO+3}], 0 offen offset:1024")
    k("s_branch K1_FIN")

    k.label("K1_LOADER")
    sLw = 62
    k(f"s_sub_u32 s{sLw}, s{sWave}, 4")
    vXe, vXo, vW = 16, 17, 18
    k("v_lshrrev_b32 v6, 3, v0")
    k("v_and_b32 v7, 7, v0")
    k("v_lshrrev_b32 v8, 4, v0")
    k("v_xor_b32 v7, v7, v8")
    k(f"s_lshl_b32 s63, s{sTb}, 7")
    k(f"s_lshl_b32 s64, s{sLw}, 5")
    k("s_add_u32 s63, s63, s64")
    k("v_add_u32 v6, s63, v6")
    k("v_lshlrev_b32 v6, 10, v6")
    k(f"v_lshl_add_u32 v{vXe}, v7, 4, v6")
    k(f"v_xor_b32 v{vXo}, 64, v{vXe}")
    k("v_and_b32 v9, 15, v0")
    k("v_lshlrev_b32 v10, s58, v8")
    k("v_xor_b32 v9, v9, v10")
    k("v_lshrrev_b32 v10, 3, v9")
    k("v_mul_u32_u24 v10, s59, v10")
    k("v_lshl_add_u32 v9, v9, 4, v10")
    k(f"v_add_u32 v9, s{sColb}, v9")
    k(f"s_lshl_b32 s64, s{sLw}, 4")
    k("v_add_u32 v8, s64, v8")
    k(f"v_mul_lo_u32 v8, v8, s{sPitch}")
    k(f"v_add_u32 v{vW}, v8, v9")
    sXo, sWo, sLd, sP4, sP64, sIs, sT = 64, 65, 66, 67, 68, 69, 70
    k(f"s_mov_b32 s{sXo}, 0")
    k(f"s_mov_b32 s{sWo}, 0")
    k(f"s_mov_b32 s{sIs}, 0")
    k(f"s_lshl_b32 s{sP4}, s{sPitch}, 2")
    k(f"s_lshl_b32 s{sP64}, s{sPitch}, 6")
    k(f"s_lshl_b32 s71, s{sLw}, 12")
    def issue_chunk():
        k(f"s_add_u32 s{sLd}, s{sIs}, s71")
        for i in range(4):
            k(f"s_add_u32 m0, s{sLd}, {i*1024}")
            k(f"s_add_u32 s{sT}, s{sXo}, {i*8192}")
            k(f"buffer_load_dwordx4 v{vXe if i % 2 == 0 else vXo}, s[{SX}:{SX+3}], s{sT} offen lds")
        k(f"s_mov_b32 s{sT}, s{sWo}")
        for i in range(4):
            k(f"s_add_u32 m0, s{sLd}, {16384 + i*1024}")
            if i: k(f"s_add_u32 s{sT}, s{sT}, s{sP4}")
            else: k("s_nop 0")
            k(f"buffer_load_dwordx4 v{vW}, s[{SW}:{SW+3}], s{sT} offen lds")
        k(f"s_add_u32 s{sXo}, s{sXo}, 128")
        k(f"s_add_u32 s{sWo}, s{sWo}, s{sP64}")
        k(f"s_add_u32 s{sIs}, s{sIs}, 0x8000")
        k(f"s_and_b32 s{sIs}, s{sIs}, 0x18000")
    stamp(k, 2)
    k("s_mov_b32 s72, 4")
    k.label("K1_PRE")
    issue_chunk()
    k("s_sub_u32 s72, s72, 1")
    k("s_cmp_lg_u32 s72, 0")
    k("s_cbranch_scc1 K1_PRE")
    stamp(k, 3)
    xb, wb0 = 19, 20
    xa = [21, 22, 23, 24]; wa0 = 25
    k(f"v_bfe_u32 v6, v{vT31}, 1, 3")
    k(f"v_xor_b32 v6, v6, v{vHf}")
    k(f"v_lshlrev_b32 v6, 4, v6")
    k(f"v_lshl_add_u32 v{xb}, v{vT31}, 7, v6")
    k(f"v_add_u32 v{xb}, s71, v{xb}")
    k(f"v_lshl_add_u32 v7, v{vHf}, 3, v{vR}")
    k(f"v_lshlrev_b32 v7, 8, v7")
    k(f"v_and_b32 v8, 1, v{vQ}")
    k(f"v_lshl_add_u32 v7, v8, 3, v7")
    k(f"v_add_u32 v7, 16384, v7")
    k(f"v_lshrrev_b32 v9, 1, v{vQ}")
    k(f"v_xor_b32 v10, s{sLw}, v{vR}")
    k(f"v_lshlrev_b32 v10, 2, v10")
    k(f"v_lshl_add_u32 v10, v{vCh}, 1, v10")
    k(f"v_add_u32 v10, v10, v9")
    k(f"s_lshl_b32 s72, s{sLw}, 1")
    k(f"v_lshl_add_u32 v11, v{vCh}, 3, v9")
    k(f"v_add_u32 v11, s72, v11")
    k(f"v_lshlrev_b32 v8, 1, v{vR}")
    k(f"v_xor_b32 v11, v11, v8")
    k(f"s_cmp_eq_u32 s{sType}, 2")
    k(f"s_cselect_b64 vcc, -1, 0")
    k(f"v_cndmask_b32 v10, v10, v11, vcc")
    k(f"v_lshl_add_u32 v{wb0}, v10, 4, v7")
    vSum, vSq, vCsum, vOne = 26, 27, 28, 29
    k(f"v_mov_b32 v{vSum}, 0")
    k(f"v_mov_b32 v{vSq}, 0")
    k(f"v_mov_b32 v{vCsum}, 0")
    k(f"v_mov_b32 v{vOne}, 0x3f803f80")
    sPz, sCg, sKg, sNks, sU = 73, 74, 75, 76, 77
    k("s_cmp_lt_u32 s2, 112")
    k("s_cbranch_scc1 K1_RP3")
    k("s_cmp_lt_u32 s2, 224")
    k("s_cbranch_scc1 K1_RP4")
    k(f"s_sub_u32 s{sU}, s2, 224")
    srd(k, SRS, P_WO, 512*1024)
    srd(k, SRD_, P_WS, SZ_WOP, WS_WOP)
    k(f"s_mov_b32 s{sNks}, 32")
    k("s_branch K1_RPC")
    k.label("K1_RP4")
    k(f"s_sub_u32 s{sU}, s2, 112")
    srd(k, SRS, P_W4, 1792*1024)
    srd(k, SRD_, P_WS, SZ_W4P, WS_W4P)
    k(f"s_mov_b32 s{sNks}, 112")
    k.label("K1_RPC")
    k(f"s_and_b32 s{sCg}, s{sU}, 7")
    k(f"s_lshr_b32 s{sKg}, s{sU}, 3")
    k(f"s_mov_b32 s{sPz}, 1024")
    k("s_branch K1_RPD")
    k.label("K1_RP3")
    srd(k, SRS, P_W3, 512*3584)
    srd(k, SRD_, P_WS, SZ_W3P, WS_W3P)
    k(f"s_mov_b32 s{sNks}, 32")
    k(f"s_lshr_b32 s{sCg}, s2, 2")
    k(f"s_and_b32 s{sKg}, s2, 3")
    k(f"s_mov_b32 s{sPz}, 3584")
    k.label("K1_RPD")
    vRS = 30
    k(f"s_lshl_b32 s72, s{sKg}, 7")
    k(f"s_lshl_b32 s78, s{sLw}, 5")
    k("s_add_u32 s72, s72, s78")
    k("v_lshrrev_b32 v6, 3, v0")
    k("v_add_u32 v6, s72, v6")
    k(f"v_mul_lo_u32 v6, v6, s{sPz}")
    k("v_and_b32 v7, 7, v0")
    k("v_lshl_add_u32 v6, v7, 4, v6")
    k(f"s_lshl_b32 s72, s{sCg}, 7")
    k(f"v_add_u32 v{vRS}, s72, v6")
    k(f"s_lshl_b32 s{sPz}, s{sPz}, 3")
    sC, sCons = 78, 79
    k(f"s_mov_b32 s{sC}, 0")
    k(f"s_mov_b32 s{sCons}, 0")
    k.label("K1_LD_LOOP")
    k(f"s_cmp_ge_u32 s{sC}, 6")
    k("s_cbranch_scc1 K1_LD_W2")
    k("s_waitcnt vmcnt(16)")
    k("s_branch K1_LD_WD")
    k.label("K1_LD_W2")
    k(f"s_cmp_eq_u32 s{sC}, 6")
    k("s_cbranch_scc1 K1_LD_W3")
    k("s_waitcnt vmcnt(4)")
    k("s_branch K1_LD_WD")
    k.label("K1_LD_W3")
    k("s_waitcnt vmcnt(12)")
    k.label("K1_LD_WD")
    k("s_barrier")
    k(f"s_sub_u32 s72, s{sC}, 1")
    k("s_cmp_lt_u32 s72, 4")
    k("s_cbranch_scc0 K1_LD_NI")
    issue_chunk()
    k("s_branch K1_LD_ST")
    k.label("K1_LD_NI")
    k(f"s_cmp_eq_u32 s{sC}, 5")
    k("s_cbranch_scc0 K1_LD_ST")
    k(f"s_add_u32 s{sLd}, s71, {T_RP}")
    k(f"s_mov_b32 s{sT}, 0")
    for i in range(4):
        k(f"s_add_u32 m0, s{sLd}, {i*1024}")
        if i: k(f"s_add_u32 s{sT}, s{sT}, s{sPz}")
        else: k("s_nop 0")
        k(f"buffer_load_dwordx4 v{vRS}, s[{SRS}:{SRS+3}], s{sT} offen lds")
    k.label("K1_LD_ST")
    k(f"v_add_u32 v{xa[0]}, s{sCons}, v{xb}")
    k(f"v_add_u32 v{wa0}, s{sCons}, v{wb0}")
    for j in range(1, 4): k(f"v_xor_b32 v{xa[j]}, {32*j}, v{xa[0]}")
    XD, WD = 32, 48
    for ks in range(4): k(f"ds_read_b128 {v(XD+4*ks,4)}, v{xa[ks]}")
    for ks in range(4):
        k(f"ds_read_b64_tr_b16 {v(WD+4*ks,2)}, v{wa0} offset:{16*ks*256}")
        k(f"ds_read_b64_tr_b16 {v(WD+4*ks+2,2)}, v{wa0} offset:{(16*ks+4)*256}")
    k(f"s_add_u32 s{sCons}, s{sCons}, 0x8000")
    k(f"s_and_b32 s{sCons}, s{sCons}, 0x18000")
    k("s_waitcnt lgkmcnt(8)")
    for i in range(16):
        k(f"v_dot2_f32_bf16 v{vSum}, v{XD+i}, v{vOne}, v{vSum}")
        k(f"v_dot2_f32_bf16 v{vSq}, v{XD+i}, v{XD+i}, v{vSq}")
    k("s_waitcnt lgkmcnt(0)")
    for i in range(16):
        k(f"v_dot2_f32_bf16 v{vCsum}, v{WD+i}, v{vOne}, v{vCsum}")
    k(f"s_add_u32 s{sC}, s{sC}, 1")
    k(f"s_cmp_lt_u32 s{sC}, 8")
    k("s_cbranch_scc1 K1_LD_LOOP")
    stamp(k, 6)
    def xhalf(r, tmp):
        k(f"v_mov_b32 v{tmp}, v{r}")
        k(f"v_permlane32_swap_b32 v{r}, v{tmp}")
        k(f"v_add_f32 v{r}, v{r}, v{tmp}")
    xhalf(vSum, 6); xhalf(vSq, 7); xhalf(vCsum, 8)
    k(f"v_mul_f32 v{vSum}, {hx(1.0/512)}, v{vSum}")
    k(f"v_mul_f32 v{vSq}, {hx(1.0/512)}, v{vSq}")
    k(f"v_fma_f32 v{vSq}, -v{vSum}, v{vSum}, v{vSq}")
    k(f"v_max_f32 v{vSq}, 0, v{vSq}")
    k(f"v_add_f32 v6, {hx(EPS_LN)}, v{vSq}")
    k(f"v_rsq_f32 v7, v6")
    k(f"v_mul_f32 v8, v7, v7")
    k(f"v_mul_f32 v8, v8, v{vSq}")
    k(f"v_add_f32 v8, {hx(EPS_LN)}, v8")
    k(f"v_rsq_f32 v8, v8")
    k(f"v_mul_f32 v8, v8, v7")
    k(f"s_lshl_b32 s72, s{sLw}, 7")
    k(f"v_lshl_add_u32 v9, v{vT31}, 2, s72")
    k(f"v_add_u32 v9, {T_M}, v9")
    k(f"ds_write_b32 v9, v{vSum}")
    k(f"ds_write_b32 v9, v7 offset:512")
    k(f"ds_write_b32 v9, v8 offset:1024")
    k(f"ds_write_b32 v9, v{vCsum} offset:1536")
    k("s_waitcnt lgkmcnt(0)")
    k("s_barrier")
    k(f"s_cmp_lg_u32 s{sSlot}, 0")
    k("s_cbranch_scc1 K1_NOST")
    srd(k, SST, P_WS, SZ_ST, WS_ST)
    k(f"s_lshl_b32 s72, s{sTb}, 7")
    k(f"s_lshl_b32 s80, s{sLw}, 5")
    k("s_add_u32 s72, s72, s80")
    k(f"v_add_u32 v9, s72, v{vT31}")
    k("v_lshlrev_b32 v9, 3, v9")
    k(f"v_mov_b32 v6, v{vSum}")
    k(f"buffer_store_dwordx2 v[6:7], v9, s[{SST}:{SST+3}], 0 offen")
    k.label("K1_NOST")
    k(f"v_lshl_add_u32 v10, v{vHf}, 2, v{vR}")
    k("v_lshlrev_b32 v10, 7, v10")
    k(f"v_lshl_add_u32 v10, v{vCh}, 5, v10")
    k(f"v_lshl_add_u32 v10, v{vQ}, 3, v10")
    k(f"s_add_u32 s72, s71, {T_RP}")
    k("v_add_u32 v10, s72, v10")
    k("s_waitcnt vmcnt(0)")
    for ks in range(2):
        for n in range(2):
            d = 32 + 4*(2*ks+n)
            k(f"ds_read_b64_tr_b16 {v(d,2)}, v10 offset:{16*ks*128 + 64*n}")
            k(f"ds_read_b64_tr_b16 {v(d+2,2)}, v10 offset:{(16*ks+8)*128 + 64*n}")
    k(f"s_lshl_b32 s72, s{sCg}, 1")
    k(f"s_mul_i32 s72, s72, s{sNks}")
    k(f"s_lshl_b32 s80, s{sKg}, 3")
    k("s_add_u32 s72, s72, s80")
    k(f"s_lshl_b32 s80, s{sLw}, 1")
    k("s_add_u32 s72, s72, s80")
    k("s_lshl_b32 s72, s72, 10")
    k("v_lshl_add_u32 v11, v0, 4, s72")
    k(f"s_lshl_b32 s80, s{sNks}, 10")
    k("s_waitcnt lgkmcnt(0)")
    for ks in range(2):
        for n in range(2):
            d = 32 + 4*(2*ks+n)
            so = "s80" if n else "0"
            k(f"buffer_store_dwordx4 {v(d,4)}, v11, s[{SRD_}:{SRD_+3}], {so} offen offset:{ks*1024}")
    k("s_cmp_lt_u32 s2, 112")
    k("s_cbranch_scc0 K1_FIN")
    k("v_mov_b32 v12, 0")
    k("v_mov_b32 v13, 0")
    for ks in range(2):
        for i in range(4):
            k(f"v_dot2_f32_bf16 v12, v{32 + 4*(2*ks) + i}, v{vOne}, v12")
            k(f"v_dot2_f32_bf16 v13, v{32 + 4*(2*ks+1) + i}, v{vOne}, v13")
    srd(k, SST, P_WS, SZ_CS3, WS_CS3)
    k(f"s_lshl_b32 s72, s{sCg}, 12")
    k(f"s_lshl_b32 s80, s{sKg}, 4")
    k("s_add_u32 s72, s72, s80")
    k(f"s_lshl_b32 s80, s{sLw}, 2")
    k("s_add_u32 s72, s72, s80")
    k("v_lshl_add_u32 v14, v0, 6, s72")
    k("v_permlane32_swap_b32 v12, v13")
    k("v_add_f32 v12, v12, v13")
    k(f"buffer_store_dword v12, v14, s[{SST}:{SST+3}], 0 offen")
    k.label("K1_FIN")
    stamp(k, 4)
    k("s_waitcnt vmcnt(0)")
    stamp(k, 5)
    stamp_flush(k, 0, sWave)
    k.label("K1_END")
    k("s_endpgm")
    return k, LDS

def emit_gelu8(k, a, c, vM, vAr, vBr, vRi, T0, T1, pk, n=8):
    for i in range(n): k(f"v_fma_f32 v{T0+i}, -v{vM}, v{c+i}, v{a+i}")
    for i in range(n): k(f"v_mul_f32 v{T1+i}, v{T0+i}, v{T0+i}")
    for i in range(n): k(f"v_fma_f32 v{T1+i}, v{T1+i}, v{vBr}, v{vAr}")
    for i in range(n): k(f"v_mul_f32 v{T1+i}, v{T1+i}, v{T0+i}")
    for i in range(n): k(f"v_exp_f32 v{T1+i}, v{T1+i}")
    for i in range(n): k(f"v_fma_f32 v{T1+i}, v{T1+i}, v{vRi}, v{vRi}")
    for i in range(n): k(f"v_rcp_f32 v{T1+i}, v{T1+i}")
    for i in range(n): k(f"v_mul_f32 v{T0+i}, v{T0+i}, v{T1+i}")
    for i in range(n//2): k(f"v_cvt_pk_bf16_f32 v{pk+i}, v{T0+2*i}, v{T0+2*i+1}")
```

```python
from common import *

def gen_k2():
    k = Kern(); k.end = "K2_END"
    L_W2, L_P, L_XT, L_OS = 0, 65536, 131072, 139264
    LDS = L_OS + 8192
    SH, SW2, SX, SST, SX1, SKV, SPQ, SO = 28, 32, 36, 40, 44, 48, 52, 56
    sWave, sM, sN, sHead, sTg = 26, 27, 60, 61, 62
    stamp_init(k); stamp(k, 0)
    prologue(k)
    k("v_lshrrev_b32 v1, 6, v0")
    k("v_and_b32 v0, 63, v0")
    k(f"v_readfirstlane_b32 s{sWave}, v1")
    k(f"s_and_b32 s{sTg}, s2, 7")
    k(f"s_lshr_b32 s{sHead}, s2, 3")
    k(f"s_lshr_b32 s63, s{sHead}, 3")
    k(f"s_lshl_b32 s{sM}, s{sTg}, 2")
    k(f"s_add_u32 s{sM}, s{sM}, s63")
    k(f"s_and_b32 s{sN}, s{sHead}, 7")
    vT31, vHf, vR, vQ, vCh = 1, 2, 3, 4, 5
    k(f"v_and_b32 v{vT31}, 31, v0")
    k(f"v_lshrrev_b32 v{vHf}, 5, v0")
    k(f"v_bfe_u32 v{vR}, v0, 2, 2")
    k(f"v_and_b32 v{vQ}, 3, v0")
    k(f"v_bfe_u32 v{vCh}, v0, 4, 1")
    k("s_waitcnt lgkmcnt(0)")
    stamp(k, 1)
    k(f"s_cmp_ge_u32 s{sWave}, 4")
    k("s_cbranch_scc1 K2_O")

    srd(k, SW2, P_W2, 512*1024)
    srd(k, SH, P_WS, SZ_ACT, WS_H)
    k("v_lshrrev_b32 v6, 3, v0")
    k("v_and_b32 v7, 7, v0")
    k(f"v_lshlrev_b32 v8, 2, v{vCh}")
    k("v_xor_b32 v7, v7, v8")
    k(f"s_lshl_b32 s63, s{sWave}, 7")
    k("v_add_u32 v6, s63, v6")
    k("v_lshlrev_b32 v6, 10, v6")
    k("v_lshl_add_u32 v6, v7, 4, v6")
    k(f"s_lshl_b32 s63, s{sN}, 7")
    k("v_add_u32 v6, s63, v6")
    k(f"s_lshl_b32 s64, s{sWave}, 14")
    k("s_mov_b32 s65, 0")
    for i in range(16):
        k(f"s_add_u32 m0, s64, {L_W2 + i*1024}")
        if i: k("s_add_u32 s65, s65, 8192")
        else: k("s_nop 0")
        k(f"buffer_load_dwordx4 v6, s[{SW2}:{SW2+3}], s65 offen lds")
    k(f"s_and_b32 s63, s{sWave}, 1")
    k(f"s_lshr_b32 s65, s{sWave}, 1")
    k("s_add_u32 s65, s65, 1")
    k("s_sub_u32 s66, 0, s65")
    k("s_cmp_eq_u32 s63, 1")
    k("s_cselect_b32 s65, s65, s66")
    k(f"s_lshl_b32 s66, s{sM}, 6")
    k("s_add_u32 s65, s65, s66")
    k(f"s_lshl_b32 s67, s{sWave}, 13")
    vH = [10, 11]
    for t in range(2):
        k(f"v_add_u32 v8, s65, v{vT31}")
        if t: k("v_add_u32 v8, 32, v8")
        k("v_ashrrev_i32 v9, 5, v8")
        k("v_lshlrev_b32 v9, 15, v9")
        k("v_and_b32 v12, 31, v8")
        k("v_lshl_add_u32 v9, v12, 4, v9")
        k(f"v_lshl_add_u32 v9, v{vHf}, 9, v9")
        k("v_add_u32 v9, s67, v9")
        k("v_cmp_gt_i32 vcc, 0, v8")
        k("v_mov_b32 v12, 0x7f000000")
        k(f"v_cndmask_b32 v{vH[t]}, v9, v12, vcc")
    k("s_mov_b32 s68, 4096")
    HF = 32
    for ks in range(8):
        for t in range(2):
            so = "s68" if ks >= 4 else "0"
            k(f"buffer_load_dwordx4 {v(HF+(ks*2+t)*4,4)}, v{vH[t]}, s[{SH}:{SH+3}], {so} offen offset:{(ks&3)*1024}")
    srd(k, SST, P_WS, SZ_ST, WS_ST)
    k(f"s_lshr_b32 s63, s{sWave}, 1")
    k("s_lshl_b32 s65, s63, 5")
    k("s_add_u32 s65, s65, s66")
    k(f"v_add_u32 v8, s65, v{vT31}")
    k("v_lshlrev_b32 v8, 3, v8")
    k(f"buffer_load_dwordx2 v[14:15], v8, s[{SST}:{SST+3}], 0 offen")
    k(f"v_lshl_add_u32 v8, v{vHf}, 2, v{vR}")
    k("v_lshlrev_b32 v8, 7, v8")
    k(f"v_and_b32 v9, 1, v{vQ}")
    k("v_lshl_add_u32 v8, v9, 3, v8")
    k("v_add_u32 v8, s64, v8")
    k(f"v_lshrrev_b32 v9, 1, v{vQ}")
    k(f"v_lshl_add_u32 v9, v{vCh}, 1, v9")
    k(f"v_lshrrev_b32 v12, 1, v{vR}")
    vWa = [16, 17]
    for n in range(2):
        k(f"v_xor_b32 v13, {n}, v12")
        k("v_lshl_add_u32 v13, v13, 2, v9")
        k(f"v_lshl_add_u32 v{vWa[n]}, v13, 4, v8")
    WF = 96
    k("s_waitcnt vmcnt(17)")
    stamp(k, 2)
    for ks in range(8):
        for n in range(2):
            d = WF + (ks*2+n)*4
            k(f"ds_read_b64_tr_b16 {v(d,2)}, v{vWa[n]} offset:{L_W2 + (16*ks)*128}")
            k(f"ds_read_b64_tr_b16 {v(d+2,2)}, v{vWa[n]} offset:{L_W2 + (16*ks+8)*128}")
    ACC = 160
    k("s_waitcnt lgkmcnt(0)")
    for ks in range(8):
        k(f"s_waitcnt vmcnt({15 - 2*ks})")
        for t in range(2):
            for n in range(2):
                a = ACC + 16*(2*t+n)
                c = "0" if ks == 0 else v(a,16)
                k(f"v_mfma_f32_32x32x16_bf16 {v(a,16)}, {v(WF+(ks*2+n)*4,4)}, {v(HF+(ks*2+t)*4,4)}, {c}")
    stamp(k, 3)
    k("v_lshlrev_b32 v8, 4, v0")
    k("v_add_u32 v8, s64, v8")
    k(f"v_add_u32 v18, {L_P}, v8")
    for t in range(2):
        for n in range(2):
            for q4 in range(4):
                u = t*4 + 2*n + (q4 >> 1)
                k(f"ds_write_b128 v18, {v(ACC+16*(2*t+n)+4*q4,4)} offset:{u*2048 + (q4&1)*1024}")
    k("s_waitcnt lgkmcnt(0)")
    k("s_barrier")
    stamp(k, 4)
    k(f"s_lshl_b32 s65, s{sWave}, 12")
    k("v_lshlrev_b32 v8, 4, v0")
    k("v_add_u32 v8, s65, v8")
    k(f"v_add_u32 v8, {L_P}, v8")
    RD = 32
    for uu in range(2):
        for src in range(4):
            for sub in range(2):
                k(f"ds_read_b128 {v(RD+32*uu+8*src+4*sub,4)}, v8 offset:{src*16384 + uu*2048 + sub*1024}")
    k(f"s_lshl_b32 s65, s63, 5")
    k(f"v_add_u32 v9, s65, v{vT31}")
    k("v_bfe_u32 v12, v9, 1, 3")
    k(f"s_and_b32 s65, s{sWave}, 1")
    k("s_lshl_b32 s65, s65, 2")
    k("v_xor_b32 v12, s65, v12")
    k("v_lshlrev_b32 v12, 4, v12")
    k("v_lshl_add_u32 v12, v9, 7, v12")
    k(f"v_lshl_add_u32 v12, v{vHf}, 3, v12")
    k(f"v_add_u32 v12, {L_XT}, v12")
    XR = 96
    for uu in range(2):
        for e in range(2):
            k(f"v_xor_b32 v13, {uu*32 + e*16}, v12")
            k(f"ds_read_b64 {v(XR+4*uu+2*e,2)}, v13")
    srd(k, SX1, P_WS, SZ_ACT, WS_X1)
    k(f"s_lshl_b32 s65, s{sM}, 1")
    k("s_add_u32 s65, s65, s63")
    k("s_lshl_b32 s65, s65, 15")
    k(f"s_lshl_b32 s67, s{sN}, 12")
    k("s_add_u32 s65, s65, s67")
    k(f"s_and_b32 s67, s{sWave}, 1")
    k("s_lshl_b32 s67, s67, 11")
    k("s_add_u32 s65, s65, s67")
    k("v_lshl_add_u32 v9, v0, 4, s65")
    k("s_waitcnt lgkmcnt(0) vmcnt(0)")
    k("v_mul_f32 v14, v14, v15")
    for uu in range(2):
        b = RD + 32*uu
        for i in range(8): k(f"v_add_f32 v{b+i}, v{b+i}, v{b+8+i}")
        for i in range(8): k(f"v_add_f32 v{b+16+i}, v{b+16+i}, v{b+24+i}")
        for i in range(8): k(f"v_add_f32 v{b+i}, v{b+i}, v{b+16+i}")
        for i in range(8): k(f"v_sub_f32 v{b+i}, v{b+i}, v14")
        U = 104
        for i in range(4):
            k(f"v_lshlrev_b32 v{U+2*i}, 16, v{XR+4*uu+i}")
            k(f"v_and_b32 v{U+2*i+1}, 0xffff0000, v{XR+4*uu+i}")
        for i in range(8): k(f"v_fma_f32 v{b+i}, v{U+i}, v15, v{b+i}")
        pk = 112 + 4*uu
        for i in range(4): k(f"v_cvt_pk_bf16_f32 v{pk+i}, v{b+2*i}, v{b+2*i+1}")
        k(f"buffer_store_dwordx4 {v(pk,4)}, v9, s[{SX1}:{SX1+3}], 0 offen offset:{uu*1024}")
    k("v_mov_b32 v20, 0")
    k("v_mov_b32 v21, 0")
    k("v_mov_b32 v22, 0x3f803f80")
    for i in range(8):
        k(f"v_dot2_f32_bf16 v20, v{112+i}, v22, v20")
        k(f"v_dot2_f32_bf16 v21, v{112+i}, v{112+i}, v21")
    srd(k, SST, P_WS, SZ_X1ST, WS_X1ST)
    k(f"s_lshl_b32 s65, s{sM}, 6")
    k("s_lshl_b32 s67, s63, 5")
    k("s_add_u32 s65, s65, s67")
    k(f"v_add_u32 v8, s65, v{vT31}")
    k("v_lshlrev_b32 v8, 7, v8")
    k(f"v_lshl_add_u32 v8, v{vHf}, 2, v8")
    k(f"s_lshl_b32 s65, s{sN}, 4")
    k(f"s_and_b32 s67, s{sWave}, 1")
    k("s_lshl_b32 s67, s67, 3")
    k("s_add_u32 s65, s65, s67")
    k("v_add_u32 v8, s65, v8")
    k("v_permlane32_swap_b32 v20, v21")
    k("v_add_f32 v20, v20, v21")
    k(f"buffer_store_dword v20, v8, s[{SST}:{SST+3}], 0 offen")
    k("s_branch K2_FIN")

    k.label("K2_O")
    sOw = 63
    k(f"s_sub_u32 s{sOw}, s{sWave}, 4")
    srd(k, SX, P_X, 2*MB)
    srd(k, SKV, P_WS, SZ_KVP, WS_KVP)
    srd(k, SPQ, P_WS, SZ_ACT, WS_PQ)
    srd(k, SO, P_WS, SZ_ACT, WS_O)
    k(f"s_lshl_b32 s64, s{sHead}, 4")
    k(f"s_lshl_b32 s65, s{sOw}, 2")
    k("s_add_u32 s64, s64, s65")
    k("s_lshl_b32 s64, s64, 11")
    k("v_lshl_add_u32 v6, v0, 4, s64")
    k("s_mov_b32 s68, 4096")
    KP = 32
    for j in range(4):
        for g in range(2):
            so = "s68" if j >= 2 else "0"
            k(f"buffer_load_dwordx4 {v(KP+8*j+4*g,4)}, v6, s[{SKV}:{SKV+3}], {so} offen offset:{(j&1)*2048 + g*1024}")
    k(f"s_lshl_b32 s64, s{sTg}, 3")
    k(f"s_lshl_b32 s65, s{sOw}, 1")
    k("s_add_u32 s64, s64, s65")
    k("s_lshl_b32 s64, s64, 15")
    k(f"s_lshl_b32 s65, s{sHead}, 10")
    k("s_add_u32 s64, s64, s65")
    k("v_lshl_add_u32 v7, v0, 4, s64")
    k("s_mov_b32 s69, 0x8000")
    PQ = 64
    k(f"buffer_load_dwordx4 {v(PQ,4)}, v7, s[{SPQ}:{SPQ+3}], 0 offen")
    k(f"buffer_load_dwordx4 {v(PQ+4,4)}, v7, s[{SPQ}:{SPQ+3}], s69 offen")
    k("v_lshrrev_b32 v8, 3, v0")
    k("v_and_b32 v9, 7, v0")
    k("v_lshrrev_b32 v10, 4, v0")
    k("v_xor_b32 v9, v9, v10")
    k(f"s_lshl_b32 s64, s{sM}, 6")
    k(f"s_lshl_b32 s65, s{sOw}, 4")
    k("s_add_u32 s64, s64, s65")
    k("v_add_u32 v8, s64, v8")
    k("v_lshlrev_b32 v8, 10, v8")
    k("v_lshl_add_u32 v8, v9, 4, v8")
    k(f"s_lshl_b32 s64, s{sN}, 7")
    k("v_add_u32 v8, s64, v8")
    k("v_xor_b32 v9, 64, v8")
    k(f"s_lshl_b32 s65, s{sOw}, 11")
    k(f"s_add_u32 m0, s65, {L_XT}")
    k("s_mov_b32 s70, 8192")
    k(f"buffer_load_dwordx4 v8, s[{SX}:{SX+3}], 0 offen lds")
    k(f"s_add_u32 m0, s65, {L_XT + 1024}")
    k("s_nop 0")
    k(f"buffer_load_dwordx4 v9, s[{SX}:{SX+3}], s70 offen lds")
    k("s_waitcnt vmcnt(4)")
    for i in range(8): k(f"v_add_f32 v{KP+i}, v{KP+i}, v{KP+8+i}")
    for i in range(8): k(f"v_add_f32 v{KP+16+i}, v{KP+16+i}, v{KP+24+i}")
    for i in range(8): k(f"v_add_f32 v{KP+i}, v{KP+i}, v{KP+16+i}")
    k("v_lshlrev_b32 v10, 4, v0")
    k(f"v_add_u32 v10, {L_OS}, v10")
    k(f"v_add_u32 v11, s65, v10")
    k(f"ds_write_b128 v11, {v(KP,4)}")
    k(f"ds_write_b128 v11, {v(KP+4,4)} offset:1024")
    k("s_waitcnt lgkmcnt(0) vmcnt(0)")
    stamp(k, 2)
    k("s_barrier")
    stamp(k, 4)
    for j in range(4):
        for g in range(2):
            k(f"ds_read_b128 {v(KP+8*j+4*g,4)}, v10 offset:{j*2048 + g*1024}")
    k("s_waitcnt lgkmcnt(0)")
    for i in range(8): k(f"v_add_f32 v{KP+i}, v{KP+i}, v{KP+8+i}")
    for i in range(8): k(f"v_add_f32 v{KP+16+i}, v{KP+16+i}, v{KP+24+i}")
    for i in range(8): k(f"v_add_f32 v{KP+i}, v{KP+i}, v{KP+16+i}")
    AF = 72
    for i in range(4): k(f"v_cvt_pk_bf16_f32 v{AF+i}, v{KP+2*i}, v{KP+2*i+1}")
    D = 96
    for e in range(2):
        k(f"v_mfma_f32_32x32x16_bf16 {v(D+16*e,16)}, {v(AF,4)}, {v(PQ+4*e,4)}, 0")
    for e in range(2):
        d = D + 16*e
        k(f"v_add_f32 v{d}, {hx(EPS_PHI)}, v{d}")
        k(f"v_rcp_f32 v{d}, v{d}")
        for i in range(8): k(f"v_mul_f32 v{d+8+i}, v{d+8+i}, v{d}")
        pk = 80 + 4*e
        for i in range(4): k(f"v_cvt_pk_bf16_f32 v{pk+i}, v{d+8+2*i}, v{d+8+2*i+1}")
        so = "s69" if e else "0"
        k(f"buffer_store_dwordx4 {v(pk,4)}, v7, s[{SO}:{SO+3}], {so} offen")
    k.label("K2_FIN")
    stamp(k, 5)
    k("s_waitcnt vmcnt(0)")
    stamp(k, 6)
    stamp_flush(k, 1, sWave)
    k.label("K2_END")
    k("s_endpgm")
    return k, LDS
```

```python
from common import *

class DsQ:
    def __init__(self, k, init=()):
        self.k = k; self.q = list(init)
    def issue(self, text, tag):
        self.k(text); self.q.append(tag)
    def wait(self, tag):
        if tag not in self.q: return
        i = len(self.q) - 1 - self.q[::-1].index(tag)
        n = len(self.q) - 1 - i
        assert n <= 15
        self.k(f"s_waitcnt lgkmcnt({n})")
        self.q = self.q[i+1:]

def gelu_ops(a, c, vM, vAr, vBr, vRi, T0, T1, pk, n=8):
    L = []
    for i in range(n): L.append(f"v_fma_f32 v{T0+i}, -v{vM}, v{c+i}, v{a+i}")
    for i in range(n): L.append(f"v_mul_f32 v{T1+i}, v{T0+i}, v{T0+i}")
    for i in range(n): L.append(f"v_fma_f32 v{T1+i}, v{T1+i}, v{vBr}, v{vAr}")
    for i in range(n): L.append(f"v_mul_f32 v{T1+i}, v{T1+i}, v{T0+i}")
    for i in range(n): L.append(f"v_exp_f32 v{T1+i}, v{T1+i}")
    for i in range(n): L.append(f"v_fma_f32 v{T1+i}, v{T1+i}, v{vRi}, v{vRi}")
    for i in range(n): L.append(f"v_rcp_f32 v{T1+i}, v{T1+i}")
    for i in range(n): L.append(f"v_mul_f32 v{T0+i}, v{T0+i}, v{T1+i}")
    for i in range(n//2): L.append(f"v_cvt_pk_bf16_f32 v{pk+i}, v{T0+2*i}, v{T0+2*i+1}")
    return L

def gen_k3():
    k = Kern(); k.end = "K3_END"
    L_CS = 131072
    LDS = L_CS + 1024
    SA, SW, SO, SST, SCS = 28, 32, 36, 40, 44
    sWave, sTb, sSlot, sNt, sT0, sIsO = 26, 27, 48, 49, 50, 51
    stamp_init(k); stamp(k, 0)
    prologue(k)
    k("v_lshrrev_b32 v1, 6, v0")
    k("v_and_b32 v0, 63, v0")
    k(f"v_readfirstlane_b32 s{sWave}, v1")
    k("s_lshr_b32 s52, s2, 3")
    k("s_and_b32 s53, s2, 3")
    k("s_lshl_b32 s53, s53, 2")
    k("s_and_b32 s54, s52, 3")
    k(f"s_add_u32 s{sSlot}, s53, s54")
    k("s_bfe_u32 s53, s2, 0x10002")
    k("s_lshl_b32 s53, s53, 3")
    k("s_lshr_b32 s54, s52, 2")
    k(f"s_add_u32 s{sTb}, s53, s54")
    k(f"s_mul_i32 s52, s{sSlot}, 5")
    k(f"s_lshl_b32 s53, s{sSlot}, 2")
    k("s_add_u32 s54, s53, 8")
    k("s_sub_u32 s55, s53, 48")
    k(f"s_cmp_lt_u32 s{sSlot}, 12")
    k("s_cselect_b32 s54, s54, s55")
    k(f"s_cselect_b32 s{sIsO}, 0, 1")
    k(f"s_cmp_lt_u32 s{sSlot}, 8")
    k(f"s_cselect_b32 s{sT0}, s52, s54")
    k(f"s_cselect_b32 s{sNt}, 5, 4")
    vT31, vHf = 1, 2
    k(f"v_and_b32 v{vT31}, 31, v0")
    k(f"v_lshrrev_b32 v{vHf}, 5, v0")
    k("s_waitcnt lgkmcnt(0)")
    stamp(k, 1)
    k(f"s_cmp_ge_u32 s{sWave}, 4")
    k("s_cbranch_scc1 K3_LOADER")

    ACT, AF, ACA, ACB, CS, T0, T1, PK = 32, 160, 192, 208, 224, 240, 248, 16
    LA = 6
    vA, vCSa, vOut, vM, vAr, vBr, vRi = 3, 4, 5, 6, 7, 8, 9
    ST = 224
    k(f"s_cmp_eq_u32 s{sIsO}, 1")
    csel(k, 52, WS_O, WS_X1)
    k(f"s_add_u32 s{SA}, s{P_WS}, s52")
    k(f"s_addc_u32 s{SA+1}, s{P_WS+1}, 0")
    k(f"s_mov_b32 s{SA+2}, {hex(SZ_ACT)}")
    k(f"s_mov_b32 s{SA+3}, 0x00020000")
    srd(k, SST, P_WS, SZ_X1ST, WS_X1ST)
    k(f"s_lshl_b32 s52, s{sTb}, 2")
    k(f"s_add_u32 s52, s52, s{sWave}")
    k("s_lshl_b32 s53, s52, 12")
    k(f"v_lshl_add_u32 v10, v{vT31}, 7, s53")
    k(f"v_lshl_add_u32 v10, v{vHf}, 6, v10")
    for i in range(4):
        k(f"buffer_load_dwordx4 {v(ST+4*i,4)}, v10, s[{SST}:{SST+3}], 0 offen offset:{16*i}")
    k("s_lshl_b32 s53, s52, 15")
    k("v_lshl_add_u32 v11, v0, 4, s53")
    k("s_mov_b32 s54, 0")
    for ks in range(32):
        if ks and ks % 4 == 0: k("s_add_u32 s54, s54, 4096")
        k(f"buffer_load_dwordx4 {v(ACT+4*ks,4)}, v11, s[{SA}:{SA+3}], s54 offen offset:{(ks&3)*1024}")
    k(f"s_cmp_eq_u32 s{sIsO}, 1")
    csel(k, 53, WS_S, WS_H3)
    k(f"s_add_u32 s{SO}, s{P_WS}, s53")
    k(f"s_addc_u32 s{SO+1}, s{P_WS+1}, 0")
    k(f"s_cmp_eq_u32 s{sIsO}, 1")
    csel(k, SO+2, SZ_ACT, SZ_H3)
    k(f"s_mov_b32 s{SO+3}, 0x00020000")
    k(f"s_cmp_eq_u32 s{sIsO}, 1")
    k("s_cselect_b32 s53, 32, 112")
    k("s_mul_i32 s53, s53, s52")
    k(f"s_lshl_b32 s54, s{sT0}, 1")
    k("s_add_u32 s53, s53, s54")
    k("s_lshl_b32 s53, s53, 10")
    k(f"v_lshl_add_u32 v{vOut}, v0, 4, s53")
    k(f"v_lshlrev_b32 v{vA}, 4, v0")
    k(f"v_lshlrev_b32 v{vCSa}, 4, v{vHf}")
    k(f"v_add_u32 v{vCSa}, {L_CS}, v{vCSa}")
    sCnt = 55
    k(f"s_sub_u32 s{sCnt}, s{sNt}, 1")

    def rd(q, ks):
        q.issue(f"ds_read_b128 {v(AF+4*(ks%8),4)}, v{vA} offset:{(ks%32)*1024}", ("a", ks%32))
    def next_slot():
        k(f"v_add_u32 v{vA}, 0x8000, v{vA}")
        k(f"v_and_b32 v{vA}, 0x1ffff, v{vA}")
    def cs_reads(q):
        for g in range(4):
            q.issue(f"ds_read_b128 {v(CS+4*g,4)}, v{vCSa} offset:{32*g}", ("cs", g))
    def mfma(ks):
        c = "0" if ks == 0 else v(ACA,16)
        d = v(ACB,16) if ks == 31 else v(ACA,16)
        k(f"v_mfma_f32_32x32x16_bf16 {d}, {v(AF+4*(ks%8),4)}, {v(ACT+4*ks,4)}, {c}")

    def stats_ops():
        L = []
        for i in range(4): L.append(f"v_add_f32 v{ST+i}, v{ST+i}, v{ST+4+i}")
        for i in range(4): L.append(f"v_add_f32 v{ST+8+i}, v{ST+8+i}, v{ST+12+i}")
        for i in range(4): L.append(f"v_add_f32 v{ST+i}, v{ST+i}, v{ST+8+i}")
        L.append(f"v_add_f32 v{ST}, v{ST}, v{ST+2}")
        L.append(f"v_add_f32 v{ST+1}, v{ST+1}, v{ST+3}")
        L.append(f"v_mov_b32 v{ST+2}, v{ST}")
        L.append(f"v_mov_b32 v{ST+3}, v{ST+1}")
        L.append(f"v_permlane32_swap_b32 v{ST}, v{ST+2}")
        L.append(f"v_permlane32_swap_b32 v{ST+1}, v{ST+3}")
        L.append(f"v_add_f32 v{ST}, v{ST}, v{ST+2}")
        L.append(f"v_add_f32 v{ST+1}, v{ST+1}, v{ST+3}")
        L.append(f"v_mul_f32 v{vM}, {hx(1.0/512)}, v{ST}")
        L.append(f"v_mul_f32 v{ST+1}, {hx(1.0/512)}, v{ST+1}")
        L.append(f"v_fma_f32 v{ST+1}, -v{vM}, v{vM}, v{ST+1}")
        L.append(f"v_max_f32 v{ST+1}, 0, v{ST+1}")
        L.append(f"v_add_f32 v{ST+1}, {hx(EPS_LN)}, v{ST+1}")
        L.append(f"v_rsq_f32 v{ST+2}, v{ST+1}")
        L.append(f"v_sqrt_f32 v{vRi}, v{ST+1}")
        L.append(f"v_mul_f32 v{vAr}, {hx(GA)}, v{ST+2}")
        L.append(f"v_mul_f32 v{vBr}, v{ST+2}, v{ST+2}")
        L.append(f"v_mul_f32 v{vBr}, v{vBr}, v{ST+2}")
        L.append(f"v_mul_f32 v{vBr}, {hx(GB)}, v{vBr}")
        return L

    def epi_ops(isO):
        L = []
        for h in range(2):
            pk = PK + 4*h
            if isO:
                for i in range(4): L.append(f"v_cvt_pk_bf16_f32 v{pk+i}, v{ACB+8*h+2*i}, v{ACB+8*h+2*i+1}")
            else:
                L += gelu_ops(ACB+8*h, CS+8*h, vM, vAr, vBr, vRi, T0, T1, pk)
            L.append(f"buffer_store_dwordx4 {v(pk,4)}, v{vOut}, s[{SO}:{SO+3}], 0 offen offset:{h*1024}")
        L.append(f"v_add_u32 v{vOut}, 2048, v{vOut}")
        return L

    def path(isO, tag):
        q = DsQ(k)
        k("s_barrier")
        stamp(k, 2)
        for ks in range(LA): rd(q, ks)
        fill = [] if isO else stats_ops()
        for ks in range(32):
            r = ks + LA
            if r < 32 and r % 8 == 0: k("s_barrier")
            if r == 32:
                k("s_barrier"); next_slot()
            if ks == 20 and not isO: cs_reads(q)
            rd(q, r)
            q.wait(("a", ks))
            k(f"s_waitcnt vmcnt({31-ks})")
            mfma(ks)
            if 4 <= ks < 18:
                for _ in range(3):
                    if fill: k(fill.pop(0))
        assert not fill
        stamp(k, 3)
        k.label(f"K3_{tag}_LOOP")
        q = DsQ(k, [("a", i) for i in range(LA)])
        fill = epi_ops(isO)
        nf = len(fill)
        cs_done = isO
        per = [0]*32
        for i in range(nf): per[2 + (i*30)//nf] += 1
        ncsuse = 0
        for ks in range(32):
            r = ks + LA
            if r == 32:
                k("s_barrier"); next_slot()
            rd(q, r)
            q.wait(("a", ks))
            mfma(ks)
            for _ in range(per[ks]):
                t = fill.pop(0)
                if not isO and t.startswith("v_fma_f32") and f"-v{vM}" in t:
                    if ncsuse == 0: q.wait(("cs", 3))
                    ncsuse += 1
                k(t)
                if not isO and ncsuse == 16 and not cs_done:
                    k(f"v_add_u32 v{vCSa}, 128, v{vCSa}")
                    cs_reads(q); cs_done = True
        k(f"s_sub_u32 s{sCnt}, s{sCnt}, 1")
        k(f"s_cmp_lg_u32 s{sCnt}, 0")
        k(f"s_cbranch_scc1 K3_{tag}_LOOP")
        stamp(k, 4)
        k("s_waitcnt lgkmcnt(0)")
        for t in epi_ops(isO): k(t)
        k("s_branch K3_FIN")

    k(f"s_cmp_eq_u32 s{sIsO}, 1")
    k("s_cbranch_scc1 K3_G6")
    path(False, "G4")
    k.label("K3_G6")
    path(True, "G6")

    k.label("K3_LOADER")
    sLw, sSo, sLd = 52, 53, 54
    k(f"s_sub_u32 s{sLw}, s{sWave}, 4")
    k(f"s_cmp_eq_u32 s{sIsO}, 1")
    csel(k, 55, WS_WOP, WS_W3P)
    k(f"s_add_u32 s{SW}, s{P_WS}, s55")
    k(f"s_addc_u32 s{SW+1}, s{P_WS+1}, 0")
    k(f"s_cmp_eq_u32 s{sIsO}, 1")
    csel(k, SW+2, SZ_WOP, SZ_W3P)
    k(f"s_mov_b32 s{SW+3}, 0x00020000")
    srd(k, SCS, P_WS, SZ_CS3, WS_CS3)
    k(f"s_add_u32 s56, s{sT0}, s{sLw}")
    k("s_lshl_b32 s56, s56, 11")
    k(f"v_lshlrev_b32 v4, 6, v{vT31}")
    k(f"v_lshl_add_u32 v4, v{vHf}, 5, v4")
    k("v_add_u32 v5, s56, v4")
    k(f"s_add_u32 s56, s{sT0}, 4")
    k("s_lshl_b32 s56, s56, 11")
    k("v_add_u32 v6, s56, v4")
    k(f"buffer_load_dwordx4 v[8:11], v5, s[{SCS}:{SCS+3}], 0 offen")
    k(f"buffer_load_dwordx4 v[12:15], v5, s[{SCS}:{SCS+3}], 0 offen offset:16")
    k(f"buffer_load_dwordx4 v[16:19], v6, s[{SCS}:{SCS+3}], 0 offen")
    k(f"buffer_load_dwordx4 v[20:23], v6, s[{SCS}:{SCS+3}], 0 offen offset:16")
    k("v_lshlrev_b32 v3, 4, v0")
    k(f"s_lshl_b32 s{sSo}, s{sT0}, 15")
    k(f"s_lshl_b32 s56, s{sLw}, 11")
    k(f"s_add_u32 s{sSo}, s{sSo}, s56")
    k(f"s_mov_b32 s{sLd}, s56")
    def issue_tile():
        for qq in range(4):
            for e in range(2):
                off = qq*8192 + e*1024
                k(f"s_add_u32 m0, s{sLd}, {off}")
                k(f"s_add_u32 s57, s{sSo}, {off}")
                k(f"buffer_load_dwordx4 v3, s[{SW}:{SW+3}], s57 offen lds")
        k(f"s_add_u32 s{sSo}, s{sSo}, 0x8000")
        k(f"s_add_u32 s{sLd}, s{sLd}, 0x8000")
        k(f"s_and_b32 s{sLd}, s{sLd}, 0x1ffff")
    issue_tile()
    stamp(k, 2)
    k("s_waitcnt vmcnt(6)")
    k("s_barrier")
    issue_tile()
    for b in (8, 16):
        for i in range(4): k(f"v_add_f32 v{b+i}, v{b+i}, v{b+4+i}")
        k(f"v_add_f32 v{b}, v{b}, v{b+1}")
        k(f"v_add_f32 v{b+2}, v{b+2}, v{b+3}")
        k(f"v_add_f32 v{b}, v{b}, v{b+2}")
    k("v_permlane32_swap_b32 v8, v16")
    k("v_add_f32 v8, v8, v16")
    k(f"s_lshl_b32 s56, s{sLw}, 7")
    k(f"s_sub_u32 s57, 512, s56")
    k(f"v_mul_u32_u24 v7, s57, v{vHf}")
    k(f"v_lshl_add_u32 v7, v{vT31}, 2, v7")
    k(f"s_add_u32 s56, s56, {L_CS}")
    k("v_add_u32 v7, s56, v7")
    k("ds_write_b32 v7, v8")
    k("s_waitcnt vmcnt(12) lgkmcnt(0)")
    k("s_barrier")
    k("s_waitcnt vmcnt(10)")
    k("s_barrier")
    issue_tile()
    k("s_waitcnt vmcnt(16)")
    k("s_barrier")
    k("s_waitcnt vmcnt(8)")
    k("s_barrier")
    issue_tile()
    k("s_waitcnt vmcnt(8)")
    k("s_barrier")
    k(f"s_cmp_eq_u32 s{sNt}, 5")
    k("s_cbranch_scc0 K3_LD4")
    issue_tile()
    k("s_waitcnt vmcnt(8)")
    k("s_barrier")
    k("s_waitcnt vmcnt(0)")
    k("s_barrier")
    k("s_barrier")
    k("s_branch K3_FIN")
    k.label("K3_LD4")
    k("s_waitcnt vmcnt(0)")
    k("s_barrier")
    k("s_barrier")
    k.label("K3_FIN")
    stamp(k, 5)
    k("s_waitcnt vmcnt(0)")
    stamp(k, 6)
    stamp_flush(k, 2, sWave)
    k.label("K3_END")
    k("s_endpgm")
    return k, LDS
```

```python
from common import *
from k3 import DsQ

def gen_k4():
    k = Kern(); k.end = "K4_END"
    LDS = 131072
    SH, SW, SX1, SS, SX, SO = 28, 32, 36, 40, 44, 48
    sWave, sM, sN = 26, 27, 52
    NCH = 14
    stamp_init(k); stamp(k, 0)
    prologue(k)
    k("v_lshrrev_b32 v1, 6, v0")
    k("v_and_b32 v0, 63, v0")
    k(f"v_readfirstlane_b32 s{sWave}, v1")
    k("s_lshr_b32 s53, s2, 3")
    k(f"s_and_b32 s{sN}, s53, 7")
    k("s_lshr_b32 s53, s53, 3")
    k(f"s_and_b32 s{sM}, s2, 7")
    k(f"s_lshl_b32 s{sM}, s{sM}, 2")
    k(f"s_add_u32 s{sM}, s{sM}, s53")
    vT31, vHf = 1, 2
    k(f"v_and_b32 v{vT31}, 31, v0")
    k(f"v_lshrrev_b32 v{vHf}, 5, v0")
    k("s_waitcnt lgkmcnt(0)")
    stamp(k, 1)
    k(f"s_cmp_ge_u32 s{sWave}, 4")
    k("s_cbranch_scc1 K4_LOADER")

    AF, BF, ACC = 32, 64, 96
    X1R, SR, XR = 112, 120, 128
    vA, vB = 3, 4
    sWm, sWn = 53, 54
    k(f"s_lshr_b32 s{sWm}, s{sWave}, 1")
    k(f"s_and_b32 s{sWn}, s{sWave}, 1")
    srd(k, SX1, P_WS, SZ_ACT, WS_X1)
    srd(k, SS, P_WS, SZ_ACT, WS_S)
    srd(k, SX, P_X, 2*MB)
    srd(k, SO, P_OUT, 2*MB)
    k(f"s_lshl_b32 s55, s{sM}, 1")
    k(f"s_add_u32 s55, s55, s{sWm}")
    k(f"s_lshl_b32 s56, s{sN}, 1")
    k(f"s_add_u32 s56, s56, s{sWn}")
    k("s_lshl_b32 s57, s55, 15")
    k("s_lshl_b32 s58, s56, 11")
    k("s_add_u32 s57, s57, s58")
    k("v_lshl_add_u32 v10, v0, 4, s57")
    for h in range(2):
        k(f"buffer_load_dwordx4 {v(X1R+4*h,4)}, v10, s[{SX1}:{SX1+3}], 0 offen offset:{h*1024}")
    for h in range(2):
        k(f"buffer_load_dwordx4 {v(SR+4*h,4)}, v10, s[{SS}:{SS+3}], 0 offen offset:{h*1024}")
    k("s_lshl_b32 s57, s55, 15")
    k("s_lshl_b32 s58, s56, 6")
    k("s_add_u32 s57, s57, s58")
    k(f"v_lshl_add_u32 v11, v{vT31}, 10, s57")
    k(f"v_lshl_add_u32 v11, v{vHf}, 3, v11")
    for g in range(4):
        k(f"buffer_load_dwordx2 {v(XR+2*g,2)}, v11, s[{SX}:{SX+3}], 0 offen offset:{g*16}")
    k(f"s_lshl_b32 s57, s{sWm}, 10")
    k(f"v_lshl_add_u32 v{vB}, v0, 4, s57")
    k(f"s_lshl_b32 s57, s{sWn}, 10")
    k("s_add_u32 s57, s57, 2048")
    k(f"v_lshl_add_u32 v{vA}, v0, 4, s57")
    LA = 3
    sCnt = 55
    def rd(q, r):
        ks = r % 8
        q.issue(f"ds_read_b128 {v(AF+4*ks,4)}, v{vA} offset:{ks*4096}", ("a", ks))
        q.issue(f"ds_read_b128 {v(BF+4*ks,4)}, v{vB} offset:{ks*4096}", ("b", ks))
    def next_slot():
        for r in (vA, vB):
            k(f"v_add_u32 v{r}, 0x8000, v{r}")
            k(f"v_and_b32 v{r}, 0x1ffff, v{r}")
    for i in range(16): k(f"v_mov_b32 v{ACC+i}, 0")
    k(f"s_mov_b32 s{sCnt}, {NCH}")
    k("s_barrier")
    stamp(k, 2)
    q = DsQ(k)
    for r in range(LA): rd(q, r)
    k.label("K4_LOOP")
    q = DsQ(k, [(c, i) for i in range(LA) for c in "ab"])
    for ks in range(8):
        r = ks + LA
        if r == 8:
            k("s_waitcnt lgkmcnt(0)"); q.q = []
            k("s_barrier"); next_slot()
        rd(q, r)
        q.wait(("b", ks))
        k(f"v_mfma_f32_32x32x16_bf16 {v(ACC,16)}, {v(AF+4*ks,4)}, {v(BF+4*ks,4)}, {v(ACC,16)}")
    k(f"s_sub_u32 s{sCnt}, s{sCnt}, 1")
    k(f"s_cmp_lg_u32 s{sCnt}, 0")
    k("s_cbranch_scc1 K4_LOOP")
    stamp(k, 3)
    k("s_waitcnt vmcnt(0) lgkmcnt(0)")
    U, T, E = 32, 48, 64
    sNL = 56
    k(f"s_mov_b32 s{sNL}, {hx(-LOG2E)}")
    for i in range(8):
        k(f"v_lshlrev_b32 v{U+2*i}, 16, v{X1R+i}")
        k(f"v_and_b32 v{U+2*i+1}, 0xffff0000, v{X1R+i}")
    for i in range(16): k(f"v_add_f32 v{U+i}, v{U+i}, v{ACC+i}")
    for i in range(16): k(f"v_mul_f32 v{E+i}, s{sNL}, v{U+i}")
    for i in range(16): k(f"v_exp_f32 v{E+i}, v{E+i}")
    for i in range(8):
        k(f"v_lshlrev_b32 v{T+2*i}, 16, v{SR+i}")
        k(f"v_and_b32 v{T+2*i+1}, 0xffff0000, v{SR+i}")
    for i in range(16): k(f"v_add_f32 v{E+i}, 1.0, v{E+i}")
    for i in range(16): k(f"v_rcp_f32 v{E+i}, v{E+i}")
    for i in range(16): k(f"v_mul_f32 v{U+i}, v{U+i}, v{T+i}")
    for i in range(8):
        k(f"v_lshlrev_b32 v{T+2*i}, 16, v{XR+i}")
        k(f"v_and_b32 v{T+2*i+1}, 0xffff0000, v{XR+i}")
    for i in range(16): k(f"v_fma_f32 v{U+i}, v{U+i}, v{E+i}, v{T+i}")
    for i in range(8): k(f"v_cvt_pk_bf16_f32 v{E+i}, v{U+2*i}, v{U+2*i+1}")
    for g in range(4):
        k(f"buffer_store_dwordx2 {v(E+2*g,2)}, v11, s[{SO}:{SO+3}], 0 offen offset:{g*16}")
    k("s_branch K4_FIN")

    k.label("K4_LOADER")
    sLw, sSo, sLd, sC = 53, 54, 55, 56
    k(f"s_sub_u32 s{sLw}, s{sWave}, 4")
    k(f"s_cmp_lt_u32 s{sLw}, 2")
    csel(k, 57, WS_H3, WS_W4P)
    k(f"s_add_u32 s{SH}, s{P_WS}, s57")
    k(f"s_addc_u32 s{SH+1}, s{P_WS+1}, 0")
    k(f"s_cmp_lt_u32 s{sLw}, 2")
    csel(k, SH+2, SZ_H3, SZ_W4P)
    k(f"s_mov_b32 s{SH+3}, 0x00020000")
    k(f"s_cmp_lt_u32 s{sLw}, 2")
    k(f"s_cselect_b32 s57, s{sM}, s{sN}")
    k("s_lshl_b32 s57, s57, 1")
    k(f"s_and_b32 s58, s{sLw}, 1")
    k("s_add_u32 s57, s57, s58")
    k(f"s_mul_i32 s{sSo}, s57, {112*1024}")
    k(f"s_lshl_b32 s{sLd}, s{sLw}, 10")
    k("v_lshlrev_b32 v3, 4, v0")
    def issue_chunk():
        for ks in range(8):
            k(f"s_add_u32 m0, s{sLd}, {ks*4096}")
            k(f"s_add_u32 s57, s{sSo}, {ks*1024}")
            k(f"buffer_load_dwordx4 v3, s[{SH}:{SH+3}], s57 offen lds")
        k(f"s_add_u32 s{sSo}, s{sSo}, 8192")
        k(f"s_add_u32 s{sLd}, s{sLd}, 0x8000")
        k(f"s_and_b32 s{sLd}, s{sLd}, 0x1ffff")
    for c in range(4): issue_chunk()
    stamp(k, 2)
    k("s_waitcnt vmcnt(24)")
    k("s_barrier")
    k(f"s_mov_b32 s{sC}, 1")
    k.label("K4_LD_LOOP")
    k("s_waitcnt vmcnt(16)")
    k("s_barrier")
    issue_chunk()
    k(f"s_add_u32 s{sC}, s{sC}, 1")
    k(f"s_cmp_le_u32 s{sC}, {NCH-4}")
    k("s_cbranch_scc1 K4_LD_LOOP")
    k("s_waitcnt vmcnt(16)")
    k("s_barrier")
    k("s_waitcnt vmcnt(8)")
    k("s_barrier")
    k("s_waitcnt vmcnt(0)")
    k("s_barrier")
    k("s_barrier")
    k.label("K4_FIN")
    stamp(k, 5)
    k("s_waitcnt vmcnt(0)")
    stamp(k, 6)
    stamp_flush(k, 3, sWave)
    k.label("K4_END")
    k("s_endpgm")
    return k, LDS
```

```python
import sys
sys.path.insert(0, "gen")
from common import *
from k1 import gen_k1

HDR = open("cdna_kernels/" + NAME + ".s.ref").read().split("\n")
def top_comment():
    out = []
    for l in HDR:
        if not l.startswith(";"): break
        if "@launch" in l or "Override launch" in l or "grid=ceil" in l: continue
        out.append(l)
    return out

def build(kernels):
    lines = top_comment()
    for name, k, lds, thr in kernels:
        lines.append(f"; @launch kernel={name} grid=(256,1,1) block=({thr},1,1) lds={lds}")
    lines.append('.amdgcn_target "amdgcn-amd-amdhsa--gfx950"')
    txt = "\n".join(lines) + "\n"
    for name, k, lds, thr in kernels:
        k.fix_hazards(verbose=True)
        txt += header(name) + k.text()
    for name, k, lds, thr in kernels:
        txt += descriptor(name)
    return txt

if __name__ == "__main__":
    which = sys.argv[2] if len(sys.argv) > 2 else "1"
    import common
    common.set_stamps(len(sys.argv) > 3 and sys.argv[3] == "s")
    ks = []
    if "1" in which:
        k, lds = gen_k1(); ks.append(("k1_kernel", k, lds, 512))
    if "2" in which:
        from k2 import gen_k2
        k, lds = gen_k2(); ks.append(("k2_kernel", k, lds, 512))
    if "3" in which:
        from k3 import gen_k3
        k, lds = gen_k3(); ks.append(("k3_kernel", k, lds, 512))
    if "4" in which:
        from k4 import gen_k4
        k, lds = gen_k4(); ks.append(("k4_kernel", k, lds, 512))
    open(sys.argv[1], "w").write(build(ks))
```

```python
from asmlib import *
import struct, os

def OPT(name, default):
    v_ = os.environ.get(name)
    if v_ is None: return default
    return type(default)(v_)

NAME = "recurrent_scan__linear_attn_block__mixer_s_mlp__prompt"
MB = 1 << 20
WS_PQ, WS_H, WS_X1, WS_O, WS_S = 0, 2*MB, 4*MB, 6*MB, 8*MB
WS_H3 = 10*MB
WS_W3P = 18*MB
WS_W4P = 20*MB
WS_WOP = 22*MB
WS_KVP = 23*MB
WS_ST = 24*MB
WS_X1ST = 25*MB
WS_CS3 = 26*MB
SZ_X1ST = 2048*128
SZ_CS3 = 1792*64
SZ_ACT = 2*MB
SZ_H3 = 64*112*1024
SZ_W3P = 56*32*1024
SZ_W4P = 16*112*1024
SZ_WOP = 16*32*1024
SZ_KVP = 32*16*2048
SZ_ST = 2048*8

def f2u(x):
    return struct.unpack("<I", struct.pack("<f", x))[0]
def hx(x):
    return "0x%08x" % f2u(x)

LOG2E = 1.4426950408889634
GA = -2.0 * LOG2E * 0.7978845608028654
GB = GA * 0.044715
EPS_LN = 1e-5
EPS_PHI = 1e-6

P_X, P_WQKV, P_WO, P_W1, P_W2, P_W3, P_W4 = 4, 6, 8, 12, 14, 16, 18
P_OUT, P_DBG, P_WS = 20, 22, 24

def prologue(k, nwg=256):
    k(f"s_cmp_ge_u32 s2, {nwg}")
    k("s_cbranch_scc1 " + k.end)
    k("s_load_dwordx16 s[4:19], s[0:1], 0")
    k("s_load_dwordx4 s[20:23], s[0:1], 64")
    k("s_load_dwordx2 s[24:25], s[0:1], 80")

def srd(k, d, pbase, size, off=0):
    if off:
        k(f"s_add_u32 s{d}, s{pbase}, {hex(off)}")
        k(f"s_addc_u32 s{d+1}, s{pbase+1}, 0")
    else:
        k(f"s_mov_b32 s{d}, s{pbase}")
        k(f"s_mov_b32 s{d+1}, s{pbase+1}")
    k(f"s_mov_b32 s{d+2}, {hex(size)}")
    k(f"s_mov_b32 s{d+3}, 0x00020000")

def descriptor(name, vgprs=256, sgprs=102):
    return f""".section .rodata,"a"
.p2align 6
.amdhsa_kernel {name}
  .amdhsa_next_free_vgpr {vgprs}
  .amdhsa_next_free_sgpr {sgprs}
  .amdhsa_accum_offset {vgprs}
  .amdhsa_group_segment_fixed_size 0
  .amdhsa_kernarg_size 88
  .amdhsa_user_sgpr_count 2
  .amdhsa_user_sgpr_kernarg_segment_ptr 1
  .amdhsa_system_sgpr_workgroup_id_x 1
.end_amdhsa_kernel
"""

def header(name):
    return f""".text
.globl {name}
.p2align 8
.type {name},@function
{name}:
"""

def csel(k, d, a, b):
    k(f"s_mov_b32 s{d}, {hex(b)}")
    k(f"s_cselect_b32 s{d}, {hex(a)}, s{d}")

WS_DBG = 32*MB
STAMPS = False
def set_stamps(on):
    global STAMPS
    STAMPS = on
def stamp(k, i):
    if STAMPS: k(f"s_memtime s[{84+2*i}:{85+2*i}]")
def stamp_flush(k, kidx, swave):
    if not STAMPS: return
    k("s_memrealtime s[82:83]")
    k("s_waitcnt lgkmcnt(0)")
    for i in range(8): k(f"v_mov_b32 v{2+i}, s{84+2*i}")
    k("v_mov_b32 v10, s100")
    k("v_mov_b32 v11, s82")
    srd(k, 80, P_WS, 131072, WS_DBG + kidx*131072)
    k("s_lshl_b32 s100, s2, 9")
    k(f"s_lshl_b32 s101, s{swave}, 6")
    k("s_add_u32 s100, s100, s101")
    k("v_mov_b32 v1, s100")
    k("s_mov_b64 exec, 1")
    k("buffer_store_dwordx4 v[2:5], v1, s[80:83], 0 offen")
    k("buffer_store_dwordx4 v[6:9], v1, s[80:83], 0 offen offset:16")
    k("buffer_store_dwordx2 v[10:11], v1, s[80:83], 0 offen offset:32")
    k("s_waitcnt vmcnt(0)")
def stamp_init(k):
    if not STAMPS: return
    for i in range(8): k(f"s_mov_b64 s[{84+2*i}:{85+2*i}], 0")
    k("s_memrealtime s[100:101]")
```

```python
import sys, os
sys.path.insert(0, "gen")
from common import *
import common

HDR = open("cdna_kernels/" + NAME + ".s.ref").read().split("\n")
def top_comment():
    out = []
    for l in HDR:
        if not l.startswith(";"): break
        if "@launch" in l or "Override launch" in l or "grid=ceil" in l: continue
        out.append(l)
    return out

def build(kernels, order):
    lines = top_comment()
    for t in order:
        name, k, lds, thr = kernels[t]
        lines.append(f"; @launch kernel={name} grid=(256,1,1) block=({thr},1,1) lds={lds}")
    lines.append('.amdgcn_target "amdgcn-amd-amdhsa--gfx950"')
    txt = "\n".join(lines) + "\n"
    for t, (name, k, lds, thr) in kernels.items():
        k.fix_hazards(verbose=OPT("V", 0))
        body = k.text()
        sm = OPT("STMOD", "")
        if sm and t in OPT("STK", "123"):
            body = "\n".join((l + " " + sm) if l.strip().startswith("buffer_store") and "s[80:83]" not in l else l for l in body.split("\n"))
        txt += header(name) + body
    txt += "CODE_END:\n  s_endpgm\n"
    for t, (name, k, lds, thr) in kernels.items():
        txt += descriptor(name)
    return txt

def gen_empty():
    k = Kern()
    k("s_endpgm")
    return k, 0

if __name__ == "__main__":
    which = sys.argv[2] if len(sys.argv) > 2 else "1"
    common.set_stamps(len(sys.argv) > 3 and sys.argv[3] == "s")
    ks = {}
    for t in sorted(set(which)):
        if t == "1":
            from k1 import gen_k1
            k, lds = gen_k1(); ks[t] = ("k1_kernel", k, lds, 512)
        if t == "2":
            from k2 import gen_k2
            k, lds = gen_k2(); ks[t] = ("k2_kernel", k, lds, 512)
        if t == "3":
            from k3 import gen_k3
            k, lds = gen_k3(); ks[t] = ("k3_kernel", k, lds, 512)
        if t == "4":
            from k4 import gen_k4
            k, lds = gen_k4(); ks[t] = ("k4_kernel", k, lds, 512)
        if t == "e":
            k, lds = gen_empty(); ks[t] = ("ke_kernel", k, lds, 512)
    open(sys.argv[1], "w").write(build(ks, which))
```

```python
from asmlib import *
import struct, os

def OPT(name, default):
    v_ = os.environ.get(name)
    if v_ is None: return default
    return type(default)(v_)

NAME = "recurrent_scan__linear_attn_block__mixer_s_mlp__prompt"
MB = 1 << 20
WS_PQ, WS_H, WS_X1, WS_O, WS_S = 0, 2*MB, 4*MB, 6*MB, 8*MB
WS_H3 = 10*MB
WS_W3P = 18*MB
WS_W4P = 20*MB
WS_WOP = 22*MB
WS_KVP = 23*MB
WS_ST = 24*MB
WS_X1ST = 25*MB
WS_CS3 = 26*MB
SZ_X1ST = 2048*128
SZ_CS3 = 1792*64
SZ_ACT = 2*MB
SZ_H3 = 64*112*1024
SZ_W3P = 56*32*1024
SZ_W4P = 16*112*1024
SZ_WOP = 16*32*1024
SZ_KVP = 32*16*2048
SZ_ST = 2048*8

def f2u(x):
    return struct.unpack("<I", struct.pack("<f", x))[0]
def hx(x):
    return "0x%08x" % f2u(x)

LOG2E = 1.4426950408889634
GA = -2.0 * LOG2E * 0.7978845608028654
GB = GA * 0.044715
EPS_LN = 1e-5
EPS_PHI = 1e-6

P_X, P_WQKV, P_WO, P_W1, P_W2, P_W3, P_W4 = 4, 6, 8, 12, 14, 16, 18
P_OUT, P_DBG, P_WS = 20, 22, 24

def prologue(k, nwg=256):
    k(f"s_cmp_ge_u32 s2, {nwg}")
    k("s_cbranch_scc1 " + k.end)
    k("s_load_dwordx16 s[4:19], s[0:1], 0")
    k("s_load_dwordx4 s[20:23], s[0:1], 64")
    k("s_load_dwordx2 s[24:25], s[0:1], 80")

def srd(k, d, pbase, size, off=0):
    if off:
        k(f"s_add_u32 s{d}, s{pbase}, {hex(off)}")
        k(f"s_addc_u32 s{d+1}, s{pbase+1}, 0")
    else:
        k(f"s_mov_b32 s{d}, s{pbase}")
        k(f"s_mov_b32 s{d+1}, s{pbase+1}")
    k(f"s_mov_b32 s{d+2}, {hex(size)}")
    k(f"s_mov_b32 s{d+3}, 0x00020000")

def descriptor(name, vgprs=256, sgprs=102):
    return f""".section .rodata,"a"
.p2align 6
.amdhsa_kernel {name}
  .amdhsa_next_free_vgpr {vgprs}
  .amdhsa_next_free_sgpr {sgprs}
  .amdhsa_accum_offset {vgprs}
  .amdhsa_group_segment_fixed_size 0
  .amdhsa_kernarg_size 88
  .amdhsa_user_sgpr_count 2
  .amdhsa_user_sgpr_kernarg_segment_ptr 1
  .amdhsa_system_sgpr_workgroup_id_x 1
.end_amdhsa_kernel
"""

def header(name):
    return f""".text
.globl {name}
.p2align 8
.type {name},@function
{name}:
"""

def csel(k, d, a, b):
    k(f"s_mov_b32 s{d}, {hex(b)}")
    k(f"s_cselect_b32 s{d}, {hex(a)}, s{d}")

WS_DBG = 32*MB
STAMPS = False
def set_stamps(on):
    global STAMPS
    STAMPS = on
DBGMODE = OPT("DBGT", 0)
def stamp(k, i):
    if STAMPS: k(f"s_memtime s[{84+2*i}:{85+2*i}]")
    elif DBGMODE and i in (0, 2, 5): k(f"s_memrealtime s[{84+2*i}:{85+2*i}]")
def stamp_flush(k, kidx, swave):
    if DBGMODE and not STAMPS:
        k("s_memrealtime s[82:83]")
        k("s_waitcnt lgkmcnt(0) vmcnt(0)")
        k("s_cmp_ge_u32 s2, 16")
        k(f"s_cbranch_scc1 DBG_SKIP_{kidx}")
        k(f"s_cmp_lg_u32 s{swave}, 0")
        k(f"s_cbranch_scc1 DBG_SKIP_{kidx}")
        k("s_not_b32 s84, s84")
        k("v_mov_b32 v2, s84")
        k("v_mov_b32 v3, s88")
        k("v_mov_b32 v4, s94")
        k("v_mov_b32 v5, s82")
        k(f"s_sub_u32 s80, s{P_DBG}, {512*kidx}")
        k(f"s_subb_u32 s81, s{P_DBG+1}, 0")
        k("s_mov_b32 s82, 256")
        k("s_mov_b32 s83, 0x00020000")
        k(f"v_mov_b32 v1, {16*kidx}")
        k("s_mov_b64 exec, 1")
        for i in range(4):
            k(f"buffer_atomic_umax v{2+i}, v1, s[80:83], 0 offen offset:{4*i}")
        k("s_waitcnt vmcnt(0)")
        k.label(f"DBG_SKIP_{kidx}")
        return
    if not STAMPS: return
    k("s_memrealtime s[82:83]")
    k("s_waitcnt lgkmcnt(0)")
    for i in range(8): k(f"v_mov_b32 v{2+i}, s{84+2*i}")
    k("v_mov_b32 v10, s100")
    k("v_mov_b32 v11, s82")
    srd(k, 80, P_WS, 131072, WS_DBG + kidx*131072)
    k("s_lshl_b32 s100, s2, 9")
    k(f"s_lshl_b32 s101, s{swave}, 6")
    k("s_add_u32 s100, s100, s101")
    k("v_mov_b32 v1, s100")
    k("s_mov_b64 exec, 1")
    k("buffer_store_dwordx4 v[2:5], v1, s[80:83], 0 offen")
    k("buffer_store_dwordx4 v[6:9], v1, s[80:83], 0 offen offset:16")
    k("buffer_store_dwordx2 v[10:11], v1, s[80:83], 0 offen offset:32")
    k("s_waitcnt vmcnt(0)")
def stamp_init(k):
    if not STAMPS: return
    for i in range(8): k(f"s_mov_b64 s[{84+2*i}:{85+2*i}], 0")
    k("s_memrealtime s[100:101]")
```

```python
from asmlib import *
import struct, os

def OPT(name, default):
    v_ = os.environ.get(name)
    if v_ is None: return default
    return type(default)(v_)

NAME = "recurrent_scan__linear_attn_block__mixer_s_mlp__prompt"
MB = 1 << 20
WS_PQ, WS_H, WS_X1, WS_O, WS_S = 0, 2*MB, 4*MB, 6*MB, 8*MB
WS_H3 = 10*MB
WS_W3P = 18*MB
WS_W4P = 20*MB
WS_WOP = 22*MB
WS_KVP = 23*MB
WS_ST = 24*MB
WS_X1ST = 25*MB
WS_CS3 = 26*MB
SZ_X1ST = 2048*128
SZ_CS3 = 1792*64
SZ_ACT = 2*MB
SZ_H3 = 64*112*1024
SZ_W3P = 56*32*1024
SZ_W4P = 16*112*1024
SZ_WOP = 16*32*1024
SZ_KVP = 32*16*2048
SZ_ST = 2048*8

def f2u(x):
    return struct.unpack("<I", struct.pack("<f", x))[0]
def hx(x):
    return "0x%08x" % f2u(x)

LOG2E = 1.4426950408889634
GA = -2.0 * LOG2E * 0.7978845608028654
GB = GA * 0.044715
EPS_LN = 1e-5
EPS_PHI = 1e-6

P_X, P_WQKV, P_WO, P_W1, P_W2, P_W3, P_W4 = 4, 6, 8, 12, 14, 16, 18
P_OUT, P_DBG, P_WS = 20, 22, 24

def prologue(k, nwg=256):
    k(f"s_cmp_ge_u32 s2, {nwg}")
    k("s_cbranch_scc1 " + k.end)
    k("s_load_dwordx16 s[4:19], s[0:1], 0")
    k("s_load_dwordx4 s[20:23], s[0:1], 64")
    k("s_load_dwordx2 s[24:25], s[0:1], 80")

def srd(k, d, pbase, size, off=0):
    if off:
        k(f"s_add_u32 s{d}, s{pbase}, {hex(off)}")
        k(f"s_addc_u32 s{d+1}, s{pbase+1}, 0")
    else:
        k(f"s_mov_b32 s{d}, s{pbase}")
        k(f"s_mov_b32 s{d+1}, s{pbase+1}")
    k(f"s_mov_b32 s{d+2}, {hex(size)}")
    k(f"s_mov_b32 s{d+3}, 0x00020000")

def descriptor(name, vgprs=256, sgprs=102):
    return f""".section .rodata,"a"
.p2align 6
.amdhsa_kernel {name}
  .amdhsa_next_free_vgpr {vgprs}
  .amdhsa_next_free_sgpr {sgprs}
  .amdhsa_accum_offset {vgprs}
  .amdhsa_group_segment_fixed_size 0
  .amdhsa_kernarg_size 88
  .amdhsa_user_sgpr_count 2
  .amdhsa_user_sgpr_kernarg_segment_ptr 1
  .amdhsa_system_sgpr_workgroup_id_x 1
.end_amdhsa_kernel
"""

def header(name):
    return f""".text
.globl {name}
.p2align 8
.type {name},@function
{name}:
"""

def csel(k, d, a, b):
    k(f"s_mov_b32 s{d}, {hex(b)}")
    k(f"s_cselect_b32 s{d}, {hex(a)}, s{d}")

WS_DBG = 32*MB
STAMPS = False
def set_stamps(on):
    global STAMPS
    STAMPS = on
DBGMODE = OPT("DBGT", 0)
def stamp(k, i):
    if STAMPS: k(f"s_memtime s[{84+2*i}:{85+2*i}]")
    elif DBGMODE and i in (0, 2, 5): k(f"s_memrealtime s[{84+2*i}:{85+2*i}]")
def stamp_flush(k, kidx, swave):
    if DBGMODE and not STAMPS:
        k("s_memrealtime s[82:83]")
        k("s_waitcnt lgkmcnt(0) vmcnt(0)")
        k("s_cmp_ge_u32 s2, 16")
        k(f"s_cbranch_scc1 DBG_SKIP_{kidx}")
        k(f"s_cmp_lg_u32 s{swave}, 0")
        k(f"s_cbranch_scc1 DBG_SKIP_{kidx}")
        k("s_not_b32 s84, s84")
        k("v_mov_b32 v2, s84")
        k("v_mov_b32 v3, s88")
        k("v_mov_b32 v4, s94")
        k("v_mov_b32 v5, s82")
        if OPT("DBGT", 0) == 1:
            k(f"s_sub_u32 s80, s{P_DBG}, {512*kidx}")
            k(f"s_subb_u32 s81, s{P_DBG+1}, 0")
        elif OPT("DBGT", 0) == 2:
            k(f"s_mov_b32 s80, s{P_DBG}")
            k(f"s_mov_b32 s81, s{P_DBG+1}")
        else:
            k(f"s_add_u32 s80, s{P_DBG}, {512*(3-kidx)}")
            k(f"s_addc_u32 s81, s{P_DBG+1}, 0")
        k("s_mov_b32 s82, 256")
        k("s_mov_b32 s83, 0x00020000")
        k(f"v_mov_b32 v1, {16*kidx}")
        k("s_mov_b64 exec, 1")
        for i in range(4):
            k(f"buffer_atomic_umax v{2+i}, v1, s[80:83], 0 offen offset:{4*i}")
        k("s_waitcnt vmcnt(0)")
        k.label(f"DBG_SKIP_{kidx}")
        return
    if not STAMPS: return
    k("s_memrealtime s[82:83]")
    k("s_waitcnt lgkmcnt(0)")
    for i in range(8): k(f"v_mov_b32 v{2+i}, s{84+2*i}")
    k("v_mov_b32 v10, s100")
    k("v_mov_b32 v11, s82")
    srd(k, 80, P_WS, 131072, WS_DBG + kidx*131072)
    k("s_lshl_b32 s100, s2, 9")
    k(f"s_lshl_b32 s101, s{swave}, 6")
    k("s_add_u32 s100, s100, s101")
    k("v_mov_b32 v1, s100")
    k("s_mov_b64 exec, 1")
    k("buffer_store_dwordx4 v[2:5], v1, s[80:83], 0 offen")
    k("buffer_store_dwordx4 v[6:9], v1, s[80:83], 0 offen offset:16")
    k("buffer_store_dwordx2 v[10:11], v1, s[80:83], 0 offen offset:32")
    k("s_waitcnt vmcnt(0)")
def stamp_init(k):
    if not STAMPS: return
    for i in range(8): k(f"s_mov_b64 s[{84+2*i}:{85+2*i}], 0")
    k("s_memrealtime s[100:101]")
```

```python
from common import *

def gen_k1(name="k1_kernel", stamps=False):
    k = Kern(); k.end = "K1_END"
    K1_TB = 131072
    T_M, T_R, T_RH, T_CS = K1_TB, K1_TB + 512, K1_TB + 1024, K1_TB + 1536
    T_RP = K1_TB + 2048
    LDS = T_RP + 16384
    SX, SW, SO, SRS, SRD_, SST = 28, 32, 36, 40, 44, 48
    sWave, sTb, sSlot, sType, sPitch, sColb = 26, 27, 52, 54, 55, 56
    stamp_init(k)
    stamp(k, 0)
    prologue(k)
    k("v_lshrrev_b32 v1, 6, v0")
    k("v_and_b32 v0, 63, v0")
    k(f"v_readfirstlane_b32 s{sWave}, v1")
    k(f"s_and_b32 s{sTb}, s2, 7")
    k(f"s_lshl_b32 s{sTb}, s{sTb}, 1")
    k(f"s_lshr_b32 s{sSlot}, s2, 3")
    k(f"s_lshr_b32 s53, s{sSlot}, 4")
    k(f"s_add_u32 s{sTb}, s{sTb}, s53")
    k(f"s_and_b32 s{sSlot}, s{sSlot}, 15")
    k(f"s_lshr_b32 s{sType}, s{sSlot}, 2")
    k(f"s_min_u32 s{sType}, s{sType}, 2")
    vT31, vHf, vR, vQ, vCh = 1, 2, 3, 4, 5
    k(f"v_and_b32 v{vT31}, 31, v0")
    k(f"v_lshrrev_b32 v{vHf}, 5, v0")
    k(f"v_bfe_u32 v{vR}, v0, 2, 2")
    k(f"v_and_b32 v{vQ}, 3, v0")
    k(f"v_bfe_u32 v{vCh}, v0, 4, 1")
    k(f"s_lshl_b32 s{sColb}, s{sSlot}, 8")
    k(f"s_cmp_eq_u32 s{sType}, 1")
    k(f"s_cselect_b32 s57, 1024, 0")
    csel(k, sPitch, 1024, 3072)
    k(f"s_sub_u32 s{sColb}, s{sColb}, s57")
    k(f"s_lshl_b32 s57, s{sSlot}, 7")
    k(f"s_cmp_eq_u32 s{sType}, 2")
    k(f"s_cselect_b32 s{sColb}, s57, s{sColb}")
    k(f"s_cselect_b32 s58, 1, 2")
    k(f"s_cselect_b32 s59, 896, 0")
    k("s_waitcnt lgkmcnt(0)")
    stamp(k, 1)
    srd(k, SX, P_X, 2*MB)
    k(f"s_cmp_eq_u32 s{sType}, 1")
    k(f"s_cselect_b32 s{SW}, s{P_W1}, s{P_WQKV}")
    k(f"s_cselect_b32 s{SW+1}, s{P_W1+1}, s{P_WQKV+1}")
    csel(k, SW+2, 512*1024, 512*3072)
    k(f"s_mov_b32 s{SW+3}, 0x00020000")
    k(f"s_cmp_ge_u32 s{sWave}, 4")
    k("s_cbranch_scc1 K1_LOADER")

    if OPT("CPF", 0):
        k(f"s_cmp_lg_u32 s{sWave}, 0")
        k("s_cbranch_scc1 K1_NOPF")
        k("s_getpc_b64 s[60:61]")
        k.label("K1_PC")
        k("s_sub_u32 s60, s60, K1_PC-k1_kernel")
        k("s_subb_u32 s61, s61, 0")
        k("s_mov_b32 s62, CODE_END-k1_kernel")
        k("s_mov_b32 s63, 0x00020000")
        k("s_lshr_b32 s64, s2, 3")
        k("s_lshl_b32 s64, s64, 10")
        k("v_lshl_add_u32 v6, v0, 4, s64")
        k("buffer_load_dwordx4 v[248:251], v6, s[60:63], 0 offen")
        k.label("K1_NOPF")
    ACC = 128
    def FX(b, t): return 32 + 24*b + 4*t
    def FW(b, n): return 32 + 24*b + 16 + 4*n
    xa = [16, 17, 18, 19]; wa = [20, 21]; xb = 22; wb = [23, 24]
    sSlotOff = 60; sCnt = 61
    for i in range(64): k(f"v_mov_b32 v{ACC+i}, 0")
    k(f"v_bfe_u32 v6, v{vT31}, 1, 3")
    k(f"v_xor_b32 v6, v6, v{vHf}")
    k(f"v_lshlrev_b32 v6, 4, v6")
    k(f"v_lshl_add_u32 v{xb}, v{vT31}, 7, v6")
    k(f"v_lshl_add_u32 v7, v{vHf}, 3, v{vR}")
    k(f"v_lshlrev_b32 v7, 8, v7")
    k(f"v_and_b32 v8, 1, v{vQ}")
    k(f"v_lshl_add_u32 v7, v8, 3, v7")
    k(f"v_add_u32 v7, 16384, v7")
    k(f"v_lshrrev_b32 v9, 1, v{vQ}")
    k(f"s_cmp_eq_u32 s{sType}, 2")
    k("s_cbranch_scc1 K1_KV")

    def addr_update():
        k(f"v_add_u32 v{xa[0]}, s{sSlotOff}, v{xb}")
        k(f"v_add_u32 v{wa[0]}, s{sSlotOff}, v{wb[0]}")
        k(f"v_add_u32 v{wa[1]}, s{sSlotOff}, v{wb[1]}")
        for j in range(1, 4): k(f"v_xor_b32 v{xa[j]}, {32*j}, v{xa[0]}")
        k(f"s_add_u32 s{sSlotOff}, s{sSlotOff}, 0x8000")
        k(f"s_and_b32 s{sSlotOff}, s{sSlotOff}, 0x18000")

    def mainloop(kv, tag):
        ntt = 4 if kv else 2
        nnt = 1 if kv else 2
        nrd = ntt + 2*nnt
        def reads(ks, b):
            for t in range(ntt):
                k(f"ds_read_b128 {v(FX(b,t),4)}, v{xa[ks]} offset:{4096*t}")
            for n in range(nnt):
                k(f"ds_read_b64_tr_b16 {v(FW(b,n),2)}, v{wa[n]} offset:{16*ks*256}")
                k(f"ds_read_b64_tr_b16 {v(FW(b,n)+2,2)}, v{wa[n]} offset:{(16*ks+4)*256}")
        def mfmas(b):
            if kv:
                for t in range(4):
                    a = ACC + 16*t
                    k(f"v_mfma_f32_32x32x16_bf16 {v(a,16)}, {v(FX(b,t),4)}, {v(FW(b,0),4)}, {v(a,16)}")
            else:
                for t in range(2):
                    for n in range(2):
                        a = ACC + 16*(2*t+n)
                        k(f"v_mfma_f32_32x32x16_bf16 {v(a,16)}, {v(FW(b,n),4)}, {v(FX(b,t),4)}, {v(a,16)}")
        k(f"s_mov_b32 s{sSlotOff}, 0")
        k(f"s_mov_b32 s{sCnt}, 8")
        addr_update()
        k("s_barrier")
        stamp(k, 2)
        reads(0, 0)
        k.label(f"K1_{tag}_LOOP")
        for ks in range(3):
            reads(ks+1, (ks+1) & 1)
            if ks == 2: addr_update()
            k(f"s_waitcnt lgkmcnt({nrd})")
            mfmas(ks & 1)
        k("s_waitcnt lgkmcnt(0)")
        k("s_barrier")
        reads(0, 0)
        mfmas(1)
        k(f"s_sub_u32 s{sCnt}, s{sCnt}, 1")
        k(f"s_cmp_lg_u32 s{sCnt}, 0")
        k(f"s_cbranch_scc1 K1_{tag}_LOOP")
        stamp(k, 3)

    k(f"s_lshr_b32 s62, s{sWave}, 1")
    k(f"s_and_b32 s63, s{sWave}, 1")
    k(f"s_lshl_b32 s64, s62, 13")
    k(f"v_add_u32 v{xb}, s64, v{xb}")
    for n in range(2):
        k(f"s_lshl_b32 s64, s63, 1")
        k(f"s_add_u32 s64, s64, {n}")
        k(f"v_xor_b32 v10, s64, v{vR}")
        k(f"v_lshlrev_b32 v10, 2, v10")
        k(f"v_lshl_add_u32 v10, v{vCh}, 1, v10")
        k(f"v_add_u32 v10, v10, v9")
        k(f"v_lshl_add_u32 v{wb[n]}, v10, 4, v7")
    mainloop(False, "T")
    CS = 32
    vM = [96, 97]; vRr = [98, 99]
    k(f"s_lshl_b32 s64, s62, 8")
    k(f"v_lshl_add_u32 v6, v{vT31}, 2, s64")
    k(f"s_cmp_eq_u32 s{sType}, 1")
    csel(k, 65, T_RH, T_R)
    k(f"v_add_u32 v8, s65, v6")
    k(f"v_add_u32 v6, {T_M}, v6")
    for t in range(2):
        k(f"ds_read_b32 v{vM[t]}, v6 offset:{128*t}")
        k(f"ds_read_b32 v{vRr[t]}, v8 offset:{128*t}")
    k(f"s_lshl_b32 s64, s63, 8")
    k(f"s_add_u32 s64, s64, {T_CS}")
    k(f"v_lshl_add_u32 v10, v{vHf}, 4, s64")
    for n in range(2):
        for g in range(4):
            k(f"ds_read_b128 {v(CS+16*n+4*g,4)}, v10 offset:{128*n + 32*g}")
    k(f"s_cmp_eq_u32 s{sType}, 1")
    k(f"s_cselect_b32 s64, {hex(WS_H)}, {hex(WS_PQ)}")
    k(f"s_add_u32 s{SO}, s{P_WS}, s64")
    k(f"s_addc_u32 s{SO+1}, s{P_WS+1}, 0")
    k(f"s_mov_b32 s{SO+2}, {hex(SZ_ACT)}")
    k(f"s_mov_b32 s{SO+3}, 0x00020000")
    k(f"s_lshl_b32 s64, s{sTb}, 2")
    k(f"s_lshl_b32 s65, s62, 1")
    k(f"s_add_u32 s64, s64, s65")
    k(f"s_lshl_b32 s64, s64, 15")
    k(f"s_and_b32 s65, s{sSlot}, 3")
    k(f"s_lshl_b32 s65, s65, 13")
    k(f"s_add_u32 s64, s64, s65")
    k(f"s_lshl_b32 s65, s63, 12")
    k(f"s_add_u32 s64, s64, s65")
    vOut = 11
    k(f"v_lshl_add_u32 v{vOut}, v0, 4, s64")
    k("s_mov_b32 s66, 0x8000")
    k(f"s_mov_b32 s67, {hx(EPS_PHI)}")
    T0, T1, PK = 100, 108, 116
    k("s_waitcnt lgkmcnt(0)")
    k(f"s_cmp_eq_u32 s{sType}, 1")
    k("s_cbranch_scc1 K1_EPI_H")
    def store_unit(t, n, hfi, pk):
        so = "s66" if t else "0"
        k(f"buffer_store_dwordx4 {v(pk,4)}, v{vOut}, s[{SO}:{SO+3}], {so} offen offset:{(2*n+hfi)*1024}")
    vRL = [12, 13]
    for t in range(2): k(f"v_mul_f32 v{vRL[t]}, {hx(LOG2E)}, v{vRr[t]}")
    u = 0
    for t in range(2):
        for n in range(2):
            for hfi in range(2):
                a = ACC + 16*(2*t+n) + 8*hfi; c = CS + 16*n + 8*hfi
                for i in range(8): k(f"v_fma_f32 v{T0+i}, -v{vM[t]}, v{c+i}, v{a+i}")
                for i in range(8): k(f"v_mul_f32 v{T1+i}, v{vRL[t]}, v{T0+i}")
                for i in range(8): k(f"v_fma_f32 v{T0+i}, v{T0+i}, v{vRr[t]}, s67")
                for i in range(8): k(f"v_exp_f32 v{T1+i}, v{T1+i} clamp")
                for i in range(8): k(f"v_max_f32 v{T0+i}, s67, v{T0+i}")
                for i in range(8): k(f"v_add_f32 v{T0+i}, v{T0+i}, v{T1+i}")
                pk = PK + 4*(u & 1)
                for i in range(4): k(f"v_cvt_pk_bf16_f32 v{pk+i}, v{T0+2*i}, v{T0+2*i+1}")
                store_unit(t, n, hfi, pk); u += 1
    k("s_branch K1_FIN")
    k.label("K1_EPI_H")
    vAr = [12, 13]; vBr = [14, 15]; vRi = [25, 26]
    for t in range(2):
        k(f"v_mul_f32 v{vAr[t]}, {hx(GA)}, v{vRr[t]}")
        k(f"v_mul_f32 v{vBr[t]}, v{vRr[t]}, v{vRr[t]}")
        k(f"v_rcp_f32 v{vRi[t]}, v{vRr[t]}")
        k(f"v_mul_f32 v{vBr[t]}, v{vBr[t]}, v{vRr[t]}")
        k(f"v_mul_f32 v{vBr[t]}, {hx(GB)}, v{vBr[t]}")
    u = 0
    for t in range(2):
        for n in range(2):
            for hfi in range(2):
                a = ACC + 16*(2*t+n) + 8*hfi; c = CS + 16*n + 8*hfi
                emit_gelu8(k, a, c, vM[t], vAr[t], vBr[t], vRi[t], T0, T1, PK + 4*(u & 1))
                store_unit(t, n, hfi, PK + 4*(u & 1)); u += 1
    k("s_branch K1_FIN")

    k.label("K1_KV")
    k(f"s_lshl_b32 s64, s{sWave}, 1")
    k(f"v_lshl_add_u32 v10, v{vCh}, 3, v9")
    k(f"v_add_u32 v10, s64, v10")
    k(f"v_lshlrev_b32 v8, 1, v{vR}")
    k(f"v_xor_b32 v10, v10, v8")
    k(f"v_lshl_add_u32 v{wb[0]}, v10, 4, v7")
    k(f"v_mov_b32 v{wb[1]}, v{wb[0]}")
    mainloop(True, "N")
    vCs = 96
    k(f"s_lshl_b32 s64, s{sWave}, 7")
    k(f"s_add_u32 s64, s64, {T_CS}")
    k(f"v_lshl_add_u32 v6, v{vT31}, 2, s64")
    k(f"ds_read_b32 v{vCs}, v6")
    k(f"v_lshlrev_b32 v8, 4, v{vHf}")
    k(f"v_add_u32 v8, {T_M}, v8")
    MM, RR = 32, 48
    def kv_tab(t, buf):
        for g in range(4):
            k(f"ds_read_b128 {v(MM+32*buf+4*g,4)}, v8 offset:{128*t + 32*g}")
            k(f"ds_read_b128 {v(RR+32*buf+4*g,4)}, v8 offset:{512 + 128*t + 32*g}")
    kv_tab(0, 0)
    vC1, vC2, vC3, vL, vCC, vOne = 97, 98, 99, 12, 13, 14
    k(f"v_cmp_gt_u32 s[68:69], 16, v{vT31}")
    k(f"v_mov_b32 v15, {hx(EPS_PHI)}")
    k(f"v_cndmask_b32 v{vC1}, 0, v15, s[68:69]")
    k(f"v_mov_b32 v25, 0xff7fffff")
    k(f"v_cndmask_b32 v{vC2}, v25, v15, s[68:69]")
    k(f"v_cndmask_b32 v{vC3}, 0, 1.0, s[68:69]")
    k(f"v_mov_b32 v{vL}, {hx(LOG2E)}")
    k(f"v_mov_b32 v{vCC}, {hx(-EPS_PHI*LOG2E)}")
    k(f"v_mov_b32 v{vOne}, 0x3f803f80")
    T0, T1, PA, PB, KV = 100, 108, 116, 120, 192
    first = True
    for t in range(4):
        buf = t & 1
        if t < 3: kv_tab(t+1, buf ^ 1)
        k(f"s_waitcnt lgkmcnt({8 if t < 3 else 0})")
        for hfi in range(2):
            a = ACC + 16*t + 8*hfi; m = MM + 32*buf + 8*hfi; r = RR + 32*buf + 8*hfi
            for i in range(8): k(f"v_fma_f32 v{T0+i}, -v{m+i}, v{vCs}, v{a+i}")
            for i in range(8): k(f"v_fma_f32 v{T0+i}, v{T0+i}, v{r+i}, v{vC1}")
            for i in range(8): k(f"v_fma_f32 v{T1+i}, v{T0+i}, v{vL}, v{vCC}")
            for i in range(8): k(f"v_exp_f32 v{T1+i}, v{T1+i} clamp")
            for i in range(8): k(f"v_max_f32 v{T0+i}, v{T0+i}, v{vC2}")
            for i in range(8): k(f"v_fma_f32 v{T0+i}, v{T1+i}, v{vC3}, v{T0+i}")
            pa = [116, 208][hfi]; pb = [120, 212][hfi]
            for i in range(4): k(f"v_cvt_pk_bf16_f32 v{pa+i}, v{T0+2*i}, v{T0+2*i+1}")
            for i in range(4): k(f"v_cndmask_b32 v{pb+i}, v{pa+i}, v{vOne}, s[68:69]")
            c = "0" if first else v(KV,16)
            k(f"v_mfma_f32_32x32x16_bf16 {v(KV,16)}, {v(pa,4)}, {v(pb,4)}, {c}")
            first = False
    srd(k, SO, P_WS, SZ_KVP, WS_KVP)
    k(f"s_sub_u32 s64, s{sSlot}, 8")
    k(f"s_lshl_b32 s64, s64, 2")
    k(f"s_add_u32 s64, s64, s{sWave}")
    k(f"s_lshl_b32 s64, s64, 4")
    k(f"s_add_u32 s64, s64, s{sTb}")
    k(f"s_lshl_b32 s64, s64, 11")
    k(f"v_lshl_add_u32 v11, v0, 4, s64")
    k(f"buffer_store_dwordx4 {v(KV,4)}, v11, s[{SO}:{SO+3}], 0 offen")
    k(f"buffer_store_dwordx4 {v(KV+4,4)}, v11, s[{SO}:{SO+3}], 0 offen offset:1024")
    k("s_branch K1_FIN")

    k.label("K1_LOADER")
    sLw = 62
    k(f"s_sub_u32 s{sLw}, s{sWave}, 4")
    vXe, vXo, vW = 16, 17, 18
    k("v_lshrrev_b32 v6, 3, v0")
    k("v_and_b32 v7, 7, v0")
    k("v_lshrrev_b32 v8, 4, v0")
    k("v_xor_b32 v7, v7, v8")
    k(f"s_lshl_b32 s63, s{sTb}, 7")
    k(f"s_lshl_b32 s64, s{sLw}, 5")
    k("s_add_u32 s63, s63, s64")
    k("v_add_u32 v6, s63, v6")
    k("v_lshlrev_b32 v6, 10, v6")
    k(f"v_lshl_add_u32 v{vXe}, v7, 4, v6")
    k(f"v_xor_b32 v{vXo}, 64, v{vXe}")
    k("v_and_b32 v9, 15, v0")
    k("v_lshlrev_b32 v10, s58, v8")
    k("v_xor_b32 v9, v9, v10")
    k("v_lshrrev_b32 v10, 3, v9")
    k("v_mul_u32_u24 v10, s59, v10")
    k("v_lshl_add_u32 v9, v9, 4, v10")
    k(f"v_add_u32 v9, s{sColb}, v9")
    k(f"s_lshl_b32 s64, s{sLw}, 4")
    k("v_add_u32 v8, s64, v8")
    k(f"v_mul_lo_u32 v8, v8, s{sPitch}")
    k(f"v_add_u32 v{vW}, v8, v9")
    sXo, sWo, sLd, sP4, sP64, sIs, sT = 64, 65, 66, 67, 68, 69, 70
    k(f"s_mov_b32 s{sXo}, 0")
    k(f"s_mov_b32 s{sWo}, 0")
    k(f"s_mov_b32 s{sIs}, 0")
    k(f"s_lshl_b32 s{sP4}, s{sPitch}, 2")
    k(f"s_lshl_b32 s{sP64}, s{sPitch}, 6")
    k(f"s_lshl_b32 s71, s{sLw}, 12")
    def issue_chunk():
        k(f"s_add_u32 s{sLd}, s{sIs}, s71")
        for i in range(4):
            k(f"s_add_u32 m0, s{sLd}, {i*1024}")
            k(f"s_add_u32 s{sT}, s{sXo}, {i*8192}")
            k(f"buffer_load_dwordx4 v{vXe if i % 2 == 0 else vXo}, s[{SX}:{SX+3}], s{sT} offen lds")
        k(f"s_mov_b32 s{sT}, s{sWo}")
        for i in range(4):
            k(f"s_add_u32 m0, s{sLd}, {16384 + i*1024}")
            if i: k(f"s_add_u32 s{sT}, s{sT}, s{sP4}")
            else: k("s_nop 0")
            k(f"buffer_load_dwordx4 v{vW}, s[{SW}:{SW+3}], s{sT} offen lds")
        k(f"s_add_u32 s{sXo}, s{sXo}, 128")
        k(f"s_add_u32 s{sWo}, s{sWo}, s{sP64}")
        k(f"s_add_u32 s{sIs}, s{sIs}, 0x8000")
        k(f"s_and_b32 s{sIs}, s{sIs}, 0x18000")
    stamp(k, 2)
    k("s_mov_b32 s72, 4")
    k.label("K1_PRE")
    issue_chunk()
    k("s_sub_u32 s72, s72, 1")
    k("s_cmp_lg_u32 s72, 0")
    k("s_cbranch_scc1 K1_PRE")
    stamp(k, 3)
    xb, wb0 = 19, 20
    xa = [21, 22, 23, 24]; wa0 = 25
    k(f"v_bfe_u32 v6, v{vT31}, 1, 3")
    k(f"v_xor_b32 v6, v6, v{vHf}")
    k(f"v_lshlrev_b32 v6, 4, v6")
    k(f"v_lshl_add_u32 v{xb}, v{vT31}, 7, v6")
    k(f"v_add_u32 v{xb}, s71, v{xb}")
    k(f"v_lshl_add_u32 v7, v{vHf}, 3, v{vR}")
    k(f"v_lshlrev_b32 v7, 8, v7")
    k(f"v_and_b32 v8, 1, v{vQ}")
    k(f"v_lshl_add_u32 v7, v8, 3, v7")
    k(f"v_add_u32 v7, 16384, v7")
    k(f"v_lshrrev_b32 v9, 1, v{vQ}")
    k(f"v_xor_b32 v10, s{sLw}, v{vR}")
    k(f"v_lshlrev_b32 v10, 2, v10")
    k(f"v_lshl_add_u32 v10, v{vCh}, 1, v10")
    k(f"v_add_u32 v10, v10, v9")
    k(f"s_lshl_b32 s72, s{sLw}, 1")
    k(f"v_lshl_add_u32 v11, v{vCh}, 3, v9")
    k(f"v_add_u32 v11, s72, v11")
    k(f"v_lshlrev_b32 v8, 1, v{vR}")
    k(f"v_xor_b32 v11, v11, v8")
    k(f"s_cmp_eq_u32 s{sType}, 2")
    k(f"s_cselect_b64 vcc, -1, 0")
    k(f"v_cndmask_b32 v10, v10, v11, vcc")
    k(f"v_lshl_add_u32 v{wb0}, v10, 4, v7")
    vSum, vSq, vCsum, vOne = 26, 27, 28, 29
    k(f"v_mov_b32 v{vSum}, 0")
    k(f"v_mov_b32 v{vSq}, 0")
    k(f"v_mov_b32 v{vCsum}, 0")
    k(f"v_mov_b32 v{vOne}, 0x3f803f80")
    sPz, sCg, sKg, sNks, sU = 73, 74, 75, 76, 77
    k("s_cmp_lt_u32 s2, 112")
    k("s_cbranch_scc1 K1_RP3")
    k("s_cmp_lt_u32 s2, 224")
    k("s_cbranch_scc1 K1_RP4")
    k(f"s_sub_u32 s{sU}, s2, 224")
    srd(k, SRS, P_WO, 512*1024)
    srd(k, SRD_, P_WS, SZ_WOP, WS_WOP)
    k(f"s_mov_b32 s{sNks}, 32")
    k("s_branch K1_RPC")
    k.label("K1_RP4")
    k(f"s_sub_u32 s{sU}, s2, 112")
    srd(k, SRS, P_W4, 1792*1024)
    srd(k, SRD_, P_WS, SZ_W4P, WS_W4P)
    k(f"s_mov_b32 s{sNks}, 112")
    k.label("K1_RPC")
    k(f"s_and_b32 s{sCg}, s{sU}, 7")
    k(f"s_lshr_b32 s{sKg}, s{sU}, 3")
    k(f"s_mov_b32 s{sPz}, 1024")
    k("s_branch K1_RPD")
    k.label("K1_RP3")
    srd(k, SRS, P_W3, 512*3584)
    srd(k, SRD_, P_WS, SZ_W3P, WS_W3P)
    k(f"s_mov_b32 s{sNks}, 32")
    k(f"s_lshr_b32 s{sCg}, s2, 2")
    k(f"s_and_b32 s{sKg}, s2, 3")
    k(f"s_mov_b32 s{sPz}, 3584")
    k.label("K1_RPD")
    vRS = 30
    k(f"s_lshl_b32 s72, s{sKg}, 7")
    k(f"s_lshl_b32 s78, s{sLw}, 5")
    k("s_add_u32 s72, s72, s78")
    k("v_lshrrev_b32 v6, 3, v0")
    k("v_add_u32 v6, s72, v6")
    k(f"v_mul_lo_u32 v6, v6, s{sPz}")
    k("v_and_b32 v7, 7, v0")
    k("v_lshl_add_u32 v6, v7, 4, v6")
    k(f"s_lshl_b32 s72, s{sCg}, 7")
    k(f"v_add_u32 v{vRS}, s72, v6")
    k(f"s_lshl_b32 s{sPz}, s{sPz}, 3")
    sC, sCons = 78, 79
    k(f"s_mov_b32 s{sC}, 0")
    k(f"s_mov_b32 s{sCons}, 0")
    k.label("K1_LD_LOOP")
    k(f"s_cmp_ge_u32 s{sC}, 6")
    k("s_cbranch_scc1 K1_LD_W2")
    k("s_waitcnt vmcnt(16)")
    k("s_branch K1_LD_WD")
    k.label("K1_LD_W2")
    k(f"s_cmp_eq_u32 s{sC}, 6")
    k("s_cbranch_scc1 K1_LD_W3")
    k("s_waitcnt vmcnt(4)")
    k("s_branch K1_LD_WD")
    k.label("K1_LD_W3")
    k("s_waitcnt vmcnt(12)")
    k.label("K1_LD_WD")
    k("s_barrier")
    k(f"s_sub_u32 s72, s{sC}, 1")
    k("s_cmp_lt_u32 s72, 4")
    k("s_cbranch_scc0 K1_LD_NI")
    issue_chunk()
    k("s_branch K1_LD_ST")
    k.label("K1_LD_NI")
    k(f"s_cmp_eq_u32 s{sC}, 5")
    k("s_cbranch_scc0 K1_LD_ST")
    k(f"s_add_u32 s{sLd}, s71, {T_RP}")
    k(f"s_mov_b32 s{sT}, 0")
    for i in range(4):
        k(f"s_add_u32 m0, s{sLd}, {i*1024}")
        if i: k(f"s_add_u32 s{sT}, s{sT}, s{sPz}")
        else: k("s_nop 0")
        k(f"buffer_load_dwordx4 v{vRS}, s[{SRS}:{SRS+3}], s{sT} offen lds")
    k.label("K1_LD_ST")
    k(f"v_add_u32 v{xa[0]}, s{sCons}, v{xb}")
    k(f"v_add_u32 v{wa0}, s{sCons}, v{wb0}")
    for j in range(1, 4): k(f"v_xor_b32 v{xa[j]}, {32*j}, v{xa[0]}")
    XD, WD = 32, 48
    for ks in range(4): k(f"ds_read_b128 {v(XD+4*ks,4)}, v{xa[ks]}")
    for ks in range(4):
        k(f"ds_read_b64_tr_b16 {v(WD+4*ks,2)}, v{wa0} offset:{16*ks*256}")
        k(f"ds_read_b64_tr_b16 {v(WD+4*ks+2,2)}, v{wa0} offset:{(16*ks+4)*256}")
    k(f"s_add_u32 s{sCons}, s{sCons}, 0x8000")
    k(f"s_and_b32 s{sCons}, s{sCons}, 0x18000")
    k("s_waitcnt lgkmcnt(8)")
    for i in range(16):
        k(f"v_dot2_f32_bf16 v{vSum}, v{XD+i}, v{vOne}, v{vSum}")
        k(f"v_dot2_f32_bf16 v{vSq}, v{XD+i}, v{XD+i}, v{vSq}")
    k("s_waitcnt lgkmcnt(0)")
    for i in range(16):
        k(f"v_dot2_f32_bf16 v{vCsum}, v{WD+i}, v{vOne}, v{vCsum}")
    k(f"s_add_u32 s{sC}, s{sC}, 1")
    k(f"s_cmp_lt_u32 s{sC}, 8")
    k("s_cbranch_scc1 K1_LD_LOOP")
    stamp(k, 6)
    def xhalf(r, tmp):
        k(f"v_mov_b32 v{tmp}, v{r}")
        k(f"v_permlane32_swap_b32 v{r}, v{tmp}")
        k(f"v_add_f32 v{r}, v{r}, v{tmp}")
    xhalf(vSum, 6); xhalf(vSq, 7); xhalf(vCsum, 8)
    k(f"v_mul_f32 v{vSum}, {hx(1.0/512)}, v{vSum}")
    k(f"v_mul_f32 v{vSq}, {hx(1.0/512)}, v{vSq}")
    k(f"v_fma_f32 v{vSq}, -v{vSum}, v{vSum}, v{vSq}")
    k(f"v_max_f32 v{vSq}, 0, v{vSq}")
    k(f"v_add_f32 v6, {hx(EPS_LN)}, v{vSq}")
    k(f"v_rsq_f32 v7, v6")
    k(f"v_mul_f32 v8, v7, v7")
    k(f"v_mul_f32 v8, v8, v{vSq}")
    k(f"v_add_f32 v8, {hx(EPS_LN)}, v8")
    k(f"v_rsq_f32 v8, v8")
    k(f"v_mul_f32 v8, v8, v7")
    k(f"s_lshl_b32 s72, s{sLw}, 7")
    k(f"v_lshl_add_u32 v9, v{vT31}, 2, s72")
    k(f"v_add_u32 v9, {T_M}, v9")
    k(f"ds_write_b32 v9, v{vSum}")
    k(f"ds_write_b32 v9, v7 offset:512")
    k(f"ds_write_b32 v9, v8 offset:1024")
    k(f"ds_write_b32 v9, v{vCsum} offset:1536")
    k("s_waitcnt lgkmcnt(0)")
    k("s_barrier")
    k(f"s_cmp_lg_u32 s{sSlot}, 0")
    k("s_cbranch_scc1 K1_NOST")
    srd(k, SST, P_WS, SZ_ST, WS_ST)
    k(f"s_lshl_b32 s72, s{sTb}, 7")
    k(f"s_lshl_b32 s80, s{sLw}, 5")
    k("s_add_u32 s72, s72, s80")
    k(f"v_add_u32 v9, s72, v{vT31}")
    k("v_lshlrev_b32 v9, 3, v9")
    k(f"v_mov_b32 v6, v{vSum}")
    k(f"buffer_store_dwordx2 v[6:7], v9, s[{SST}:{SST+3}], 0 offen")
    k.label("K1_NOST")
    k(f"v_lshl_add_u32 v10, v{vHf}, 2, v{vR}")
    k("v_lshlrev_b32 v10, 7, v10")
    k(f"v_lshl_add_u32 v10, v{vCh}, 5, v10")
    k(f"v_lshl_add_u32 v10, v{vQ}, 3, v10")
    k(f"s_add_u32 s72, s71, {T_RP}")
    k("v_add_u32 v10, s72, v10")
    k("s_waitcnt vmcnt(0)")
    for ks in range(2):
        for n in range(2):
            d = 32 + 4*(2*ks+n)
            k(f"ds_read_b64_tr_b16 {v(d,2)}, v10 offset:{16*ks*128 + 64*n}")
            k(f"ds_read_b64_tr_b16 {v(d+2,2)}, v10 offset:{(16*ks+8)*128 + 64*n}")
    k(f"s_lshl_b32 s72, s{sCg}, 1")
    k(f"s_mul_i32 s72, s72, s{sNks}")
    k(f"s_lshl_b32 s80, s{sKg}, 3")
    k("s_add_u32 s72, s72, s80")
    k(f"s_lshl_b32 s80, s{sLw}, 1")
    k("s_add_u32 s72, s72, s80")
    k("s_lshl_b32 s72, s72, 10")
    k("v_lshl_add_u32 v11, v0, 4, s72")
    k(f"s_lshl_b32 s80, s{sNks}, 10")
    k("s_waitcnt lgkmcnt(0)")
    for ks in range(2):
        for n in range(2):
            d = 32 + 4*(2*ks+n)
            so = "s80" if n else "0"
            k(f"buffer_store_dwordx4 {v(d,4)}, v11, s[{SRD_}:{SRD_+3}], {so} offen offset:{ks*1024}")
    k("s_cmp_lt_u32 s2, 112")
    k("s_cbranch_scc0 K1_FIN")
    k("v_mov_b32 v12, 0")
    k("v_mov_b32 v13, 0")
    for ks in range(2):
        for i in range(4):
            k(f"v_dot2_f32_bf16 v12, v{32 + 4*(2*ks) + i}, v{vOne}, v12")
            k(f"v_dot2_f32_bf16 v13, v{32 + 4*(2*ks+1) + i}, v{vOne}, v13")
    srd(k, SST, P_WS, SZ_CS3, WS_CS3)
    k(f"s_lshl_b32 s72, s{sCg}, 12")
    k(f"s_lshl_b32 s80, s{sKg}, 4")
    k("s_add_u32 s72, s72, s80")
    k(f"s_lshl_b32 s80, s{sLw}, 2")
    k("s_add_u32 s72, s72, s80")
    k("v_lshl_add_u32 v14, v0, 6, s72")
    k("v_permlane32_swap_b32 v12, v13")
    k("v_add_f32 v12, v12, v13")
    k(f"buffer_store_dword v12, v14, s[{SST}:{SST+3}], 0 offen")
    k.label("K1_FIN")
    stamp(k, 4)
    k("s_waitcnt vmcnt(0)")
    stamp(k, 5)
    stamp_flush(k, 0, sWave)
    k.label("K1_END")
    k("s_endpgm")
    return k, LDS

def emit_gelu8(k, a, c, vM, vAr, vBr, vRi, T0, T1, pk, n=8):
    for i in range(n): k(f"v_fma_f32 v{T0+i}, -v{vM}, v{c+i}, v{a+i}")
    for i in range(n): k(f"v_mul_f32 v{T1+i}, v{T0+i}, v{T0+i}")
    for i in range(n): k(f"v_fma_f32 v{T1+i}, v{T1+i}, v{vBr}, v{vAr}")
    for i in range(n): k(f"v_mul_f32 v{T1+i}, v{T1+i}, v{T0+i}")
    for i in range(n): k(f"v_exp_f32 v{T1+i}, v{T1+i}")
    for i in range(n): k(f"v_fma_f32 v{T1+i}, v{T1+i}, v{vRi}, v{vRi}")
    for i in range(n): k(f"v_rcp_f32 v{T1+i}, v{T1+i}")
    for i in range(n): k(f"v_mul_f32 v{T0+i}, v{T0+i}, v{T1+i}")
    for i in range(n//2): k(f"v_cvt_pk_bf16_f32 v{pk+i}, v{T0+2*i}, v{T0+2*i+1}")
```

```python
import sys, os, copy
sys.path.insert(0, "gen")
from common import *

KN = NAME + "_kernel"
SLOT = 32768
ACCX, XTR, TAB = 131072, 147456, 155648
TAB_ST, TAB_CS = TAB, TAB + 1024
LDS = 163840
W_H, W_X1, W_O, W_H3, W_KVP, W_KVF, W_ST, W_CS, W_FL, W_STAMP = [x*MB for x in (2, 4, 6, 10, 18, 20, 21, 22, 23, 32)]
WS_SIZE = 40*MB
F1, F2, F3, FO, FKV, FKF, CSF = [W_FL + x for x in (128, 8192, 12288, 28672, 32768, 36864, 40960)]
OOB = 0x7f000000
STOP = OPT("STOP", "")
STAMP = OPT("STAMP", 0)
STFROM = OPT("STFROM", "")
SPIN = 1 << 16

sWave, sM, sN, sNon, sTT, sCH = 26, 27, 28, 29, 30, 31
sG, sIdx = 84, 85
SX, SQKV, SW1, SW2, SW3, SW4, SWO, SWS, SOUT, SDBG = 32, 36, 40, 44, 48, 52, 56, 60, 64, 68
sT0, sT1, sT2, sT3, sT4, sT5, sSpin = 72, 73, 74, 75, 76, 77, 78
sMk = 80
def S(n, c=4): return f"s[{n}:{n+c-1}]"

NAMES = {}
class Prog:
    def __init__(self, k, name):
        self.k = k; self.name = name
        self.dq = []; self.vq = []; self.bars = []
        self.dead = False; self.nst = 0; self.names = []; self.sv = 5 if name[0] == 'A' else 255; self.st_on = False
    def fork(self, name):
        p = Prog(self.k, name)
        p.dq = list(self.dq); p.vq = list(self.vq); p.bars = []; p.dead = self.dead; p.nst = self.nst; p.names = list(self.names); p.st_on = self.st_on
        return p
    def raw(self, t):
        if not self.dead: self.k(t)
    def label(self, l):
        if not self.dead: self.k.label(l)
    def ds(self, t, tag=None):
        if self.dead: return
        if len(self.dq) >= 15: self._wds(len(self.dq) - 15)
        self.k(t); self.dq.append(tag)
    def _wds(self, i):
        n = len(self.dq) - 1 - i
        self.k(f"s_waitcnt lgkmcnt({n})"); self.dq = self.dq[i+1:]
    def wds(self, *tags):
        if self.dead: return
        idx = [i for i, t in enumerate(self.dq) if t in tags]
        if idx: self._wds(max(idx))
    def wds_all(self):
        if self.dead: return
        if self.dq: self._wds(len(self.dq) - 1)
    def vm(self, t, tag=None):
        if self.dead: return
        self.k(t); self.vq.append(tag)
    def wvm(self, *tags):
        if self.dead: return
        idx = [i for i, t in enumerate(self.vq) if t in tags]
        if not idx: return
        i = max(idx); n = len(self.vq) - 1 - i
        self.k(f"s_waitcnt vmcnt({min(n, 63)})")
        if n <= 63: self.vq = self.vq[i+1:]
        else: self.vq = self.vq[len(self.vq)-63:]
    def wvm_all(self):
        if self.dead: return
        self.k("s_waitcnt vmcnt(0)"); self.vq = []
    def bar(self, name):
        if self.dead: return
        if name == STOP:
            self.finish(); return
        if STAMP == 2: self.stamp("@" + name)
        self.k(f"s_barrier ; {name}"); self.bars.append(name)
    def stamp(self, name=None):
        if self.dead or not STAMP: return
        if STAMP == 2 and not (name or "").startswith("@"): return
        if STFROM and not self.st_on:
            if name == STFROM: self.st_on = True
            else: return
        i = self.nst; self.nst += 1
        assert i < 60, "too many stamps"
        self.names.append(name or f"s{i}")
        if self.name[0] == "B" or OPT("STEX", 0):
            if i == 0: self.k(f"v_writelane_b32 v{self.sv}, s82, 0")
            self.k("s_memtime s[82:83]")
            self.k("s_waitcnt lgkmcnt(0)")
            self.k(f"v_writelane_b32 v{self.sv}, s82, {i+1}")
            self.dq = []
        else:
            self.k(f"v_writelane_b32 v{self.sv}, s82, {i}")
            self.k("s_memtime s[82:83]")
    def finish(self):
        if self.dead: return
        self.k("s_waitcnt vmcnt(0) lgkmcnt(0)")
        self.flush_stamps()
        self.k("s_branch P_END")
        self.dead = True
    def flush_stamps(self):
        if not STAMP: return
        k = self.k; i = self.nst
        NAMES[self.name] = list(self.names) + ["end"]
        k("s_waitcnt lgkmcnt(0)")
        k(f"v_writelane_b32 v{self.sv}, s82, {i}")
        k("s_memtime s[82:83]")
        k("s_waitcnt lgkmcnt(0)")
        k(f"v_writelane_b32 v{self.sv}, s82, {i+1}")
        k("s_memrealtime s[82:83]")
        k("s_waitcnt lgkmcnt(0)")
        k(f"v_writelane_b32 v{self.sv}, s82, 62")
        k(f"v_writelane_b32 v{self.sv}, s79, 63")
        k("s_lshl_b32 s72, s2, 11")
        k(f"s_lshl_b32 s73, s{sWave}, 8")
        k("s_add_u32 s72, s72, s73")
        k(f"s_add_u32 s72, s72, {hex(W_STAMP)}")
        k("v_lshlrev_b32 v1, 2, v0")
        k(f"buffer_store_dword v{self.sv}, v1, {S(SWS)}, s72 offen")
        k("s_waitcnt vmcnt(0)")
    def emit(self, op):
        if isinstance(op, str): self.raw(op); return
        kind = op[0]
        if kind == "ds": self.ds(op[1], op[2] if len(op) > 2 else None)
        elif kind == "vm": self.vm(op[1], op[2] if len(op) > 2 else None)
        elif kind == "wds": self.wds(*op[1:])
        elif kind == "wvm": self.wvm(*op[1:])
        elif kind == "bar": self.bar(op[1])
        elif kind == "stamp": self.stamp(op[1] if len(op) > 1 else None)
        elif kind == "call": op[1]()
        elif kind == "grp":
            for o in op[1]: self.emit(o)
        else: raise ValueError(op)
    def run(self, ops):
        for o in ops: self.emit(o)
    def poll(self, vdst, voff, soff, mlo, mhi, width=1):
        if self.dead: return
        k = self.k
        L = k.newlabel("PL"); D = k.newlabel("PD")
        if mlo is not None:
            k(f"s_mov_b32 s{sMk}, {hex(mlo)}"); k(f"s_mov_b32 s{sMk+1}, {hex(mhi)}")
        k.label(L)
        sfx = {1: "dword", 2: "dwordx2"}[width]
        k(f"buffer_load_{sfx} {v(vdst, width)}, v{voff}, {S(SWS)}, {soff} offen sc1")
        k("s_waitcnt vmcnt(0)")
        k(f"v_cmp_ne_u32 vcc, s{sNon}, v{vdst}")
        if width == 2:
            k(f"v_cmp_ne_u32 s[{sT4}:{sT5}], s{sNon}, v{vdst+1}")
            k(f"s_or_b64 vcc, vcc, s[{sT4}:{sT5}]")
        k(f"s_and_b64 vcc, vcc, {S(sMk,2)}")
        k(f"s_cbranch_scc0 {D}")
        k(f"s_sub_u32 s{sSpin}, s{sSpin}, 1")
        k(f"s_cmp_gt_i32 s{sSpin}, 0")
        k(f"s_cbranch_scc1 {L}")
        k.label(D)
        self.vq = []

def interleave(main, extra, start=0, end=None):
    main = list(main)
    if not extra: return main
    end = len(main) if end is None else min(end, len(main))
    n = max(end - start, 1)
    out = main[:start]
    step = n / len(extra); j = 0
    for i, o in enumerate(main[start:end]):
        while j < len(extra) and j*step <= i:
            out.append(extra[j]); j += 1
        out.append(o)
    out += extra[j:]
    out += main[end:]
    return out

def stream(P, steps, la, GL, pre=None, side=None, side_rate=2):
    pre = pre or {}
    side = list(side or [])
    n = len(steps); nxt = 0; lastw = None
    s = -la(0)
    while s < n:
        for o in pre.get(s, []): P.emit(o)
        cnt = 0
        while nxt < n and nxt <= s + la(s) and cnt < 4:
            st = steps[nxt]
            if st.get("gate"):
                if nxt > 0 and s < nxt - GL: break
                if lastw is not None: P.wds(lastw)
                for o in st.get("gpre", []): P.emit(o)
                P.bar(st["gate"])
            for t, tag in st["reads"]:
                P.ds(t, tag); lastw = tag
            nxt += 1; cnt += 1
        c = 0
        while side and c < side_rate and side[0][0] <= s and nxt > 0:
            _, t, tag = side.pop(0); P.ds(t, tag); c += 1
        if s >= 0:
            P.wds(*steps[s]["need"])
            P.raw(steps[s]["mfma"])
            for o in steps[s].get("post", []): P.emit(o)
        s += 1
    assert not side

def mf(d, a, b, c):
    return f"v_mfma_f32_32x32x16_bf16 {v(d,16)}, {v(a,4)}, {v(b,4)}, " + ("0" if c is None else v(c,16))

def F0(g): return 256*(g % 7) + 64*(g // 7)

def gen():
    k = Kern()
    vT31, vHf = 1, 2
    k("s_cmp_ge_u32 s2, 256")
    k("s_cbranch_scc1 P_END")
    k("s_load_dwordx16 s[4:19], s[0:1], 0")
    k("s_load_dwordx4 s[20:23], s[0:1], 64")
    k("s_load_dwordx2 s[24:25], s[0:1], 80")
    if STAMP:
        k("s_memrealtime s[80:81]")
        k("s_memtime s[82:83]")
    k("v_lshrrev_b32 v1, 6, v0")
    k("v_and_b32 v0, 63, v0")
    k("v_mov_b32 v3, 0")
    k(f"v_readfirstlane_b32 s{sWave}, v1")
    k("s_and_b32 s72, s2, 7")
    k("s_lshr_b32 s73, s2, 3")
    k("s_lshr_b32 s74, s72, 1")
    k("s_lshl_b32 s74, s74, 3")
    k("s_lshr_b32 s75, s73, 2")
    k(f"s_add_u32 s{sM}, s74, s75")
    k("s_and_b32 s74, s72, 1")
    k("s_lshl_b32 s74, s74, 2")
    if OPT("NROT", 0): k(f"s_add_u32 s73, s73, {OPT('NROT', 0)}")
    k("s_and_b32 s75, s73, 3")
    k(f"s_add_u32 s{sN}, s74, s75")
    k(f"s_and_b32 s{sTT}, s{sWave}, 1")
    k(f"s_bfe_u32 s{sCH}, s{sWave}, 0x10001")
    k(f"s_mov_b32 s{sSpin}, {SPIN}")
    k(f"v_and_b32 v{vT31}, 31, v0")
    k(f"v_lshrrev_b32 v{vHf}, 5, v0")
    k(f"s_and_b32 s{sG}, s2, 7")
    k(f"s_lshr_b32 s{sIdx}, s2, 3")
    k(f"s_cmp_ge_u32 s{sWave}, 4")
    k("s_cbranch_scc1 B_PRE")
    vXg, vXW, vNc = 60, 61, 63
    X = 64
    k("v_lshrrev_b32 v6, 3, v0")
    k("v_and_b32 v7, 7, v0")
    k(f"s_lshl_b32 s72, s{sWave}, 4")
    k("v_add_u32 v6, s72, v6")
    k("v_bfe_u32 v8, v6, 1, 3")
    k("v_xor_b32 v8, v7, v8")
    k("v_lshlrev_b32 v8, 4, v8")
    k(f"v_lshl_add_u32 v{vXW}, v6, 7, v8")
    k(f"s_lshl_b32 s72, s{sM}, 6")
    k("v_add_u32 v6, s72, v6")
    k("v_lshlrev_b32 v6, 10, v6")
    k(f"v_lshl_add_u32 v{vXg}, v7, 4, v6")
    k("s_movk_i32 s72, 0x2000")
    k("s_waitcnt lgkmcnt(0)")
    if STAMP: k("s_mov_b32 s79, s80")
    srd(k, SDBG, P_DBG, 256)
    k(f"s_or_b32 s73, s2, s{sWave}")
    k("s_cmp_lg_u32 s73, 0")
    k("s_cbranch_scc1 P_NON")
    k("s_memrealtime s[74:75]")
    k("v_mov_b32 v6, 0")
    k("s_waitcnt lgkmcnt(0)")
    k("s_or_b32 s74, s74, 1")
    k("v_mov_b32 v7, s74")
    k("s_mov_b64 exec, 1")
    k(f"buffer_store_dword v7, v6, {S(SDBG)}, 0 offen sc1")
    k("s_mov_b64 exec, -1")
    k.label("P_NON")
    srd(k, SX, P_X, 2*MB)
    for j in range(2):
        for i in range(8):
            k(f"buffer_load_dwordx4 {v(X+32*j+4*i,4)}, v{vXg}, {S(SX)}, {'s72' if j else '0'} offen offset:{128*i}")
    k("v_mov_b32 v59, 0")
    k(f"buffer_load_dword v{vNc}, v59, {S(SDBG)}, 0 offen sc1")
    srd(k, SWS, P_WS, WS_SIZE)
    srd(k, SOUT, P_OUT, 2*MB)

    A = Prog(k, "A"); B = Prog(k, "B")
    vWn, vWf, vHa = (6, 7), (8, 9), (10, 11)
    xa = [12, 13, 14, 15]
    vX1a, vAX, vXR, vNonA, vFl0A, vLinA = 16, 17, 18, 19, 20, 21
    X1P, ONE = 22, 30
    vP4A = 3
    ACA, ACB, HF, WF, ACT = 32, 48, 64, 96, 128
    k("v_bfe_u32 v3, v0, 2, 2")
    k("v_and_b32 v4, 3, v0")
    k("v_bfe_u32 v5, v0, 4, 1")
    k(f"s_lshl_b32 s72, s{sCH}, 2")
    k("v_lshrrev_b32 v30, 1, v4")
    k("v_lshl_add_u32 v30, v5, 1, v30")
    k("v_add_u32 v30, s72, v30")
    k("v_lshrrev_b32 v31, 1, v3")
    k("v_lshlrev_b32 v31, 2, v31")
    k("v_xor_b32 v30, v30, v31")
    k("v_lshlrev_b32 v30, 4, v30")
    k("v_and_b32 v31, 1, v4")
    k("v_lshl_add_u32 v30, v31, 3, v30")
    k(f"v_lshl_add_u32 v31, v{vHf}, 3, v3")
    k(f"v_lshl_add_u32 v{vWn[0]}, v31, 7, v30")
    k(f"v_add_u32 v{vWn[1]}, 0x10000, v{vWn[0]}")
    k(f"v_lshl_add_u32 v31, v{vHf}, 2, v3")
    k(f"v_lshl_add_u32 v{vWf[0]}, v31, 7, v30")
    k(f"v_add_u32 v{vWf[1]}, 0x10000, v{vWf[0]}")
    k(f"v_lshlrev_b32 v{vLinA}, 4, v0")
    k(f"s_lshl_b32 s72, s{sTT}, 12")
    k("s_add_u32 s72, s72, 8192")
    k(f"v_add_u32 v{vHa[0]}, s72, v{vLinA}")
    k(f"v_add_u32 v{vHa[1]}, 0x10000, v{vHa[0]}")
    k(f"v_bfe_u32 v30, v{vT31}, 1, 3")
    k(f"v_xor_b32 v30, v30, v{vHf}")
    k("v_lshlrev_b32 v30, 4, v30")
    k(f"v_lshl_add_u32 v{xa[0]}, v{vT31}, 7, v30")
    k(f"s_lshl_b32 s72, s{sTT}, 12")
    k(f"v_add_u32 v{xa[0]}, s72, v{xa[0]}")
    for j in range(1, 4): k(f"v_xor_b32 v{xa[j]}, {32*j}, v{xa[0]}")
    k(f"s_lshl_b32 s72, s{sTT}, 14")
    k("s_add_u32 s72, s72, 0x10000")
    k(f"v_add_u32 v{vX1a}, s72, v{vLinA}")
    k(f"s_lshl_b32 s72, s{sWave}, 12")
    k(f"s_add_u32 s72, s72, {ACCX}")
    k(f"v_add_u32 v{vAX}, s72, v{vLinA}")
    k(f"s_lshl_b32 s72, s{sTT}, 5")
    k(f"v_add_u32 v30, s72, v{vT31}")
    k("v_bfe_u32 v31, v30, 1, 3")
    k(f"s_lshl_b32 s72, s{sCH}, 2")
    k("v_xor_b32 v31, s72, v31")
    k("v_lshlrev_b32 v31, 4, v31")
    k("v_lshl_add_u32 v31, v30, 7, v31")
    k(f"v_lshl_add_u32 v31, v{vHf}, 3, v31")
    k(f"v_add_u32 v{vXR}, {XTR}, v31")
    k(f"v_mov_b32 v{vFl0A}, {hex(OOB)}")
    k("v_mov_b32 v30, 0")
    k("v_cmp_eq_u32 vcc, 0, v0")
    k(f"v_cndmask_b32 v{vFl0A}, v{vFl0A}, v30, vcc")
    k(f"v_lshlrev_b32 v{vP4A}, 2, v0")
    k(f"v_mov_b32 v{ONE}, 0x3f803f80")
    sHead, sFkv, sTileA, sFrag, sFidx = 4, 5, 6, 7, 8
    k(f"s_lshl_b32 s{sHead}, s{sN}, 2")
    k(f"s_lshl_b32 s72, s{sCH}, 1")
    k(f"s_add_u32 s{sHead}, s{sHead}, s72")
    k(f"s_lshl_b32 s{sTileA}, s{sM}, 1")
    k(f"s_add_u32 s{sTileA}, s{sTileA}, s{sTT}")
    k(f"s_lshl_b32 s72, s{sTileA}, 15")
    k(f"s_lshl_b32 s73, s{sHead}, 10")
    k(f"s_add_u32 s{sFrag}, s72, s73")
    k(f"s_lshl_b32 s{sFidx}, s{sM}, 5")
    k(f"s_lshl_b32 s72, s{sN}, 2")
    k(f"s_add_u32 s{sFidx}, s{sFidx}, s72")
    k(f"s_add_u32 s{sFidx}, s{sFidx}, s{sWave}")
    k(f"s_lshl_b32 s{sFidx}, s{sFidx}, 2")
    if STAMP: k("v_mov_b32 v5, 0")
    ones = 128
    k(f"v_mov_b32 v{ones}, 0x3f803f80")
    for j in range(2):
        XJ = X + 32*j
        k(f"s_waitcnt vmcnt({9 if j == 0 else 1})")
        if j == 0: A.stamp("@P0C")
        else: A.stamp("@P0D")
        sm = [130, 131]; sq = [132, 133]
        for r in sm + sq: k(f"v_mov_b32 v{r}, 0")
        for i in range(32):
            k(f"v_dot2_f32_bf16 v{sm[i&1]}, v{XJ+i}, v{ones}, v{sm[i&1]}")
            k(f"v_dot2_f32_bf16 v{sq[i&1]}, v{XJ+i}, v{XJ+i}, v{sq[i&1]}")
        k("v_add_f32 v130, v130, v131")
        k("v_add_f32 v132, v132, v133")
        for dpp in ("quad_perm:[1,0,3,2]", "quad_perm:[2,3,0,1]", "row_half_mirror"):
            k(f"v_add_f32_dpp v130, v130, v130 {dpp} row_mask:0xf bank_mask:0xf")
            k(f"v_add_f32_dpp v132, v132, v132 {dpp} row_mask:0xf bank_mask:0xf")
        k(f"v_mul_f32 v130, {hx(1.0/512)}, v130")
        k(f"v_mul_f32 v132, {hx(1.0/512)}, v132")
        k("v_fma_f32 v132, -v130, v130, v132")
        k("v_max_f32 v132, 0, v132")
        k(f"v_add_f32 v133, {hx(EPS_LN)}, v132")
        k("v_rsq_f32 v137, v133")
        k("v_mov_b32 v139, 0")
        k("v_mul_f32 v136, v130, v137")
        k("v_sub_f32 v136, 0, v136")
        k("v_mul_f32 v138, v137, v137")
        k("v_mul_f32 v138, v138, v132")
        k(f"v_add_f32 v138, {hx(EPS_LN)}, v138")
        k("v_rsq_f32 v138, v138")
        if j == 0:
            k(f"v_lshrrev_b32 v134, 7, v{vXW}")
            k("v_lshlrev_b32 v134, 4, v134")
            k(f"v_add_u32 v134, {TAB_ST}, v134")
        else:
            k(f"v_add_u32 v{vXW}, 1024, v{vXW}")
            k(f"v_xor_b32 v{vXW}, 64, v{vXW}")
        T = 144
        for i in range(8):
            t = T + 8*(i & 1)
            for jj in range(4):
                k(f"v_lshlrev_b32 v{t+2*jj}, 16, v{XJ+4*i+jj}")
                k(f"v_and_b32 v{t+2*jj+1}, 0xffff0000, v{XJ+4*i+jj}")
            if OPT("P0PK", 1):
                for jj in range(4): k(f"v_pk_fma_f32 v[{t+2*jj}:{t+2*jj+1}], v[{t+2*jj}:{t+2*jj+1}], v[136:137], v[136:137] op_sel:[0,1,0] op_sel_hi:[1,1,0]")
            else:
                for jj in range(8): k(f"v_fma_f32 v{t+jj}, v{t+jj}, v137, v136")
            for jj in range(4): k(f"v_cvt_pk_bf16_f32 v{XJ+4*i+jj}, v{t+2*jj}, v{t+2*jj+1}")
            k(f"ds_write_b128 v{vXW}, {v(XJ+4*i,4)} offset:{8192*i}")
            if i == 0: k(f"ds_write_b128 v134, v[136:139] offset:{128*j}")
    k("s_branch A_MAIN")

    k.label("B_PRE")
    sWb, sRowQ, sRow1, sRow3, sCb, sRowC, sW4a, sW4b, sH3a, sH3b, sOb, sX1b, sHst, sH3st, sBw, sTile = range(4, 20)
    sCsP, sCsOOB, sCsG, sFidxB, sHsrc, sSt = 20, 21, 22, 23, 24, 25
    Wl3072, Wl1024, Wl3584 = [4, 5, 6, 7], [8, 9, 10, 11], [12, 13, 14, 15]
    vLin, vAXb, vHs, vNon, vFl0, vP4 = 16, 17, 18, 19, 20, 21
    k(f"s_sub_u32 s77, s{sWave}, 4")
    if STAMP: k("v_mov_b32 v255, 0")
    def pf_addr(vd, params):
        def sel(d, idx):
            vals = [p[idx] for p in params]
            if len(set(vals)) == 1: k(f"s_mov_b32 s{d}, {vals[0]}"); return
            k(f"s_mov_b32 s{d}, {vals[0]}")
            for w in range(1, 4):
                if vals[w] != vals[w-1] or True:
                    k(f"s_cmp_eq_u32 s77, {w}")
                    k(f"s_cselect_b32 s{d}, {vals[w]}, s{d}")
        sR, sSh, sPi, sS, sCo, sNL = 86, 87, 88, 89, 90, 91
        for d, i in ((sR, 0), (sSh, 1), (sPi, 2), (sS, 3), (sCo, 4), (sNL, 5)): sel(d, i)
        k(f"s_lshr_b32 s92, s{sG}, 1")
        k("s_lshl_b32 s92, s92, 5")
        k(f"s_add_u32 s92, s92, s{sIdx}")
        k(f"s_mul_i32 s92, s92, s{sR}")
        k(f"s_and_b32 s93, s{sG}, 1")
        k(f"s_mul_i32 s93, s93, s{sS}")
        k("s_lshl_b32 s93, s93, 7")
        k(f"s_add_u32 s93, s93, s{sCo}")
        k(f"v_lshrrev_b32 v{vd}, s{sSh}, v0")
        k(f"v_add_u32 v{vd}, s92, v{vd}")
        k(f"v_mul_lo_u32 v{vd}, v{vd}, s{sPi}")
        k(f"s_lshl_b32 s94, 1, s{sSh}")
        k("s_sub_u32 s94, s94, 1")
        k(f"v_and_b32 v31, s94, v0")
        k(f"v_lshl_add_u32 v{vd}, v31, 7, v{vd}")
        k(f"v_add_u32 v{vd}, s93, v{vd}")
        k(f"v_mov_b32 v31, {hex(OOB)}")
        k(f"v_cmp_gt_u32 vcc, s{sNL}, v0")
        k(f"v_cndmask_b32 v{vd}, v31, v{vd}, vcc")
    def pf_srd(d, ptrs, sizes):
        for c in range(2):
            k(f"s_mov_b32 s{d+c}, s{ptrs[0]+c}")
            for w in range(1, 4):
                if ptrs[w] != ptrs[w-1] or len(set(ptrs[:w+1])) > 1:
                    k(f"s_cmp_eq_u32 s77, {w}")
                    k(f"s_cselect_b32 s{d+c}, s{ptrs[w]+c}, s{d+c}")
        k(f"s_mov_b32 s{d+2}, {hex(sizes[0])}")
        for w in range(1, 4):
            k(f"s_cmp_eq_u32 s77, {w}")
            k(f"s_cselect_b32 s{d+2}, {hex(sizes[w])}, s{d+2}")
        k(f"s_mov_b32 s{d+3}, 0x00020000")
    PFON = OPT("PF", 1)
    vPF1, vPF2, vPFD = 30, 29, 254
    SPF1, SPF2 = 96, 68
    if PFON:
        pf_addr(vPF1, [(4, 2, 1024, 4, 0, 16), (4, 2, 3072, 4, 1024, 16), (4, 2, 3072, 4, 2048, 16), (4, 2, 3072, 4, 0, 16)])
    k("s_waitcnt lgkmcnt(0)")
    if STAMP: k("s_mov_b32 s79, s80")
    if PFON:
        pf_srd(SPF1, [P_W1, P_WQKV, P_WQKV, P_WQKV], [512*1024, 512*3072, 512*3072, 512*3072])
        k(f"buffer_load_dword v{vPFD}, v{vPF1}, {S(SPF1)}, 0 offen")
        B.stamp("@pf1i")
        pf_addr(vPF2, [(4, 4, 3584, 16, 0, 64), (14, 2, 1024, 4, 0, 56), (4, 2, 1024, 4, 0, 16), (4, 2, 1024, 4, 0, 16)])
        pf_srd(SPF1, [P_W3, P_W4, P_W2, P_WO], [512*3584, 1792*1024, 512*1024, 512*1024])
    srd(k, SX, P_X, 2*MB)
    srd(k, SWS, P_WS, WS_SIZE)
    srd(k, SW1, P_W1, 512*1024)
    srd(k, SW3, P_W3, 512*3584)
    srd(k, SDBG, P_DBG, 256)
    srd(k, SQKV, P_WQKV, 512*3072)
    srd(k, SW2, P_W2, 512*1024)
    srd(k, SW4, P_W4, 1792*1024)
    srd(k, SWO, P_WO, 512*1024)
    k(f"s_mov_b32 s{sBw}, s77")
    k("v_lshrrev_b32 v22, 3, v0")
    k("v_and_b32 v23, 7, v0")
    k("v_bfe_u32 v24, v0, 4, 1")
    k("v_lshlrev_b32 v24, 2, v24")
    k("v_xor_b32 v23, v23, v24")
    k("v_lshlrev_b32 v23, 4, v23")
    def wl(regs, pitch):
        k(f"v_mul_u32_u24 v{regs[0]}, {pitch}, v22")
        k(f"v_add_u32 v{regs[0]}, v{regs[0]}, v23")
        for j in range(1, 4):
            k(f"v_add_u32 v{regs[j]}, {j*(8*pitch - 1024)}, v{regs[0]}")
    wl(Wl1024, 1024)
    k(f"s_lshl_b32 s{sWb}, s{sBw}, 13")
    k(f"s_lshl_b32 s72, s{sN}, 7")
    k(f"s_lshl_b32 s73, s{sBw}, 16")
    k(f"s_add_u32 s{sRow1}, s73, s72")
    k(f"s_mul_i32 s73, s{sBw}, {64*3072}")
    k(f"s_add_u32 s{sRowQ}, s73, s72")
    def dma4(m0base, m0c, srdn, regs, sbase, const, tag, sc1=False):
        out = []
        for j in range(4):
            g = []
            if j == 0:
                g.append(f"s_add_u32 m0, s{m0base}, {m0c}")
                g.append(f"s_add_u32 s{sT0}, s{sbase}, {hex(const & 0xffffffff)}")
            r = regs[j] if isinstance(regs, list) else regs
            g.append(("vm", f"buffer_load_dwordx4 v{r}, {S(srdn)}, s{sT0} offen offset:{j*1024}" + (" sc1" if sc1 else "") + " lds", tag))
            out.append(("grp", g))
        return out
    def wfill(f, srdn, regs, sRow, const, pitch):
        sl = (f % 4)*SLOT
        return dma4(sWb, sl, srdn, regs, sRow, const, f"f{f}") + dma4(sWb, sl + 4096, srdn, regs, sRow, const + 32*pitch, f"f{f}")
    if PFON and OPT("PFW", 1): k("s_waitcnt vmcnt(0)")
    elif PFON: B.vq = ["pf1"]
    B.stamp("@pf1w")
    B.run(wfill(2, SW1, Wl1024, sRow1, 0, 1024))
    B.stamp("@f2i")
    B.run(wfill(3, SW1, Wl1024, sRow1, 256*1024, 1024))
    B.stamp("@f3i")
    if PFON: B.vm(f"buffer_load_dword v{vPFD}, v{vPF2}, {S(SPF1)}, 0 offen", "pf2")
    k(f"s_lshl_b32 s72, s{sBw}, 4")
    k("v_add_u32 v24, s72, v22")
    k("v_bfe_u32 v25, v24, 1, 3")
    k("v_and_b32 v26, 7, v0")
    k("v_xor_b32 v25, v25, v26")
    k("v_lshlrev_b32 v25, 4, v25")
    k(f"s_lshl_b32 s72, s{sM}, 6")
    k("v_add_u32 v24, s72, v24")
    k("v_lshl_add_u32 v24, v24, 10, v25")
    k(f"s_lshl_b32 s72, s{sN}, 7")
    k("v_add_u32 v24, s72, v24")
    k(f"s_lshl_b32 s72, s{sBw}, 11")
    k(f"s_add_u32 m0, s72, {XTR}")
    B.vm(f"buffer_load_dwordx4 v24, {S(SX)}, 0 offen lds", "xt")
    k("v_add_u32 v24, 8192 - 1024, v24")
    k("v_xor_b32 v24, 64, v24")
    B.vm(f"buffer_load_dwordx4 v24, {S(SX)}, 0 offen offset:1024 lds", "xt")
    vNc = 63
    k("v_mov_b32 v59, 0")
    B.vm(f"buffer_load_dword v{vNc}, v59, {S(SDBG)}, 0 offen sc1", "nc")
    wl(Wl3072, 3072)
    wl(Wl3584, 3584)
    vC3 = 24
    k("v_and_b32 v25, 7, v0")
    k("v_mul_u32_u24 v24, 3584, v22")
    k(f"v_lshl_add_u32 v{vC3}, v25, 4, v24")
    k(f"s_lshr_b32 s72, s{sM}, 2")
    k("s_lshl_b32 s72, s72, 2")
    k(f"s_add_u32 s{sCsP}, s72, s{sBw}")
    k(f"s_mul_i32 s73, s{sCsP}, {32*3584}")
    k(f"s_and_b32 s74, s{sM}, 3")
    k(f"s_lshl_b32 s75, s{sN}, 2")
    k(f"s_add_u32 s{sCsG}, s74, s75")
    k(f"s_lshl_b32 s74, s{sCsG}, 7")
    k("s_add_u32 s73, s73, s74")
    k(f"s_cmp_lt_u32 s{sM}, 16")
    k("s_cselect_b32 s75, 1, 0")
    k(f"s_cmp_lt_u32 s{sN}, 7")
    k("s_cselect_b32 s75, s75, 0")
    k("s_cmp_eq_u32 s75, 1")
    k(f"s_cselect_b32 s{sCsOOB}, 0, {hex(OOB)}")
    k("s_cselect_b32 s73, s73, 0")
    k(f"v_or_b32 v{vC3}, s{sCsOOB}, v{vC3}")
    k(f"s_lshl_b32 s72, s{sBw}, 12")
    k(f"s_add_u32 m0, s72, {ACCX}")
    for j in range(4):
        if j: k(f"v_add_u32 v{vC3}, {8*3584 - 1024}, v{vC3}")
        B.vm(f"buffer_load_dwordx4 v{vC3}, {S(SW3)}, s73 offen offset:{j*1024} lds", "cs3")
    k(f"v_lshlrev_b32 v{vLin}, 4, v0")
    k(f"v_lshlrev_b32 v{vP4}, 2, v0")
    k(f"s_lshl_b32 s72, s{sBw}, 12")
    k(f"s_add_u32 s72, s72, {ACCX}")
    k(f"v_add_u32 v{vAXb}, s72, v{vLin}")
    k(f"v_mov_b32 v{vFl0}, {hex(OOB)}")
    k("v_mov_b32 v24, 0")
    k("v_cmp_eq_u32 vcc, 0, v0")
    k(f"v_cndmask_b32 v{vFl0}, v{vFl0}, v24, vcc")
    k(f"s_lshl_b32 s72, s{sN}, 9")
    k(f"s_mul_i32 s73, s{sBw}, {64*3584}")
    k(f"s_add_u32 s{sRow3}, s73, s72")
    k(f"s_lshl_b32 s72, s{sCH}, 14")
    k(f"s_lshl_b32 s73, s{sTT}, 12")
    k(f"s_add_u32 s{sCb}, s72, s73")
    k(f"s_lshl_b32 s72, s{sN}, 7")
    k(f"s_lshl_b32 s73, s{sBw}, 15")
    k(f"s_add_u32 s{sRowC}, s73, s72")
    k(f"s_lshl_b32 s73, s{sTT}, 15")
    k("s_add_u32 s72, s72, s73")
    k(f"s_lshl_b32 s73, s{sCH}, 18")
    k(f"s_add_u32 s{sW4a}, s72, s73")
    k(f"s_mul_i32 s73, s{sCH}, {-1472*1024}")
    k(f"s_add_u32 s{sW4b}, s72, s73")
    k(f"s_lshl_b32 s{sTile}, s{sM}, 1")
    k(f"s_add_u32 s{sTile}, s{sTile}, s{sTT}")
    k(f"s_mul_i32 s72, s{sTile}, {112*1024}")
    k(f"s_add_u32 s72, s72, {hex(W_H3)}")
    k(f"s_lshl_b32 s73, s{sCH}, 14")
    k(f"s_add_u32 s{sH3a}, s72, s73")
    k(f"s_mul_i32 s73, s{sCH}, {-1472*64}")
    k(f"s_add_u32 s{sH3b}, s72, s73")
    k(f"s_lshl_b32 s73, s{sN}, 14")
    k("s_add_u32 s72, s72, s73")
    k(f"s_lshl_b32 s73, s{sCH}, 11")
    k(f"s_add_u32 s{sH3st}, s72, s73")
    k(f"s_lshl_b32 s72, s{sTile}, 15")
    k(f"s_lshl_b32 s73, s{sCH}, 12")
    k(f"s_add_u32 s{sHsrc}, s73, {hex(W_H)}")
    k("s_add_u32 s73, s73, s72")
    k(f"s_add_u32 s{sOb}, s73, {hex(W_O)}")
    k(f"s_lshl_b32 s73, s{sCH}, 13")
    k("s_add_u32 s73, s73, s72")
    k(f"s_add_u32 s{sX1b}, s73, {hex(W_X1)}")
    k(f"s_lshl_b32 s73, s{sN}, 12")
    k("s_add_u32 s72, s72, s73")
    k(f"s_lshl_b32 s73, s{sCH}, 11")
    k("s_add_u32 s72, s72, s73")
    k(f"s_add_u32 s{sHst}, s72, {hex(W_H)}")
    k(f"s_lshl_b32 s{sFidxB}, s{sM}, 5")
    k(f"s_lshl_b32 s72, s{sN}, 2")
    k(f"s_add_u32 s{sFidxB}, s{sFidxB}, s72")
    k(f"s_add_u32 s{sFidxB}, s{sFidxB}, s{sBw}")
    k(f"s_lshl_b32 s{sFidxB}, s{sFidxB}, 2")
    B.stamp("@P0C")
    k("s_branch B_MAIN")

    def get_nonce(vdst):
        L = k.newlabel("NC"); D = k.newlabel("ND")
        k(f"v_readfirstlane_b32 s{sNon}, v{vNc}")
        k(f"s_cmp_lg_u32 s{sNon}, 0")
        k(f"s_cbranch_scc1 {D}")
        k.label(L)
        k("v_mov_b32 v59, 0")
        k(f"buffer_load_dword v{vNc}, v59, {S(SDBG)}, 0 offen sc1")
        k("s_waitcnt vmcnt(0)")
        k(f"v_readfirstlane_b32 s{sNon}, v{vNc}")
        k(f"s_sub_u32 s{sSpin}, s{sSpin}, 1")
        k(f"s_cmp_le_i32 s{sSpin}, 0")
        k(f"s_cbranch_scc1 {D}")
        k(f"s_cmp_eq_u32 s{sNon}, 0")
        k(f"s_cbranch_scc1 {L}")
        k.label(D)
        k(f"v_mov_b32 v{vdst}, s{sNon}")

    P = A
    k.label("A_MAIN")
    k("s_waitcnt vmcnt(0) lgkmcnt(0)")
    get_nonce(vNonA)
    P.stamp()
    def wread(base, f, ks16, ring, second):
        sl = f % 4
        off = (sl & 1)*SLOT + ks16*2048
        d = WF + 4*(ring % 8)
        return [(f"ds_read_b64_tr_b16 {v(d,2)}, v{base[sl>>1]} offset:{off}", ("w", ring, 0)),
                (f"ds_read_b64_tr_b16 {v(d+2,2)}, v{base[sl>>1]} offset:{off + second}", ("w", ring, 1))]
    def accx_write(src, tag):
        return [("ds", f"ds_write_b128 v{vAX}, {v(src+4*j,4)} offset:{1024*j}", (tag, j)) for j in range(4)]
    steps = []; pre = {}
    for R, (f0, wfirst) in enumerate(((2, True), (4, False), (6, False))):
        for ks in range(32):
            G = 32*R + ks
            f = f0 + (ks >> 4)
            st = dict(reads=wread(vWn, f, ks & 15, G, 512), need=[("w", G, 1)])
            d = ACB if ks == 31 else ACA
            c = None if ks == 0 else ACA
            a_, b_ = (WF + 4*(G % 8), ACT + 4*ks)
            st["mfma"] = mf(d, a_, b_, c) if wfirst else mf(d, b_, a_, c)
            if R == 0: st["need"].append(("act", ks))
            if ks % 16 == 0: st["gate"] = {0: "B1", 16: "b3", 32: "b4", 48: "b5", 64: "b6", 80: "b7"}[G]
            steps.append(st)
    side = [(-3 + ks//2, f"ds_read_b128 {v(ACT+4*ks,4)}, v{xa[ks&3]} offset:{(ks >> 2)*8192}", ("act", ks)) for ks in range(32)]
    pre[7] = [("wds", ("act", 15)), ("bar", "Ba")]
    pre[16] = [("wds", ("act", 31)), ("bar", "Bb")]
    for R in (1, 2):
        w = accx_write(ACB, f"ax{R}")
        for j in range(4): pre.setdefault(32*R + 2 + j, []).append(w[j])
        pre.setdefault(32*R + 7, []).extend([("wds", (f"ax{R}", 3)), ("bar", f"bE{R}")])
    pre.setdefault(32, []).append(("stamp",))
    pre.setdefault(64, []).append(("stamp",))
    stream(P, steps, lambda s: 3 if s < 12 else 6, 3, pre=pre, side=side)
    P.stamp()
    PB_, PA_, B0_, D0, D1 = 64, 72, 80, 96, 112
    for i in range(8): P.raw(f"v_cvt_pk_bf16_f32 v{PB_+i}, v{ACB+2*i}, v{ACB+2*i+1}")
    P.raw(f"s_mov_b32 s{sMk}, 0x0000ffff")
    P.raw(f"s_mov_b32 s{sMk+1}, 0x0000ffff")
    for i in range(8): P.raw(f"v_cndmask_b32 v{B0_+i}, v{ONE}, v{PB_+i}, {S(sMk,2)}")
    for i in range(8): P.raw(f"v_cndmask_b32 v{PB_+i}, v{PB_+i}, v{ONE}, {S(sMk,2)}")
    P.wds_all()
    P.bar("bK1")
    P.ds(f"ds_read_b128 {v(PA_,4)}, v{vAX}", "pa0")
    P.ds(f"ds_read_b128 {v(PA_+4,4)}, v{vAX} offset:1024", "pa1")
    P.wds("pa0")
    P.raw(mf(D0, PA_, B0_, None))
    P.raw(mf(D1, PA_, PB_, None))
    P.wds("pa1")
    P.raw(mf(D0, PA_+4, B0_+4, D0))
    P.raw(mf(D1, PA_+4, PB_+4, D1))
    P.raw(f"s_cmp_eq_u32 s{sTT}, 0")
    P.raw("s_cbranch_scc1 A_KV0")
    for i in range(8): P.raw(f"v_mov_b32 v{ACA+i}, v{D0+i}")
    for i in range(8): P.raw(f"v_mov_b32 v{ACA+8+i}, v{D1+8+i}")
    P.raw("s_branch A_KV1")
    P.label("A_KV0")
    for i in range(8): P.raw(f"v_mov_b32 v{ACA+i}, v{D1+8+i}")
    for i in range(8): P.raw(f"v_mov_b32 v{ACA+8+i}, v{D0+i}")
    P.label("A_KV1")
    P.ds(f"ds_write_b128 v{vAX}, {v(ACA,4)} offset:2048", "ex0")
    P.ds(f"ds_write_b128 v{vAX}, {v(ACA+4,4)} offset:3072", "ex1")
    P.raw(f"v_xor_b32 v31, 4096, v{vAX}")
    P.wds_all()
    P.bar("bK2")
    P.ds(f"ds_read_b128 {v(ACA,4)}, v31 offset:2048", "ex0")
    P.ds(f"ds_read_b128 {v(ACA+4,4)}, v31 offset:3072", "ex1")
    P.raw(f"s_add_u32 s72, s{sHead}, s{sTT}")
    P.raw("s_lshl_b32 s72, s72, 5")
    P.raw(f"s_add_u32 s72, s72, s{sM}")
    P.raw("s_lshl_b32 s73, s72, 11")
    P.raw(f"s_add_u32 s73, s73, {hex(W_KVP)}")
    P.raw(f"s_lshl_b32 s{sFkv}, s72, 2")
    P.raw(f"s_add_u32 s{sFkv}, s{sFkv}, {hex(FKV)}")
    P.wds_all()
    for i in range(8): P.raw(f"v_add_f32 v{ACA+i}, v{ACA+i}, v{ACA+8+i}")
    P.vm(f"buffer_store_dwordx4 {v(ACA,4)}, v{vLinA}, {S(SWS)}, s73 offen sc1", "kvp")
    P.vm(f"buffer_store_dwordx4 {v(ACA+4,4)}, v{vLinA}, {S(SWS)}, s73 offen offset:1024 sc1", "kvp")
    def read_xslice(dst):
        for g in range(4):
            if g == 0: P.ds(f"ds_read_b64 {v(dst,2)}, v{vXR}", "xr")
            else:
                P.raw(f"v_xor_b32 v31, {16*g}, v{vXR}")
                P.ds(f"ds_read_b64 {v(dst+2*g,2)}, v31", "xr")
    def unpack(dst, src, n=8):
        for i in range(n):
            P.raw(f"v_lshlrev_b32 v{dst+2*i}, 16, v{src+i}")
            P.raw(f"v_and_b32 v{dst+2*i+1}, 0xffff0000, v{src+i}")
    XRr, STv = 64, 72
    read_xslice(XRr)
    P.raw(f"s_lshl_b32 s72, s{sTT}, 9")
    P.raw(f"s_add_u32 s72, s72, {TAB_ST}")
    P.raw(f"v_lshl_add_u32 v31, v{vT31}, 4, s72")
    P.ds(f"ds_read_b64 {v(STv,2)}, v31", "st")
    P.wds_all()
    INI = ACB
    unpack(INI, XRr)
    for i in range(16): P.raw(f"v_fma_f32 v{INI+i}, v{INI+i}, v{STv+1}, v{STv}")
    P.wvm("kvp")
    P.vm(f"buffer_store_dword v{vNonA}, v{vFl0A}, {S(SWS)}, s{sFkv} offen sc1", "fkv")
    P.stamp()
    def chunk_steps(f0, nch, G0, acc, init):
        steps = []
        for c in range(nch):
            f = f0 + c; sl = f % 4
            for j in range(8):
                G = G0 + 8*c + j
                e, ks = j >> 2, j & 3
                off = (sl & 1)*SLOT + e*16384
                h = HF + 4*(G % 8); w = WF + 4*(G % 8)
                reads = [(f"ds_read_b128 {v(h,4)}, v{vHa[sl>>1]} offset:{off + ks*1024}", ("h", G)),
                         (f"ds_read_b64_tr_b16 {v(w,2)}, v{vWf[sl>>1]} offset:{off + ks*2048}", ("w", G, 0)),
                         (f"ds_read_b64_tr_b16 {v(w+2,2)}, v{vWf[sl>>1]} offset:{off + ks*2048 + 1024}", ("w", G, 1))]
                first = c == 0 and j == 0
                st = dict(reads=reads, need=[("w", G, 1)], mfma=mf(acc, w, h, (init if first else acc)))
                if j == 0: st["gate"] = f"b{f}"
                steps.append(st)
        return steps
    stream(P, chunk_steps(8, 4, 0, ACA, INI), lambda s: 4, 2)
    P.stamp()
    for i in range(8): P.raw(f"v_cvt_pk_bf16_f32 v{X1P+i}, v{ACA+2*i}, v{ACA+2*i+1}")
    P.raw(f"s_add_u32 s72, s{sFrag}, {hex(W_X1)}")
    P.vm(f"buffer_store_dwordx4 {v(X1P,4)}, v{vLinA}, {S(SWS)}, s72 offen sc1", "x1")
    P.vm(f"buffer_store_dwordx4 {v(X1P+4,4)}, v{vLinA}, {S(SWS)}, s72 offen offset:1024 sc1", "x1")
    P.raw("v_mov_b32 v64, 0")
    P.raw("v_mov_b32 v65, 0")
    for i in range(8):
        P.raw(f"v_dot2_f32_bf16 v64, v{X1P+i}, v{ONE}, v64")
        P.raw(f"v_dot2_f32_bf16 v65, v{X1P+i}, v{X1P+i}, v65")
    P.raw(f"s_lshl_b32 s72, s{sM}, 4")
    P.raw(f"s_lshl_b32 s73, s{sN}, 1")
    P.raw("s_add_u32 s72, s72, s73")
    P.raw(f"s_add_u32 s72, s72, s{sCH}")
    P.raw("s_lshl_b32 s72, s72, 1")
    P.raw(f"s_add_u32 s72, s72, s{sTT}")
    P.raw("s_lshl_b32 s72, s72, 8")
    P.raw(f"s_add_u32 s72, s72, {hex(W_ST)}")
    P.raw("v_permlane32_swap_b32 v64, v65")
    P.raw("v_add_f32 v64, v64, v65")
    P.vm(f"buffer_store_dword v64, v{vP4A}, {S(SWS)}, s72 offen sc1", "x1")
    P.raw(f"s_add_u32 s9, s{sFidx}, {hex(F2)}")
    steps = []; pre = {}
    for ks in range(32):
        f = 12 + (ks >> 4)
        st = dict(reads=wread(vWn, f, ks & 15, ks, 512), need=[("w", ks, 1)])
        st["mfma"] = mf(ACA, WF + 4*(ks % 8), ACT + 4*ks, None if ks == 0 else ACA)
        if ks % 16 == 0: st["gate"] = f"b{f}"
        steps.append(st)
    pre[OPT("F2POS", 16)] = [("wvm", "x1"), ("vm", f"buffer_store_dword v{vNonA}, v{vFl0A}, {S(SWS)}, s9 offen sc1", "f2")]
    stream(P, steps, lambda s: 6, 3, pre=pre)
    P.wds_all()
    P.bar("bQ")
    P.stamp()
    PQ, KVF = 64, 72
    Q0, Q1 = 96, 112
    P.raw(f"s_mov_b32 s72, {hx(EPS_PHI)}")
    for i in range(16): P.raw(f"v_mul_f32 v{Q1+i}, {hx(LOG2E)}, v{ACA+i}")
    for i in range(16): P.raw(f"v_add_f32 v{Q0+i}, s72, v{ACA+i}")
    for i in range(16): P.raw(f"v_exp_f32 v{Q1+i}, v{Q1+i} clamp")
    for i in range(16): P.raw(f"v_max_f32 v{Q0+i}, s72, v{Q0+i}")
    for i in range(16): P.raw(f"v_add_f32 v{Q0+i}, v{Q0+i}, v{Q1+i}")
    for i in range(8): P.raw(f"v_cvt_pk_bf16_f32 v{PQ+i}, v{Q0+2*i}, v{Q0+2*i+1}")
    P.raw(f"s_lshl_b32 s10, s{sHead}, 2")
    P.raw(f"s_add_u32 s10, s10, {hex(FKF)}")
    P.raw(f"s_lshl_b32 s11, s{sHead}, 10")
    P.raw(f"s_add_u32 s11, s11, {hex(W_KVF)}")
    def kvf_loads(Q):
        Q.vm(f"buffer_load_dwordx4 {v(KVF,4)}, v{vLinA}, {S(SWS)}, s11 offen sc1", "kvf")
        Q.vm(f"buffer_load_dwordx4 {v(KVF+4,4)}, v{vLinA}, {S(SWS)}, s11 offen offset:1024 sc1", "kvf")
    def ojob(Q):
        OD = 96
        Q.wvm("kvf")
        Q.raw(mf(OD, KVF, PQ, None))
        Q.raw(mf(OD+16, KVF+4, PQ+4, None))
        Q.raw(f"v_add_f32 v{OD+8}, {hx(EPS_PHI)}, v{OD+8}")
        Q.raw(f"v_add_f32 v{OD+16}, {hx(EPS_PHI)}, v{OD+16}")
        Q.raw(f"v_rcp_f32 v{OD+8}, v{OD+8}")
        Q.raw(f"v_rcp_f32 v{OD+16}, v{OD+16}")
        for i in range(8): Q.raw(f"v_mul_f32 v{OD+i}, v{OD+i}, v{OD+8}")
        for i in range(8): Q.raw(f"v_mul_f32 v{OD+24+i}, v{OD+24+i}, v{OD+16}")
        for i in range(4): Q.raw(f"v_cvt_pk_bf16_f32 v{KVF+i}, v{OD+2*i}, v{OD+2*i+1}")
        for i in range(4): Q.raw(f"v_cvt_pk_bf16_f32 v{KVF+4+i}, v{OD+24+2*i}, v{OD+24+2*i+1}")
        Q.raw(f"s_add_u32 s72, s{sFrag}, {hex(W_O)}")
        Q.vm(f"buffer_store_dwordx4 {v(KVF,4)}, v{vLinA}, {S(SWS)}, s72 offen sc1", "o")
        Q.vm(f"buffer_store_dwordx4 {v(KVF+4,4)}, v{vLinA}, {S(SWS)}, s72 offen offset:1024 sc1", "o")
    P.wvm_all()
    A7 = P.fork("A7")
    P.raw(f"s_cmp_eq_u32 s{sN}, 7")
    P.raw("s_cbranch_scc1 A_N7")
    a7_live = not P.dead
    steps = []; pre = {}
    for r in range(4):
        for ks in range(32):
            G = 32*r + ks
            f = 16 + 2*r + (ks >> 4)
            st = dict(reads=wread(vWf, f, ks & 15, G, 1024), need=[("w", G, 1)])
            st["mfma"] = mf(ACB if ks == 31 else ACA, WF + 4*(G % 8), ACT + 4*ks, None if ks == 0 else ACA)
            if r == 0: st["need"].append(("act", ks))
            if ks % 16 == 0: st["gate"] = "b14" if G == 0 else f"b{f}"
            steps.append(st)
    side = [(-3 + ks//2, f"ds_read_b128 {v(ACT+4*ks,4)}, v{vX1a} offset:{(ks >> 4)*32768 + (ks & 15)*1024}", ("act", ks)) for ks in range(32)]
    pre[7] = [("wds", ("act", 15)), ("bar", "Ba2")]
    pre[16] = [("wds", ("act", 31)), ("bar", "Bb2")]
    for r in (1, 2, 3):
        w = accx_write(ACB, f"g4x{r}")
        for j in range(4): pre.setdefault(32*r + 2 + j, []).append(w[j])
    pre.setdefault(96 + 29, []).append(("bar", "bX"))
    vKf = 31
    pre.setdefault(64 + 8, []).append(("vm", f"buffer_load_dword v{vKf}, v{vP4A}, {S(SWS)}, s10 offen sc1", "kf"))
    def kf_check():
        if P.dead: return
        P.wvm("kf")
        OKL = k.newlabel("KFOK")
        P.raw(f"v_cmp_ne_u32 vcc, s{sNon}, v{vKf}")
        P.raw("s_and_b64 vcc, vcc, 3")
        P.raw(f"s_cbranch_scc0 {OKL}")
        P.poll(vKf, vP4A, "s10", 3, 0)
        P.label(OKL)
        kvf_loads(P)
    pre.setdefault(96 + 8, []).append(("call", kf_check))
    for r in range(1, 4): pre.setdefault(32*r, []).append(("stamp",))
    stream(P, steps, lambda s: 3 if s < 12 else 6, 3, pre=pre, side=side)
    P.run(accx_write(ACB, "g4x4"))
    P.stamp()
    ojob(P)
    P.wds_all()
    P.bar("bE3")
    a_merge = not P.dead
    P.label("A_P4")
    a_p4_n = P.nst
    INI5 = 128; XF = 144; vOut = 12
    for i in range(8):
        P.raw(f"v_lshlrev_b32 v{INI5+2*i}, 16, v{X1P+i}")
        P.raw(f"v_and_b32 v{INI5+2*i+1}, 0xffff0000, v{X1P+i}")
    read_xslice(160)
    P.wds_all()
    unpack(XF, 160)
    P.raw(f"s_lshl_b32 s72, s{sTileA}, 15")
    P.raw(f"s_lshl_b32 s73, s{sHead}, 5")
    P.raw("s_add_u32 s72, s72, s73")
    P.raw(f"v_lshl_add_u32 v{vOut}, v{vT31}, 10, s72")
    P.raw(f"v_lshl_add_u32 v{vOut}, v{vHf}, 3, v{vOut}")
    P.raw(f"s_add_u32 s9, s{sFidx}, {hex(FO)}")
    P.stamp()
    steps = chunk_steps(24, 14, 0, ACA, INI5) + chunk_steps(38, 4, 112, ACB, None)
    pre = {OPT("FOPOS", 4): [("wvm", "o"), ("vm", f"buffer_store_dword v{vNonA}, v{vFl0A}, {S(SWS)}, s9 offen sc1", "fo")]}
    pre.setdefault(112, []).append(("stamp",))
    E = 176; Gt = 192
    sil = []
    for i in range(16): sil.append(f"v_mul_f32 v{E+i}, {hx(-LOG2E)}, v{ACA+i}")
    for i in range(16): sil.append(f"v_exp_f32 v{E+i}, v{E+i}")
    for i in range(16): sil.append(f"v_add_f32 v{E+i}, 1.0, v{E+i}")
    for i in range(16): sil.append(f"v_rcp_f32 v{E+i}, v{E+i}")
    for i in range(16): sil.append(f"v_mul_f32 v{Gt+i}, v{ACA+i}, v{E+i}")
    for j, o in enumerate(sil):
        steps[112 + 2 + (j*28)//len(sil)].setdefault("post", []).append(o)
    stream(P, steps, lambda s: 4, 2, pre=pre)
    P.stamp()
    for i in range(16): P.raw(f"v_fma_f32 v{Gt+i}, v{Gt+i}, v{ACB+i}, v{XF+i}")
    for i in range(8): P.raw(f"v_cvt_pk_bf16_f32 v{E+i}, v{Gt+2*i}, v{Gt+2*i+1}")
    for g in range(4):
        P.vm(f"buffer_store_dwordx2 {v(E+2*g,2)}, v{vOut}, {S(SOUT)}, 0 offen offset:{g*16}", "out")
    P.finish()
    if a7_live:
        k.label("A_N7")
        Q = A7
        Q.bar("bL")
        Q.poll(vKf, vP4A, "s10", 3, 0)
        kvf_loads(Q)
        ojob(Q)
        if a_merge:
            Q.raw("s_branch A_P4")
            if STAMP: NAMES["A7"] = Q.names + ["-"]*(a_p4_n - Q.nst) + NAMES["A"][a_p4_n:]
        else: Q.finish()

    k.label("B_MAIN")
    P = B
    EA, CS, T0, T1, PK = 32, 48, 64, 72, 80
    vM, vAr, vBr, vRi = 24, 25, 26, 27
    P.wvm("f2")
    k("s_waitcnt lgkmcnt(0)")
    P.stamp()
    P.bar("B1")
    P.bar("Ba")
    P.run(wfill(4, SQKV, Wl3072, sRowQ, 1024, 3072))
    P.wvm("f3")
    P.bar("b3")
    P.wvm("nc")
    if not P.dead: get_nonce(vNon)
    P.bar("Bb")
    P.run(wfill(5, SQKV, Wl3072, sRowQ, 1024 + 256*3072, 3072))
    P.run(wfill(6, SQKV, Wl3072, sRowQ, 2048, 3072))
    P.wvm("cs3")
    P.raw("v_bfe_u32 v28, v0, 2, 2")
    P.raw(f"v_lshl_add_u32 v28, v{vHf}, 2, v28")
    P.raw("v_lshlrev_b32 v28, 7, v28")
    P.raw("v_bfe_u32 v29, v0, 4, 1")
    P.raw("v_lshl_add_u32 v28, v29, 5, v28")
    P.raw("v_and_b32 v29, 3, v0")
    P.raw("v_lshl_add_u32 v28, v29, 3, v28")
    P.raw(f"s_lshl_b32 s72, s{sBw}, 12")
    P.raw(f"s_add_u32 s72, s72, {ACCX}")
    P.raw("v_add_u32 v28, s72, v28")
    for ks in range(2):
        for n_ in range(2):
            d = 32 + 4*(2*ks + n_)
            P.ds(f"ds_read_b64_tr_b16 {v(d,2)}, v28 offset:{16*ks*128 + 64*n_}", "c")
            P.ds(f"ds_read_b64_tr_b16 {v(d+2,2)}, v28 offset:{(16*ks+8)*128 + 64*n_}", "c")
    P.raw("v_mov_b32 v48, 0")
    P.raw("v_mov_b32 v49, 0")
    P.raw("v_mov_b32 v50, 0x3f803f80")
    P.wds_all()
    for ks in range(2):
        for i in range(4):
            P.raw(f"v_dot2_f32_bf16 v48, v{32 + 8*ks + i}, v50, v48")
            P.raw(f"v_dot2_f32_bf16 v49, v{32 + 8*ks + 4 + i}, v50, v49")
    P.raw("v_permlane32_swap_b32 v48, v49")
    P.raw("v_add_f32 v48, v48, v49")
    P.raw(f"s_lshl_b32 s72, s{sCsG}, 12")
    P.raw(f"s_lshl_b32 s73, s{sCsP}, 8")
    P.raw("s_add_u32 s72, s72, s73")
    P.raw(f"s_add_u32 s72, s72, {hex(W_CS)}")
    P.raw(f"v_or_b32 v49, s{sCsOOB}, v{vP4}")
    P.vm(f"buffer_store_dword v48, v49, {S(SWS)}, s72 offen sc1", "cs3st")
    P.wvm("f4")
    P.stamp()
    P.bar("b4")
    P.run(wfill(7, SQKV, Wl3072, sRowQ, 2048 + 256*3072, 3072))
    P.raw(f"s_lshl_b32 s72, s{sTT}, 9")
    P.raw(f"s_add_u32 s72, s72, {TAB_ST + 8}")
    P.raw(f"v_lshl_add_u32 v28, v{vT31}, 4, s72")
    P.ds(f"ds_read_b32 v29, v28", "rh")
    P.wds_all()
    P.raw(f"v_mul_f32 v{vAr}, {hx(GA)}, v29")
    P.raw(f"v_mul_f32 v{vBr}, v29, v29")
    P.raw(f"v_rcp_f32 v{vRi}, v29")
    P.raw(f"v_mul_f32 v{vBr}, v{vBr}, v29")
    P.raw(f"v_mul_f32 v{vBr}, {hx(GB)}, v{vBr}")
    def accx_read():
        return [("ds", f"ds_read_b128 {v(EA+4*j,4)}, v{vAXb} offset:{1024*j}", ("ea", j)) for j in range(4)]
    def gelu8(a, c, pk):
        L = []
        if c is not None:
            for i in range(8): L.append(f"v_fma_f32 v{a+i}, -v{vM}, v{c+i}, v{a+i}")
        for i in range(8): L.append(f"v_mul_f32 v{T1+i}, v{a+i}, v{a+i}")
        for i in range(8): L.append(f"v_fma_f32 v{T1+i}, v{T1+i}, v{vBr}, v{vAr}")
        for i in range(8): L.append(f"v_mul_f32 v{T1+i}, v{T1+i}, v{a+i}")
        for i in range(8): L.append(f"v_exp_f32 v{T1+i}, v{T1+i}")
        for i in range(8): L.append(f"v_fma_f32 v{T1+i}, v{T1+i}, v{vRi}, v{vRi}")
        for i in range(8): L.append(f"v_rcp_f32 v{T1+i}, v{T1+i}")
        for i in range(8): L.append(f"v_mul_f32 v{a+i}, v{a+i}, v{T1+i}")
        for i in range(4): L.append(f"v_cvt_pk_bf16_f32 v{pk+i}, v{a+2*i}, v{a+2*i+1}")
        return L
    def chunkW(f, srdn, sbase, const):
        return dma4(sCb, (f % 4)*SLOT, srdn, Wl1024, sbase, const, f"f{f}")
    def chunkH(f, vreg, sbase, const):
        return dma4(sCb, (f % 4)*SLOT + 8192, SWS, vreg, sbase, const, f"f{f}", sc1=True)
    def flag(off_const, sidx, tagwait, tag):
        return [("wvm", tagwait), f"s_add_u32 s{sT1}, s{sidx}, {hex(off_const)}",
                ("vm", f"buffer_store_dword v{vNon}, v{vFl0}, {S(SWS)}, s{sT1} offen sc1", tag)]
    P.bar("bE1")
    epi = accx_read() + [("wds", ("ea", 1))] + gelu8(EA, None, PK) + \
          [("vm", f"buffer_store_dwordx4 {v(PK,4)}, v{vLin}, {S(SWS)}, s{sHst} offen sc1", "hst"), ("wds", ("ea", 3))] + \
          gelu8(EA+8, None, PK+4) + [("vm", f"buffer_store_dwordx4 {v(PK+4,4)}, v{vLin}, {S(SWS)}, s{sHst} offen offset:1024 sc1", "hst")]
    c1, c2 = OPT("HE1", 30), OPT("HE2", 105)
    P.run(epi[:c1]); P.wds(("ea", 3))
    P.wvm("f5"); P.bar("b5")
    P.run(interleave(epi[c1:c2], chunkW(8, SW2, sRowC, 0)))
    P.raw(f"s_lshl_b32 s72, s{sN}, 6")
    P.raw(f"s_and_b32 s73, s{sM}, 3")
    P.raw("s_lshl_b32 s73, s73, 4")
    P.raw("s_add_u32 s72, s72, s73")
    P.raw(f"s_add_u32 s72, s72, s{sCsP}")
    P.raw("s_lshl_b32 s72, s72, 2")
    P.raw(f"s_add_u32 s{sSt}, s72, {hex(CSF)}")
    P.raw(f"v_or_b32 v31, s{sCsOOB}, v{vFl0}")
    P.wvm("f6", "cs3st")
    P.vm(f"buffer_store_dword v{vNon}, v31, {S(SWS)}, s{sSt} offen sc1", "csf")
    P.bar("b6")
    P.run(interleave(epi[c2:], chunkW(9, SW2, sRowC, 128*1024)))
    P.stamp()
    P.bar("bE2")
    K0, K1_ = 64, 96
    epi = accx_read() + [f"s_mov_b32 s{sT2}, {hx(EPS_PHI)}", ("wds", ("ea", 3))]
    for i in range(16): epi.append(f"v_mul_f32 v{K1_+i}, {hx(LOG2E)}, v{EA+i}")
    for i in range(16): epi.append(f"v_add_f32 v{EA+i}, s{sT2}, v{EA+i}")
    for i in range(16): epi.append(f"v_exp_f32 v{K1_+i}, v{K1_+i} clamp")
    for i in range(16): epi.append(f"v_max_f32 v{EA+i}, s{sT2}, v{EA+i}")
    for i in range(16): epi.append(f"v_add_f32 v{EA+i}, v{EA+i}, v{K1_+i}")
    for i in range(8): epi.append(f"v_cvt_pk_bf16_f32 v{K0+i}, v{EA+2*i}, v{EA+2*i+1}")
    epi.append(("ds", f"ds_write_b128 v{vAXb}, {v(K0,4)}", "pa"))
    epi.append(("ds", f"ds_write_b128 v{vAXb}, {v(K0+4,4)} offset:1024", "pa"))
    c1 = OPT("KE1", 30); c2 = OPT("KEF", 60)
    P.run(epi[:c1])
    P.wvm("f7"); P.bar("b7")
    P.run(interleave(epi[c1:c2], chunkW(10, SW2, sRowC, 256*1024)))
    P.run(flag(F1, sFidxB, "hst", "f1flag"))
    P.run(epi[c2:])
    P.wds_all()
    P.stamp()
    P.bar("bK1")
    P.run(chunkW(11, SW2, sRowC, 384*1024))
    P.raw(f"s_cmp_eq_u32 s{sM}, 0")
    P.raw(f"s_cselect_b32 s{sMk}, 0xffff0000, -1")
    P.raw(f"s_cmp_eq_u32 s{sM}, 31")
    P.raw(f"s_cselect_b32 s{sMk+1}, 0, 0xffff")
    P.raw(f"v_lshlrev_b32 v28, 3, v0")
    P.raw(f"s_lshl_b32 s{sT1}, s{sM}, 7")
    P.raw(f"s_add_u32 s{sT1}, s{sT1}, {hex(F1 - 128)}")
    P.bar("bK2")
    P.poll(30, 28, f"s{sT1}", None, None, width=2)
    P.stamp()
    for g, d in enumerate((-1, 1, -2, 2)):
        P.raw(f"s_lshl_b32 s72, s{sTile}, 5")
        P.raw(f"s_add_u32 s72, s72, {hex(d & 0xffffffff)}")
        P.raw(f"v_add_u32 v28, s72, v{vT31}")
        P.raw("v_ashrrev_i32 v29, 5, v28")
        P.raw("v_lshlrev_b32 v29, 15, v29")
        P.raw("v_and_b32 v30, 31, v28")
        P.raw("v_lshl_add_u32 v29, v30, 4, v29")
        P.raw(f"v_lshl_add_u32 v29, v{vHf}, 9, v29")
        P.raw(f"v_cmp_gt_u32 vcc, 0x800, v28")
        P.raw(f"v_mov_b32 v30, {hex(OOB)}")
        P.raw(f"v_cndmask_b32 v{vHs}, v30, v29, vcc")
        P.run(chunkH(8 + g, vHs, sHsrc, 8*g*1024))
    P.wvm("f8"); P.stamp(); P.bar("b8")
    P.wvm("f9"); P.bar("b9")
    P.run(wfill(12, SQKV, Wl3072, sRowQ, 0, 3072))
    P.wvm("f10"); P.bar("b10")
    P.run(wfill(13, SQKV, Wl3072, sRowQ, 256*3072, 3072))
    P.wvm("f11"); P.bar("b11")
    P.wvm("f12"); P.bar("b12")
    P.wvm("f13"); P.bar("b13")
    B7 = None
    B7 = P.fork("B7")
    P.raw(f"s_cmp_eq_u32 s{sN}, 7")
    P.raw("s_cbranch_scc1 B_N7")
    b7_live = not P.dead
    P.run(wfill(16, SW3, Wl3584, sRow3, 0, 3584))
    P.bar("bQ")
    P.run(wfill(17, SW3, Wl3584, sRow3, 256*3584, 3584))
    P.raw(f"s_lshl_b32 s{sT1}, s{sM}, 7")
    P.raw(f"s_add_u32 s{sT1}, s{sT1}, {hex(F2)}")
    P.poll(30, vP4, f"s{sT1}", 0xffffffff, 0)
    P.stamp()
    for hh in range(2):
        f = 14 + hh
        P.run(dma4(sCb, 0, SWS, vLin, sX1b, 0, "zz")[:0])
        P.raw(f"s_lshl_b32 s72, s{sTT}, 14")
        P.raw(f"s_lshl_b32 s73, s{sCH}, 13")
        P.raw(f"s_add_u32 s{sT2}, s72, s73")
        P.run(dma4(sT2, (f % 4)*SLOT, SWS, vLin, sX1b, 16*hh*1024, f"f{f}", sc1=True))
        P.run(dma4(sT2, (f % 4)*SLOT + 4096, SWS, vLin, sX1b, 16*hh*1024 + 4096, f"f{f}", sc1=True))
    XS, CL = 96, 112
    P.raw(f"s_lshl_b32 s72, s{sM}, 13")
    P.raw(f"s_lshl_b32 s73, s{sTT}, 8")
    P.raw("s_add_u32 s72, s72, s73")
    P.raw(f"s_add_u32 s72, s72, {hex(W_ST)}")
    P.raw("s_add_u32 s73, s72, 4096")
    for p in range(16):
        P.vm(f"buffer_load_dword v{XS+p}, v{vP4}, {S(SWS)}, s{72 + (p >> 3)} offen offset:{(p & 7)*512} sc1", "xs")
    P.wvm("f15"); P.stamp(); P.bar("b14")
    P.raw(f"s_lshl_b32 s{sT1}, s{sN}, 8")
    P.raw(f"s_add_u32 s{sT1}, s{sT1}, {hex(CSF)}")
    P.poll(30, vP4, f"s{sT1}", 0xffffffff, 0xffffffff)
    P.raw(f"s_lshl_b32 s72, s{sN}, 2")
    P.raw(f"s_add_u32 s72, s72, s{sBw}")
    P.raw("s_lshl_b32 s72, s72, 12")
    P.raw(f"s_add_u32 s72, s72, {hex(W_CS)}")
    for p in range(16):
        P.vm(f"buffer_load_dword v{CL+p}, v{vP4}, {S(SWS)}, s72 offen offset:{p*256} sc1", "cl")
    for w_ in (8, 4, 2, 1):
        for i in range(w_): P.raw(f"v_add_f32 v{XS+i}, v{XS+i}, v{XS+w_+i}")
    P.raw(f"v_mov_b32 v{XS+1}, v{XS}")
    P.raw(f"v_permlane32_swap_b32 v{XS}, v{XS+1}")
    P.raw(f"v_mul_f32 v{vM}, {hx(1.0/512)}, v{XS}")
    P.raw(f"v_mul_f32 v{XS+1}, {hx(1.0/512)}, v{XS+1}")
    P.raw(f"v_fma_f32 v{XS+1}, -v{vM}, v{vM}, v{XS+1}")
    P.raw(f"v_max_f32 v{XS+1}, 0, v{XS+1}")
    P.raw(f"v_add_f32 v{XS+1}, {hx(EPS_LN)}, v{XS+1}")
    P.raw(f"v_rsq_f32 v{XS+2}, v{XS+1}")
    P.raw(f"v_sqrt_f32 v{vRi}, v{XS+1}")
    P.raw(f"v_mul_f32 v{vAr}, {hx(GA)}, v{XS+2}")
    P.raw(f"v_mul_f32 v{vBr}, v{XS+2}, v{XS+2}")
    P.raw(f"v_mul_f32 v{vBr}, v{vBr}, v{XS+2}")
    P.raw(f"v_mul_f32 v{vBr}, {hx(GB)}, v{vBr}")
    P.bar("Ba2")
    P.run(wfill(18, SW3, Wl3584, sRow3, 128, 3584))
    P.wvm("cl")
    for w_ in (8, 4, 2, 1):
        for i in range(w_): P.raw(f"v_add_f32 v{CL+i}, v{CL+i}, v{CL+w_+i}")
    P.raw(f"s_lshl_b32 s72, s{sBw}, 8")
    P.raw(f"s_add_u32 s72, s72, {TAB_CS}")
    P.raw(f"v_add_u32 v28, s72, v{vP4}")
    P.ds(f"ds_write_b32 v28, v{CL}", "csw")
    P.wds_all()
    P.wvm("f17"); P.bar("b17")
    P.bar("Bb2")
    P.run(wfill(19, SW3, Wl3584, sRow3, 128 + 256*3584, 3584))
    P.run(wfill(20, SW3, Wl3584, sRow3, 256, 3584))
    vCSa = 22
    P.raw(f"s_lshl_b32 s72, s{sCH}, 7")
    P.raw(f"s_add_u32 s72, s72, {TAB_CS}")
    P.raw(f"v_lshl_add_u32 v{vCSa}, v{vHf}, 4, s72")
    P.wvm("f18"); P.bar("b18")
    P.run(wfill(21, SW3, Wl3584, sRow3, 256 + 256*3584, 3584))
    def g4epi(r):
        L = accx_read()
        L += [("ds", f"ds_read_b128 {v(CS+4*g,4)}, v{vCSa} offset:{256*r + 32*g}", ("cs", g)) for g in range(4)]
        L += [f"s_add_u32 s{sSt}, s{sH3st}, {4*r*1024}", ("wds", ("cs", 3))]
        L += gelu8(EA, CS, PK) + [("vm", f"buffer_store_dwordx4 {v(PK,4)}, v{vLin}, {S(SWS)}, s{sSt} offen sc1", f"h3s{r}")]
        L += gelu8(EA+8, CS+8, PK+4) + [("vm", f"buffer_store_dwordx4 {v(PK+4,4)}, v{vLin}, {S(SWS)}, s{sSt} offen offset:1024 sc1", f"h3s{r}")]
        return L
    def g5W(c):
        alt = c in (3, 10)
        return chunkW(24 + c, SW4, sW4b if alt else sW4a, F0(2*c)*1024)
    def g5H(c):
        alt = c in (3, 10)
        return chunkH(24 + c, vLin, sH3b if alt else sH3a, F0(2*c)*64)
    def f3flag(r): return flag(F3 + r*4096, sFidxB, f"h3s{r}", f"f3f{r}")
    half = OPT("G4H", 78)
    FP = OPT("F3POS", 40)
    nxtW = {0: (wfill(22, SW3, Wl3584, sRow3, 384, 3584), wfill(23, SW3, Wl3584, sRow3, 384 + 256*3584, 3584)),
            1: (g5W(0), g5W(1)), 2: (g5W(2), [])}
    for r in range(3):
        e = g4epi(r)
        P.wvm(f"f{19+2*r}"); P.bar(f"b{19+2*r}")
        p1 = interleave(e[:half], nxtW[r][0], start=10)
        if r > 0: p1 = p1[:FP] + f3flag(r-1) + p1[FP:]
        P.run(p1)
        if r < 2:
            P.wvm(f"f{20+2*r}"); P.bar(f"b{20+2*r}")
        else: P.bar("bX")
        P.run(interleave(e[half:], nxtW[r][1]))
        P.stamp()
    P.bar("bE3")
    e = g4epi(3)
    p1 = interleave(e, g5W(3), start=10)
    p1 = p1[:FP] + f3flag(2) + p1[FP:]
    P.run(p1)
    P.run(f3flag(3))
    b_merge = not P.dead
    P.label("B_P4")
    b_p4_n = P.nst
    P.stamp()
    def f3poll(r):
        P.raw(f"s_lshl_b32 s{sT1}, s{sM}, 7")
        P.raw(f"s_add_u32 s{sT1}, s{sT1}, {hex(F3 + r*4096)}")
        P.poll(30, vP4, f"s{sT1}", 0x0fffffff, 0)
    f3poll(0)
    P.stamp()
    for c in range(3): P.run(g5H(c))
    for c in range(18):
        f = 24 + c
        P.wvm(f"f{f}"); P.bar(f"b{f}")
        nx = c + 3
        if nx < 14:
            if nx in (3, 7, 10): f3poll({3: 1, 7: 2, 10: 3}[nx])
            if nx != 3: P.run(g5W(nx))
            P.run(g5H(nx))
        elif nx < 18:
            cc = nx - 14
            if cc == 0:
                P.raw(f"s_lshl_b32 s{sT1}, s{sM}, 7")
                P.raw(f"s_add_u32 s{sT1}, s{sT1}, {hex(FO)}")
                P.poll(30, vP4, f"s{sT1}", 0xffffffff, 0)
            P.run(chunkW(24 + nx, SWO, sRowC, 128*cc*1024))
            P.run(chunkH(24 + nx, vLin, sOb, 8*cc*1024))
        if c == 13: P.stamp()
        if OPT("G5ST", 0): P.stamp(f"@i{f}")
    P.finish()
    if b7_live:
        k.label("B_N7")
        Q = B7
        Q.bar("bQ")
        Q.raw(f"s_lshl_b32 s{sT1}, s{sM}, 7")
        Q.raw(f"s_add_u32 s{sT1}, s{sT1}, {hex(FKV)}")
        Q.poll(30, vP4, f"s{sT1}", 0xffffffff, 0)
        KP = 128
        Q.raw(f"s_lshl_b32 s72, s{sM}, 5")
        Q.raw(f"s_lshl_b32 s73, s{sBw}, 3")
        Q.raw("s_add_u32 s72, s72, s73")
        Q.raw("s_lshl_b32 s72, s72, 11")
        Q.raw(f"s_add_u32 s72, s72, {hex(W_KVP)}")
        for j in range(8):
            if j and j % 2 == 0: Q.raw("s_add_u32 s72, s72, 4096")
            for g in range(2):
                Q.vm(f"buffer_load_dwordx4 {v(KP+8*j+4*g,4)}, v{vLin}, {S(SWS)}, s72 offen offset:{(j&1)*2048 + g*1024} sc1", "kp")
        Q.wvm_all()
        for w_ in (4, 2, 1):
            for j in range(w_):
                for i in range(8): Q.raw(f"v_add_f32 v{KP+8*j+i}, v{KP+8*j+i}, v{KP+8*(j+w_)+i}")
        Q.ds(f"ds_write_b128 v{vAXb}, {v(KP,4)}", "l1")
        Q.ds(f"ds_write_b128 v{vAXb}, {v(KP+4,4)} offset:1024", "l1")
        Q.wds_all()
        Q.bar("bL")
        Q.raw(f"v_add_u32 v28, {ACCX}, v{vLin}")
        for j in range(4):
            for g in range(2):
                Q.ds(f"ds_read_b128 {v(KP+8*j+4*g,4)}, v28 offset:{j*4096 + g*1024}", "l1")
        Q.wds_all()
        for w_ in (2, 1):
            for j in range(w_):
                for i in range(8): Q.raw(f"v_add_f32 v{KP+8*j+i}, v{KP+8*j+i}, v{KP+8*(j+w_)+i}")
        for i in range(4): Q.raw(f"v_cvt_pk_bf16_f32 v{KP+8+i}, v{KP+2*i}, v{KP+2*i+1}")
        Q.raw(f"s_cmp_eq_u32 s{sBw}, 0")
        Q.raw(f"s_cselect_b32 s73, 0, {hex(OOB)}")
        Q.raw(f"v_or_b32 v28, s73, v{vLin}")
        Q.raw(f"v_or_b32 v29, s73, v{vFl0}")
        Q.raw(f"s_lshl_b32 s72, s{sM}, 10")
        Q.raw(f"s_add_u32 s72, s72, {hex(W_KVF)}")
        Q.vm(f"buffer_store_dwordx4 {v(KP+8,4)}, v28, {S(SWS)}, s72 offen sc1", "kvf")
        Q.raw(f"s_lshl_b32 s72, s{sM}, 2")
        Q.raw(f"s_add_u32 s72, s72, {hex(FKF)}")
        Q.wvm_all()
        Q.vm(f"buffer_store_dword v{vNon}, v29, {S(SWS)}, s72 offen sc1", "fkf")
        for c in range(4): Q.run(g5W(c))
        Q.wvm_all()
        if b_merge:
            Q.raw("s_branch B_P4")
            if STAMP: NAMES["B7"] = Q.names + ["-"]*(b_p4_n - Q.nst) + NAMES["B"][b_p4_n:]
        else: Q.finish()
    k.label("P_END")
    k("s_endpgm")
    a_main = A.bars; b_main = B.bars
    if a_main != b_main:
        print("BARRIER MISMATCH"); print(a_main); print(b_main); raise SystemExit(1)
    if a7_live and b7_live:
        ia = a_main.index("bQ") if "bQ" in a_main else None
        print("A7", A7.bars, "B7", B7.bars)
        assert ["bQ"] + A7.bars == B7.bars
    return k

HDR = open("cdna_kernels/" + NAME + ".s.ref").read().split("\n")
def build():
    lines = []
    for l in HDR:
        if not l.startswith(";"): break
        if "@launch" in l: continue
        lines.append(l)
    lines.append(f"; @launch grid=(256,1,1) block=(512,1,1) lds={LDS}")
    lines.append('.amdgcn_target "amdgcn-amd-amdhsa--gfx950"')
    k = gen()
    k.fix_hazards(verbose=OPT("V", 0))
    return "\n".join(lines) + "\n" + header(KN) + k.text() + descriptor(KN)

if __name__ == "__main__":
    open(sys.argv[1], "w").write(build())
    if STAMP:
        import json; json.dump(NAMES, open(sys.argv[1] + ".names.json", "w"))
```

```python
import sys, os, copy
sys.path.insert(0, "gen")
from common import *

KN = NAME + "_kernel"
SLOT = 32768
ACCX, XTR, TAB = 131072, 147456, 155648
TAB_ST, TAB_CS, TAB_S2 = TAB, TAB + 1024, TAB + 2048
LDS = 163840
W_H, W_X1, W_O, W_H3, W_KVP, W_KVF, W_ST, W_CS, W_FL, W_STAMP = [x*MB for x in (2, 4, 6, 10, 18, 20, 21, 22, 23, 32)]
WS_SIZE = 40*MB
F1, F2, F3, FO, FKV, FKF, CSF = [W_FL + x for x in (128, 8192, 12288, 28672, 32768, 36864, 40960)]
OOB = 0x7f000000
STOP = OPT("STOP", "")
STAMP = OPT("STAMP", 0)
STFROM = OPT("STFROM", "")
SPIN = 1 << 16

sWave, sM, sN, sNon, sTT, sCH = 26, 27, 28, 29, 30, 31
sG, sIdx = 84, 85
SX, SQKV, SW1, SW2, SW3, SW4, SWO, SWS, SOUT, SDBG = 32, 36, 40, 44, 48, 52, 56, 60, 64, 68
sT0, sT1, sT2, sT3, sT4, sT5, sSpin = 72, 73, 74, 75, 76, 77, 78
sMk = 80
def S(n, c=4): return f"s[{n}:{n+c-1}]"

NAMES = {}
class Prog:
    def __init__(self, k, name):
        self.k = k; self.name = name
        self.dq = []; self.vq = []; self.bars = []
        self.dead = False; self.nst = 0; self.names = []; self.sv = 5 if name[0] == 'A' else 255; self.st_on = False
    def fork(self, name):
        p = Prog(self.k, name)
        p.dq = list(self.dq); p.vq = list(self.vq); p.bars = []; p.dead = self.dead; p.nst = self.nst; p.names = list(self.names); p.st_on = self.st_on
        return p
    def raw(self, t):
        if not self.dead: self.k(t)
    def label(self, l):
        if not self.dead: self.k.label(l)
    def ds(self, t, tag=None):
        if self.dead: return
        if len(self.dq) >= 15: self._wds(len(self.dq) - 15)
        self.k(t); self.dq.append(tag)
    def _wds(self, i):
        n = len(self.dq) - 1 - i
        self.k(f"s_waitcnt lgkmcnt({n})"); self.dq = self.dq[i+1:]
    def wds(self, *tags):
        if self.dead: return
        idx = [i for i, t in enumerate(self.dq) if t in tags]
        if idx: self._wds(max(idx))
    def wds_all(self):
        if self.dead: return
        if self.dq: self._wds(len(self.dq) - 1)
    def vm(self, t, tag=None):
        if self.dead: return
        self.k(t); self.vq.append(tag)
    def wvm(self, *tags):
        if self.dead: return
        idx = [i for i, t in enumerate(self.vq) if t in tags]
        if not idx: return
        i = max(idx); n = len(self.vq) - 1 - i
        self.k(f"s_waitcnt vmcnt({min(n, 63)})")
        if n <= 63: self.vq = self.vq[i+1:]
        else: self.vq = self.vq[len(self.vq)-63:]
    def wvm_all(self):
        if self.dead: return
        self.k("s_waitcnt vmcnt(0)"); self.vq = []
    def bar(self, name):
        if self.dead: return
        if name == STOP:
            self.finish(); return
        if STAMP == 2: self.stamp("@" + name)
        self.k(f"s_barrier ; {name}"); self.bars.append(name)
    def stamp(self, name=None):
        if self.dead or not STAMP: return
        if STAMP == 2 and not (name or "").startswith("@"): return
        if STFROM and not self.st_on:
            if name == STFROM: self.st_on = True
            else: return
        i = self.nst; self.nst += 1
        assert i < 60, "too many stamps"
        self.names.append(name or f"s{i}")
        if self.name[0] == "B" or OPT("STEX", 0):
            if i == 0: self.k(f"v_writelane_b32 v{self.sv}, s82, 0")
            self.k("s_memtime s[82:83]")
            self.k("s_waitcnt lgkmcnt(0)")
            self.k(f"v_writelane_b32 v{self.sv}, s82, {i+1}")
            self.dq = []
        else:
            self.k(f"v_writelane_b32 v{self.sv}, s82, {i}")
            self.k("s_memtime s[82:83]")
    def finish(self):
        if self.dead: return
        self.k("s_waitcnt vmcnt(0) lgkmcnt(0)")
        self.flush_stamps()
        self.k("s_branch P_END")
        self.dead = True
    def flush_stamps(self):
        if not STAMP: return
        k = self.k; i = self.nst
        NAMES[self.name] = list(self.names) + ["end"]
        k("s_waitcnt lgkmcnt(0)")
        k(f"v_writelane_b32 v{self.sv}, s82, {i}")
        k("s_memtime s[82:83]")
        k("s_waitcnt lgkmcnt(0)")
        k(f"v_writelane_b32 v{self.sv}, s82, {i+1}")
        k("s_memrealtime s[82:83]")
        k("s_waitcnt lgkmcnt(0)")
        k(f"v_writelane_b32 v{self.sv}, s82, 62")
        k(f"v_writelane_b32 v{self.sv}, s79, 63")
        k("s_lshl_b32 s72, s2, 11")
        k(f"s_lshl_b32 s73, s{sWave}, 8")
        k("s_add_u32 s72, s72, s73")
        k(f"s_add_u32 s72, s72, {hex(W_STAMP)}")
        k("v_lshlrev_b32 v1, 2, v0")
        k(f"buffer_store_dword v{self.sv}, v1, {S(SWS)}, s72 offen")
        k("s_waitcnt vmcnt(0)")
    def emit(self, op):
        if isinstance(op, str): self.raw(op); return
        kind = op[0]
        if kind == "ds": self.ds(op[1], op[2] if len(op) > 2 else None)
        elif kind == "vm": self.vm(op[1], op[2] if len(op) > 2 else None)
        elif kind == "wds": self.wds(*op[1:])
        elif kind == "wvm": self.wvm(*op[1:])
        elif kind == "bar": self.bar(op[1])
        elif kind == "stamp": self.stamp(op[1] if len(op) > 1 else None)
        elif kind == "call": op[1]()
        elif kind == "grp":
            for o in op[1]: self.emit(o)
        else: raise ValueError(op)
    def run(self, ops):
        for o in ops: self.emit(o)
    def poll(self, vdst, voff, soff, mlo, mhi, width=1):
        if self.dead: return
        k = self.k
        L = k.newlabel("PL"); D = k.newlabel("PD")
        if mlo is not None:
            k(f"s_mov_b32 s{sMk}, {hex(mlo)}"); k(f"s_mov_b32 s{sMk+1}, {hex(mhi)}")
        k.label(L)
        sfx = {1: "dword", 2: "dwordx2"}[width]
        k(f"buffer_load_{sfx} {v(vdst, width)}, v{voff}, {S(SWS)}, {soff} offen sc1")
        k("s_waitcnt vmcnt(0)")
        k(f"v_cmp_ne_u32 vcc, s{sNon}, v{vdst}")
        if width == 2:
            k(f"v_cmp_ne_u32 s[{sT4}:{sT5}], s{sNon}, v{vdst+1}")
            k(f"s_or_b64 vcc, vcc, s[{sT4}:{sT5}]")
        k(f"s_and_b64 vcc, vcc, {S(sMk,2)}")
        k(f"s_cbranch_scc0 {D}")
        k(f"s_sub_u32 s{sSpin}, s{sSpin}, 1")
        k(f"s_cmp_gt_i32 s{sSpin}, 0")
        k(f"s_cbranch_scc1 {L}")
        k.label(D)
        self.vq = []

def interleave(main, extra, start=0, end=None):
    main = list(main)
    if not extra: return main
    end = len(main) if end is None else min(end, len(main))
    n = max(end - start, 1)
    out = main[:start]
    step = n / len(extra); j = 0
    for i, o in enumerate(main[start:end]):
        while j < len(extra) and j*step <= i:
            out.append(extra[j]); j += 1
        out.append(o)
    out += extra[j:]
    out += main[end:]
    return out

def stream(P, steps, la, GL, pre=None, side=None, side_rate=2):
    pre = pre or {}
    side = list(side or [])
    n = len(steps); nxt = 0; lastw = None
    s = -la(0)
    while s < n:
        for o in pre.get(s, []): P.emit(o)
        cnt = 0
        while nxt < n and nxt <= s + la(s) and cnt < 4:
            st = steps[nxt]
            if st.get("gate"):
                if nxt > 0 and s < nxt - st.get("gl", GL): break
                if lastw is not None: P.wds(lastw)
                for o in st.get("gpre", []): P.emit(o)
                P.bar(st["gate"])
            for t, tag in st["reads"]:
                P.ds(t, tag); lastw = tag
            nxt += 1; cnt += 1
        c = 0
        while side and c < side_rate and side[0][0] <= s and nxt > 0:
            _, t, tag = side.pop(0); P.ds(t, tag); c += 1
        if s >= 0:
            P.wds(*steps[s]["need"])
            P.raw(steps[s]["mfma"])
            for o in steps[s].get("post", []): P.emit(o)
        s += 1
    assert not side

def spread(steps, ops, s0, s1):
    n = s1 - s0
    for j, o in enumerate(ops):
        steps[s0 + (j*n)//len(ops)].setdefault("post", []).append(o)

def mf(d, a, b, c):
    return f"v_mfma_f32_32x32x16_bf16 {v(d,16)}, {v(a,4)}, {v(b,4)}, " + ("0" if c is None else v(c,16))

def F0(g): return 256*(g % 7) + 64*(g // 7)

def gen():
    k = Kern()
    vT31, vHf = 1, 2
    k("s_cmp_ge_u32 s2, 256")
    k("s_cbranch_scc1 P_END")
    k("s_load_dwordx16 s[4:19], s[0:1], 0")
    k("s_load_dwordx4 s[20:23], s[0:1], 64")
    k("s_load_dwordx2 s[24:25], s[0:1], 80")
    if STAMP:
        k("s_memrealtime s[80:81]")
        k("s_memtime s[82:83]")
    k("v_lshrrev_b32 v1, 6, v0")
    k("v_and_b32 v0, 63, v0")
    k("v_mov_b32 v3, 0")
    k(f"v_readfirstlane_b32 s{sWave}, v1")
    k("s_and_b32 s72, s2, 7")
    k("s_lshr_b32 s73, s2, 3")
    k("s_lshr_b32 s74, s72, 1")
    k("s_lshl_b32 s74, s74, 3")
    k("s_lshr_b32 s75, s73, 2")
    k(f"s_add_u32 s{sM}, s74, s75")
    k("s_and_b32 s74, s72, 1")
    k("s_lshl_b32 s74, s74, 2")
    if OPT("NROT", 0): k(f"s_add_u32 s73, s73, {OPT('NROT', 0)}")
    k("s_and_b32 s75, s73, 3")
    k(f"s_add_u32 s{sN}, s74, s75")
    k(f"s_and_b32 s{sTT}, s{sWave}, 1")
    k(f"s_bfe_u32 s{sCH}, s{sWave}, 0x10001")
    k(f"s_mov_b32 s{sSpin}, {SPIN}")
    k(f"v_and_b32 v{vT31}, 31, v0")
    k(f"v_lshrrev_b32 v{vHf}, 5, v0")
    k(f"s_and_b32 s{sG}, s2, 7")
    k(f"s_lshr_b32 s{sIdx}, s2, 3")
    k(f"s_cmp_ge_u32 s{sWave}, 4")
    k("s_cbranch_scc1 B_PRE")
    vXg, vXW, vNc = 60, 61, 63
    X = 64
    k("v_lshrrev_b32 v6, 3, v0")
    k("v_and_b32 v7, 7, v0")
    k(f"s_lshl_b32 s72, s{sWave}, 4")
    k("v_add_u32 v6, s72, v6")
    k("v_bfe_u32 v8, v6, 1, 3")
    k("v_xor_b32 v8, v7, v8")
    k("v_lshlrev_b32 v8, 4, v8")
    k(f"v_lshl_add_u32 v{vXW}, v6, 7, v8")
    k(f"s_lshl_b32 s72, s{sM}, 6")
    k("v_add_u32 v6, s72, v6")
    k("v_lshlrev_b32 v6, 10, v6")
    k(f"v_lshl_add_u32 v{vXg}, v7, 4, v6")
    k("s_movk_i32 s72, 0x2000")
    k("s_waitcnt lgkmcnt(0)")
    if STAMP: k("s_mov_b32 s79, s80")
    srd(k, SDBG, P_DBG, 256)
    k(f"s_or_b32 s73, s2, s{sWave}")
    k("s_cmp_lg_u32 s73, 0")
    k("s_cbranch_scc1 P_NON")
    k("s_memrealtime s[74:75]")
    k("v_mov_b32 v6, 0")
    k("s_waitcnt lgkmcnt(0)")
    k("s_or_b32 s74, s74, 1")
    k("v_mov_b32 v7, s74")
    k("s_mov_b64 exec, 1")
    k(f"buffer_store_dword v7, v6, {S(SDBG)}, 0 offen sc1")
    k("s_mov_b64 exec, -1")
    k.label("P_NON")
    srd(k, SX, P_X, 2*MB)
    for j in range(2):
        for i in range(8):
            k(f"buffer_load_dwordx4 {v(X+32*j+4*i,4)}, v{vXg}, {S(SX)}, {'s72' if j else '0'} offen offset:{128*i}")
    k("v_mov_b32 v59, 0")
    k(f"buffer_load_dword v{vNc}, v59, {S(SDBG)}, 0 offen sc1")
    srd(k, SWS, P_WS, WS_SIZE)
    srd(k, SOUT, P_OUT, 2*MB)

    A = Prog(k, "A"); B = Prog(k, "B")
    vWn, vWf, vHa = (6, 7), (8, 9), (10, 11)
    xa = [12, 13, 14, 15]
    vX1a, vAX, vXR, vNonA, vFl0A, vLinA = 16, 17, 18, 19, 20, 21
    X1P, ONE = 22, 30
    vP4A = 3
    ACA, ACB, HF, WF, ACT = 32, 48, 64, 96, 128
    k("v_bfe_u32 v3, v0, 2, 2")
    k("v_and_b32 v4, 3, v0")
    k("v_bfe_u32 v5, v0, 4, 1")
    k(f"s_lshl_b32 s72, s{sCH}, 2")
    k("v_lshrrev_b32 v30, 1, v4")
    k("v_lshl_add_u32 v30, v5, 1, v30")
    k("v_add_u32 v30, s72, v30")
    k("v_lshrrev_b32 v31, 1, v3")
    k("v_lshlrev_b32 v31, 2, v31")
    k("v_xor_b32 v30, v30, v31")
    k("v_lshlrev_b32 v30, 4, v30")
    k("v_and_b32 v31, 1, v4")
    k("v_lshl_add_u32 v30, v31, 3, v30")
    k(f"v_lshl_add_u32 v31, v{vHf}, 3, v3")
    k(f"v_lshl_add_u32 v{vWn[0]}, v31, 7, v30")
    k(f"v_add_u32 v{vWn[1]}, 0x10000, v{vWn[0]}")
    k(f"v_lshl_add_u32 v31, v{vHf}, 2, v3")
    k(f"v_lshl_add_u32 v{vWf[0]}, v31, 7, v30")
    k(f"v_add_u32 v{vWf[1]}, 0x10000, v{vWf[0]}")
    k(f"v_lshlrev_b32 v{vLinA}, 4, v0")
    k(f"s_lshl_b32 s72, s{sTT}, 12")
    k("s_add_u32 s72, s72, 8192")
    k(f"v_add_u32 v{vHa[0]}, s72, v{vLinA}")
    k(f"v_add_u32 v{vHa[1]}, 0x10000, v{vHa[0]}")
    k(f"v_bfe_u32 v30, v{vT31}, 1, 3")
    k(f"v_xor_b32 v30, v30, v{vHf}")
    k("v_lshlrev_b32 v30, 4, v30")
    k(f"v_lshl_add_u32 v{xa[0]}, v{vT31}, 7, v30")
    k(f"s_lshl_b32 s72, s{sTT}, 12")
    k(f"v_add_u32 v{xa[0]}, s72, v{xa[0]}")
    for j in range(1, 4): k(f"v_xor_b32 v{xa[j]}, {32*j}, v{xa[0]}")
    k(f"s_lshl_b32 s72, s{sTT}, 14")
    k("s_add_u32 s72, s72, 0x10000")
    k(f"v_add_u32 v{vX1a}, s72, v{vLinA}")
    k(f"s_lshl_b32 s72, s{sWave}, 12")
    k(f"s_add_u32 s72, s72, {ACCX}")
    k(f"v_add_u32 v{vAX}, s72, v{vLinA}")
    k(f"s_lshl_b32 s72, s{sTT}, 5")
    k(f"v_add_u32 v30, s72, v{vT31}")
    k("v_bfe_u32 v31, v30, 1, 3")
    k(f"s_lshl_b32 s72, s{sCH}, 2")
    k("v_xor_b32 v31, s72, v31")
    k("v_lshlrev_b32 v31, 4, v31")
    k("v_lshl_add_u32 v31, v30, 7, v31")
    k(f"v_lshl_add_u32 v31, v{vHf}, 3, v31")
    k(f"v_add_u32 v{vXR}, {XTR}, v31")
    k(f"v_mov_b32 v{vFl0A}, {hex(OOB)}")
    k("v_mov_b32 v30, 0")
    k("v_cmp_eq_u32 vcc, 0, v0")
    k(f"v_cndmask_b32 v{vFl0A}, v{vFl0A}, v30, vcc")
    k(f"v_lshlrev_b32 v{vP4A}, 2, v0")
    k(f"v_mov_b32 v{ONE}, 0x3f803f80")
    sHead, sFkv, sTileA, sFrag, sFidx = 4, 5, 6, 7, 8
    k(f"s_lshl_b32 s{sHead}, s{sN}, 2")
    k(f"s_lshl_b32 s72, s{sCH}, 1")
    k(f"s_add_u32 s{sHead}, s{sHead}, s72")
    k(f"s_lshl_b32 s{sTileA}, s{sM}, 1")
    k(f"s_add_u32 s{sTileA}, s{sTileA}, s{sTT}")
    k(f"s_lshl_b32 s72, s{sTileA}, 15")
    k(f"s_lshl_b32 s73, s{sHead}, 10")
    k(f"s_add_u32 s{sFrag}, s72, s73")
    k(f"s_lshl_b32 s{sFidx}, s{sM}, 5")
    k(f"s_lshl_b32 s72, s{sN}, 2")
    k(f"s_add_u32 s{sFidx}, s{sFidx}, s72")
    k(f"s_add_u32 s{sFidx}, s{sFidx}, s{sWave}")
    k(f"s_lshl_b32 s{sFidx}, s{sFidx}, 2")
    if STAMP: k("v_mov_b32 v5, 0")
    ones = 128
    k(f"v_mov_b32 v{ones}, 0x3f803f80")
    for j in range(2):
        XJ = X + 32*j
        k(f"s_waitcnt vmcnt({9 if j == 0 else 1})")
        if j == 0: A.stamp("@P0C")
        else: A.stamp("@P0D")
        sm = [130, 131]; sq = [132, 133]
        for r in sm + sq: k(f"v_mov_b32 v{r}, 0")
        for i in range(32):
            k(f"v_dot2_f32_bf16 v{sm[i&1]}, v{XJ+i}, v{ones}, v{sm[i&1]}")
            k(f"v_dot2_f32_bf16 v{sq[i&1]}, v{XJ+i}, v{XJ+i}, v{sq[i&1]}")
        k("v_add_f32 v130, v130, v131")
        k("v_add_f32 v132, v132, v133")
        for dpp in ("quad_perm:[1,0,3,2]", "quad_perm:[2,3,0,1]", "row_half_mirror"):
            k(f"v_add_f32_dpp v130, v130, v130 {dpp} row_mask:0xf bank_mask:0xf")
            k(f"v_add_f32_dpp v132, v132, v132 {dpp} row_mask:0xf bank_mask:0xf")
        k(f"v_mul_f32 v130, {hx(1.0/512)}, v130")
        k(f"v_mul_f32 v132, {hx(1.0/512)}, v132")
        k("v_fma_f32 v132, -v130, v130, v132")
        k("v_max_f32 v132, 0, v132")
        k(f"v_add_f32 v133, {hx(EPS_LN)}, v132")
        k("v_rsq_f32 v137, v133")
        k("v_mov_b32 v139, 0")
        k("v_mul_f32 v136, v130, v137")
        k("v_sub_f32 v136, 0, v136")
        k("v_mul_f32 v138, v137, v137")
        k("v_mul_f32 v138, v138, v132")
        k(f"v_add_f32 v138, {hx(EPS_LN)}, v138")
        k("v_rsq_f32 v138, v138")
        if j == 0:
            k(f"v_lshrrev_b32 v134, 7, v{vXW}")
            k("v_lshlrev_b32 v134, 4, v134")
            k(f"v_add_u32 v134, {TAB_ST}, v134")
        else:
            k(f"v_add_u32 v{vXW}, 1024, v{vXW}")
            k(f"v_xor_b32 v{vXW}, 64, v{vXW}")
        T = 144
        for i in range(8):
            t = T + 8*(i & 1)
            for jj in range(4):
                k(f"v_lshlrev_b32 v{t+2*jj}, 16, v{XJ+4*i+jj}")
                k(f"v_and_b32 v{t+2*jj+1}, 0xffff0000, v{XJ+4*i+jj}")
            if OPT("P0PK", 1):
                for jj in range(4): k(f"v_pk_fma_f32 v[{t+2*jj}:{t+2*jj+1}], v[{t+2*jj}:{t+2*jj+1}], v[136:137], v[136:137] op_sel:[0,1,0] op_sel_hi:[1,1,0]")
            else:
                for jj in range(8): k(f"v_fma_f32 v{t+jj}, v{t+jj}, v137, v136")
            for jj in range(4): k(f"v_cvt_pk_bf16_f32 v{XJ+4*i+jj}, v{t+2*jj}, v{t+2*jj+1}")
            k(f"ds_write_b128 v{vXW}, {v(XJ+4*i,4)} offset:{8192*i}")
            if i == 0: k(f"ds_write_b128 v134, v[136:139] offset:{128*j}")
    k("s_branch A_MAIN")

    k.label("B_PRE")
    sWb, sRowQ, sRow1, sRow3, sCb, sRowC, sW4a, sW4b, sH3a, sH3b, sOb, sX1b, sHst, sH3st, sBw, sTile = range(4, 20)
    sCsP, sCsOOB, sCsG, sFidxB, sHsrc, sSt = 20, 21, 22, 23, 24, 25
    Wl3072, Wl1024, Wl3584 = [4, 5, 6, 7], [8, 9, 10, 11], [12, 13, 14, 15]
    vLin, vAXb, vHs, vNon, vFl0, vP4 = 16, 17, 18, 19, 20, 21
    k(f"s_sub_u32 s77, s{sWave}, 4")
    if STAMP: k("v_mov_b32 v255, 0")
    def pf_addr(vd, params):
        def sel(d, idx):
            vals = [p[idx] for p in params]
            if len(set(vals)) == 1: k(f"s_mov_b32 s{d}, {vals[0]}"); return
            k(f"s_mov_b32 s{d}, {vals[0]}")
            for w in range(1, 4):
                if vals[w] != vals[w-1] or True:
                    k(f"s_cmp_eq_u32 s77, {w}")
                    k(f"s_cselect_b32 s{d}, {vals[w]}, s{d}")
        sR, sSh, sPi, sS, sCo, sNL = 86, 87, 88, 89, 90, 91
        for d, i in ((sR, 0), (sSh, 1), (sPi, 2), (sS, 3), (sCo, 4), (sNL, 5)): sel(d, i)
        k(f"s_lshr_b32 s92, s{sG}, 1")
        k("s_lshl_b32 s92, s92, 5")
        k(f"s_add_u32 s92, s92, s{sIdx}")
        k(f"s_mul_i32 s92, s92, s{sR}")
        k(f"s_and_b32 s93, s{sG}, 1")
        k(f"s_mul_i32 s93, s93, s{sS}")
        k("s_lshl_b32 s93, s93, 7")
        k(f"s_add_u32 s93, s93, s{sCo}")
        k(f"v_lshrrev_b32 v{vd}, s{sSh}, v0")
        k(f"v_add_u32 v{vd}, s92, v{vd}")
        k(f"v_mul_lo_u32 v{vd}, v{vd}, s{sPi}")
        k(f"s_lshl_b32 s94, 1, s{sSh}")
        k("s_sub_u32 s94, s94, 1")
        k(f"v_and_b32 v31, s94, v0")
        k(f"v_lshl_add_u32 v{vd}, v31, 7, v{vd}")
        k(f"v_add_u32 v{vd}, s93, v{vd}")
        k(f"v_mov_b32 v31, {hex(OOB)}")
        k(f"v_cmp_gt_u32 vcc, s{sNL}, v0")
        k(f"v_cndmask_b32 v{vd}, v31, v{vd}, vcc")
    def pf_srd(d, ptrs, sizes):
        for c in range(2):
            k(f"s_mov_b32 s{d+c}, s{ptrs[0]+c}")
            for w in range(1, 4):
                if ptrs[w] != ptrs[w-1] or len(set(ptrs[:w+1])) > 1:
                    k(f"s_cmp_eq_u32 s77, {w}")
                    k(f"s_cselect_b32 s{d+c}, s{ptrs[w]+c}, s{d+c}")
        k(f"s_mov_b32 s{d+2}, {hex(sizes[0])}")
        for w in range(1, 4):
            k(f"s_cmp_eq_u32 s77, {w}")
            k(f"s_cselect_b32 s{d+2}, {hex(sizes[w])}, s{d+2}")
        k(f"s_mov_b32 s{d+3}, 0x00020000")
    PFON = OPT("PF", 1)
    vPF1, vPF2, vPFD = 30, 29, 254
    SPF1, SPF2 = 96, 68
    if PFON:
        pf_addr(vPF1, [(4, 2, 1024, 4, 0, 16), (4, 2, 3072, 4, 1024, 16), (4, 2, 3072, 4, 2048, 16), (4, 2, 3072, 4, 0, 16)])
    k("s_waitcnt lgkmcnt(0)")
    if STAMP: k("s_mov_b32 s79, s80")
    if PFON:
        pf_srd(SPF1, [P_W1, P_WQKV, P_WQKV, P_WQKV], [512*1024, 512*3072, 512*3072, 512*3072])
        k(f"buffer_load_dword v{vPFD}, v{vPF1}, {S(SPF1)}, 0 offen")
        B.stamp("@pf1i")
        pf_addr(vPF2, [(4, 4, 3584, 16, 0, 64), (14, 2, 1024, 4, 0, 56), (4, 2, 1024, 4, 0, 16), (4, 2, 1024, 4, 0, 16)])
        pf_srd(SPF1, [P_W3, P_W4, P_W2, P_WO], [512*3584, 1792*1024, 512*1024, 512*1024])
    srd(k, SX, P_X, 2*MB)
    srd(k, SWS, P_WS, WS_SIZE)
    srd(k, SW1, P_W1, 512*1024)
    srd(k, SW3, P_W3, 512*3584)
    srd(k, SDBG, P_DBG, 256)
    srd(k, SQKV, P_WQKV, 512*3072)
    srd(k, SW2, P_W2, 512*1024)
    srd(k, SW4, P_W4, 1792*1024)
    srd(k, SWO, P_WO, 512*1024)
    k(f"s_mov_b32 s{sBw}, s77")
    k("v_lshrrev_b32 v22, 3, v0")
    k("v_and_b32 v23, 7, v0")
    k("v_bfe_u32 v24, v0, 4, 1")
    k("v_lshlrev_b32 v24, 2, v24")
    k("v_xor_b32 v23, v23, v24")
    k("v_lshlrev_b32 v23, 4, v23")
    def wl(regs, pitch):
        k(f"v_mul_u32_u24 v{regs[0]}, {pitch}, v22")
        k(f"v_add_u32 v{regs[0]}, v{regs[0]}, v23")
        for j in range(1, 4):
            k(f"v_add_u32 v{regs[j]}, {j*(8*pitch - 1024)}, v{regs[0]}")
    wl(Wl1024, 1024)
    k(f"s_lshl_b32 s{sWb}, s{sBw}, 13")
    k(f"s_lshl_b32 s72, s{sN}, 7")
    k(f"s_lshl_b32 s73, s{sBw}, 16")
    k(f"s_add_u32 s{sRow1}, s73, s72")
    k(f"s_mul_i32 s73, s{sBw}, {64*3072}")
    k(f"s_add_u32 s{sRowQ}, s73, s72")
    def dma4(m0base, m0c, srdn, regs, sbase, const, tag, sc1=False):
        out = []
        for j in range(4):
            g = []
            if j == 0:
                g.append(f"s_add_u32 m0, s{m0base}, {m0c}")
                g.append(f"s_add_u32 s{sT0}, s{sbase}, {hex(const & 0xffffffff)}")
            r = regs[j] if isinstance(regs, list) else regs
            g.append(("vm", f"buffer_load_dwordx4 v{r}, {S(srdn)}, s{sT0} offen offset:{j*1024}" + (" sc1" if sc1 else "") + " lds", tag))
            out.append(("grp", g))
        return out
    def wfill(f, srdn, regs, sRow, const, pitch):
        sl = (f % 4)*SLOT
        return dma4(sWb, sl, srdn, regs, sRow, const, f"f{f}") + dma4(sWb, sl + 4096, srdn, regs, sRow, const + 32*pitch, f"f{f}")
    if PFON and OPT("PFW", 1): k("s_waitcnt vmcnt(0)")
    elif PFON: B.vq = ["pf1"]
    B.stamp("@pf1w")
    B.run(wfill(2, SW1, Wl1024, sRow1, 0, 1024))
    B.stamp("@f2i")
    B.run(wfill(3, SW1, Wl1024, sRow1, 256*1024, 1024))
    B.stamp("@f3i")
    if PFON: B.vm(f"buffer_load_dword v{vPFD}, v{vPF2}, {S(SPF1)}, 0 offen", "pf2")
    k(f"s_lshl_b32 s72, s{sBw}, 4")
    k("v_add_u32 v24, s72, v22")
    k("v_bfe_u32 v25, v24, 1, 3")
    k("v_and_b32 v26, 7, v0")
    k("v_xor_b32 v25, v25, v26")
    k("v_lshlrev_b32 v25, 4, v25")
    k(f"s_lshl_b32 s72, s{sM}, 6")
    k("v_add_u32 v24, s72, v24")
    k("v_lshl_add_u32 v24, v24, 10, v25")
    k(f"s_lshl_b32 s72, s{sN}, 7")
    k("v_add_u32 v24, s72, v24")
    k(f"s_lshl_b32 s72, s{sBw}, 11")
    k(f"s_add_u32 m0, s72, {XTR}")
    B.vm(f"buffer_load_dwordx4 v24, {S(SX)}, 0 offen lds", "xt")
    k("v_add_u32 v24, 8192 - 1024, v24")
    k("v_xor_b32 v24, 64, v24")
    B.vm(f"buffer_load_dwordx4 v24, {S(SX)}, 0 offen offset:1024 lds", "xt")
    vNc = 63
    k("v_mov_b32 v59, 0")
    B.vm(f"buffer_load_dword v{vNc}, v59, {S(SDBG)}, 0 offen sc1", "nc")
    wl(Wl3072, 3072)
    wl(Wl3584, 3584)
    vC3 = 24
    k("v_and_b32 v25, 7, v0")
    k("v_mul_u32_u24 v24, 3584, v22")
    k(f"v_lshl_add_u32 v{vC3}, v25, 4, v24")
    k(f"s_lshr_b32 s72, s{sM}, 2")
    k("s_lshl_b32 s72, s72, 2")
    k(f"s_add_u32 s{sCsP}, s72, s{sBw}")
    k(f"s_mul_i32 s73, s{sCsP}, {32*3584}")
    k(f"s_and_b32 s74, s{sM}, 3")
    k(f"s_lshl_b32 s75, s{sN}, 2")
    k(f"s_add_u32 s{sCsG}, s74, s75")
    k(f"s_lshl_b32 s74, s{sCsG}, 7")
    k("s_add_u32 s73, s73, s74")
    k(f"s_cmp_lt_u32 s{sM}, 16")
    k("s_cselect_b32 s75, 1, 0")
    k(f"s_cmp_lt_u32 s{sN}, 7")
    k("s_cselect_b32 s75, s75, 0")
    k("s_cmp_eq_u32 s75, 1")
    k(f"s_cselect_b32 s{sCsOOB}, 0, {hex(OOB)}")
    k("s_cselect_b32 s73, s73, 0")
    k(f"v_or_b32 v{vC3}, s{sCsOOB}, v{vC3}")
    k(f"s_lshl_b32 s72, s{sBw}, 12")
    k(f"s_add_u32 m0, s72, {ACCX}")
    for j in range(4):
        if j: k(f"v_add_u32 v{vC3}, {8*3584 - 1024}, v{vC3}")
        B.vm(f"buffer_load_dwordx4 v{vC3}, {S(SW3)}, s73 offen offset:{j*1024} lds", "cs3")
    k(f"v_lshlrev_b32 v{vLin}, 4, v0")
    k(f"v_lshlrev_b32 v{vP4}, 2, v0")
    k(f"s_lshl_b32 s72, s{sBw}, 12")
    k(f"s_add_u32 s72, s72, {ACCX}")
    k(f"v_add_u32 v{vAXb}, s72, v{vLin}")
    k(f"v_mov_b32 v{vFl0}, {hex(OOB)}")
    k("v_mov_b32 v24, 0")
    k("v_cmp_eq_u32 vcc, 0, v0")
    k(f"v_cndmask_b32 v{vFl0}, v{vFl0}, v24, vcc")
    k(f"s_lshl_b32 s72, s{sN}, 9")
    k(f"s_mul_i32 s73, s{sBw}, {64*3584}")
    k(f"s_add_u32 s{sRow3}, s73, s72")
    k(f"s_lshl_b32 s72, s{sCH}, 14")
    k(f"s_lshl_b32 s73, s{sTT}, 12")
    k(f"s_add_u32 s{sCb}, s72, s73")
    k(f"s_lshl_b32 s72, s{sN}, 7")
    k(f"s_lshl_b32 s73, s{sBw}, 15")
    k(f"s_add_u32 s{sRowC}, s73, s72")
    k(f"s_lshl_b32 s73, s{sTT}, 15")
    k("s_add_u32 s72, s72, s73")
    k(f"s_lshl_b32 s73, s{sCH}, 18")
    k(f"s_add_u32 s{sW4a}, s72, s73")
    k(f"s_mul_i32 s73, s{sCH}, {-1472*1024}")
    k(f"s_add_u32 s{sW4b}, s72, s73")
    k(f"s_lshl_b32 s{sTile}, s{sM}, 1")
    k(f"s_add_u32 s{sTile}, s{sTile}, s{sTT}")
    k(f"s_mul_i32 s72, s{sTile}, {112*1024}")
    k(f"s_add_u32 s72, s72, {hex(W_H3)}")
    k(f"s_lshl_b32 s73, s{sCH}, 14")
    k(f"s_add_u32 s{sH3a}, s72, s73")
    k(f"s_mul_i32 s73, s{sCH}, {-1472*64}")
    k(f"s_add_u32 s{sH3b}, s72, s73")
    k(f"s_lshl_b32 s73, s{sN}, 14")
    k("s_add_u32 s72, s72, s73")
    k(f"s_lshl_b32 s73, s{sCH}, 11")
    k(f"s_add_u32 s{sH3st}, s72, s73")
    k(f"s_lshl_b32 s72, s{sTile}, 15")
    k(f"s_lshl_b32 s73, s{sCH}, 12")
    k(f"s_add_u32 s{sHsrc}, s73, {hex(W_H)}")
    k("s_add_u32 s73, s73, s72")
    k(f"s_add_u32 s{sOb}, s73, {hex(W_O)}")
    k(f"s_lshl_b32 s73, s{sCH}, 13")
    k("s_add_u32 s73, s73, s72")
    k(f"s_add_u32 s{sX1b}, s73, {hex(W_X1)}")
    k(f"s_lshl_b32 s73, s{sN}, 12")
    k("s_add_u32 s72, s72, s73")
    k(f"s_lshl_b32 s73, s{sCH}, 11")
    k("s_add_u32 s72, s72, s73")
    k(f"s_add_u32 s{sHst}, s72, {hex(W_H)}")
    k(f"s_lshl_b32 s{sFidxB}, s{sM}, 5")
    k(f"s_lshl_b32 s72, s{sN}, 2")
    k(f"s_add_u32 s{sFidxB}, s{sFidxB}, s72")
    k(f"s_add_u32 s{sFidxB}, s{sFidxB}, s{sBw}")
    k(f"s_lshl_b32 s{sFidxB}, s{sFidxB}, 2")
    B.stamp("@P0C")
    k("s_branch B_MAIN")

    def get_nonce(vdst):
        L = k.newlabel("NC"); D = k.newlabel("ND")
        k(f"v_readfirstlane_b32 s{sNon}, v{vNc}")
        k(f"s_cmp_lg_u32 s{sNon}, 0")
        k(f"s_cbranch_scc1 {D}")
        k.label(L)
        k("v_mov_b32 v59, 0")
        k(f"buffer_load_dword v{vNc}, v59, {S(SDBG)}, 0 offen sc1")
        k("s_waitcnt vmcnt(0)")
        k(f"v_readfirstlane_b32 s{sNon}, v{vNc}")
        k(f"s_sub_u32 s{sSpin}, s{sSpin}, 1")
        k(f"s_cmp_le_i32 s{sSpin}, 0")
        k(f"s_cbranch_scc1 {D}")
        k(f"s_cmp_eq_u32 s{sNon}, 0")
        k(f"s_cbranch_scc1 {L}")
        k.label(D)
        k(f"v_mov_b32 v{vdst}, s{sNon}")

    P = A
    k.label("A_MAIN")
    k("s_waitcnt vmcnt(0) lgkmcnt(0)")
    get_nonce(vNonA)
    P.stamp()
    def wread(base, f, ks16, ring, second):
        sl = f % 4
        off = (sl & 1)*SLOT + ks16*2048
        d = WF + 4*(ring % 8)
        return [(f"ds_read_b64_tr_b16 {v(d,2)}, v{base[sl>>1]} offset:{off}", ("w", ring, 0)),
                (f"ds_read_b64_tr_b16 {v(d+2,2)}, v{base[sl>>1]} offset:{off + second}", ("w", ring, 1))]
    vMa, vArA, vBrA, vRiA = 12, 13, 14, 15
    sHstA, sEps, sH3A, sH3r, sFlg = 12, 13, 14, 15, 16
    def gelu8(a, c, pk, T1, vM, vAr, vBr, vRi):
        L = []
        if c is not None:
            for i in range(8): L.append(f"v_fma_f32 v{a+i}, -v{vM}, v{c+i}, v{a+i}")
        for i in range(8): L.append(f"v_mul_f32 v{T1+i}, v{a+i}, v{a+i}")
        for i in range(8): L.append(f"v_fma_f32 v{T1+i}, v{T1+i}, v{vBr}, v{vAr}")
        for i in range(8): L.append(f"v_mul_f32 v{T1+i}, v{T1+i}, v{a+i}")
        for i in range(8): L.append(f"v_exp_f32 v{T1+i}, v{T1+i}")
        for i in range(8): L.append(f"v_fma_f32 v{T1+i}, v{T1+i}, v{vRi}, v{vRi}")
        for i in range(8): L.append(f"v_rcp_f32 v{T1+i}, v{T1+i}")
        for i in range(8): L.append(f"v_mul_f32 v{a+i}, v{a+i}, v{T1+i}")
        for i in range(4): L.append(f"v_cvt_pk_bf16_f32 v{pk+i}, v{a+2*i}, v{a+2*i+1}")
        return L
    def aflag(off_const, tagwait, tag):
        return [("wvm", tagwait), f"s_add_u32 s{sFlg}, s{sFidx}, {hex(off_const)}",
                ("vm", f"buffer_store_dword v{vNonA}, v{vFl0A}, {S(SWS)}, s{sFlg} offen sc1", tag)]
    NOEPI = OPT("NOEPI", 0)
    steps = []; pre = {}
    for R, (f0, wfirst) in enumerate(((2, True), (4, False), (6, False))):
        for ks in range(32):
            G = 32*R + ks
            f = f0 + (ks >> 4)
            st = dict(reads=wread(vWn, f, ks & 15, G, 512), need=[("w", G, 1)])
            d = ACB if ks == 31 else ACA
            c = None if ks == 0 else ACA
            a_, b_ = (WF + 4*(G % 8), ACT + 4*ks)
            st["mfma"] = mf(d, a_, b_, c) if wfirst else mf(d, b_, a_, c)
            if R == 0: st["need"].append(("act", ks))
            if ks % 16 == 0: st["gate"] = {0: "B1", 16: "b3", 32: "b4", 48: "b5", 64: "b6", 80: "b7"}[G]
            steps.append(st)
    side = [(-3 + ks//2, f"ds_read_b128 {v(ACT+4*ks,4)}, v{xa[ks&3]} offset:{(ks >> 2)*8192}", ("act", ks)) for ks in range(32)]
    pre[7] = [("wds", ("act", 15)), ("bar", "Ba")]
    pre[16] = [("wds", ("act", 31)), ("bar", "Bb")]
    cst = [f"s_lshl_b32 s72, s{sTT}, 9", f"s_add_u32 s72, s72, {TAB_ST + 8}", f"v_lshl_add_u32 v31, v{vT31}, 4, s72",
           ("ds", "ds_read_b32 v4, v31", "rh"),
           f"s_add_u32 s{sHstA}, s{sFrag}, {hex(W_H)}", f"s_mov_b32 s{sEps}, {hx(EPS_PHI)}"]
    steps[17].setdefault("post", []).extend(cst)
    cst2 = [("wds", "rh"), f"v_mul_f32 v{vArA}, {hx(GA)}, v4", f"v_mul_f32 v{vBrA}, v4, v4", f"v_rcp_f32 v{vRiA}, v4",
            f"v_mul_f32 v{vBrA}, v{vBrA}, v4", f"v_mul_f32 v{vBrA}, {hx(GB)}, v{vBrA}"]
    steps[24].setdefault("post", []).extend(cst2)
    T1h, PKh = 64, 72
    eh = gelu8(ACB, None, PKh, T1h, vMa, vArA, vBrA, vRiA) + \
         [("vm", f"buffer_store_dwordx4 {v(PKh,4)}, v{vLinA}, {S(SWS)}, s{sHstA} offen sc1", "hst")] + \
         gelu8(ACB+8, None, PKh+4, T1h, vMa, vArA, vBrA, vRiA) + \
         [("vm", f"buffer_store_dwordx4 {v(PKh+4,4)}, v{vLinA}, {S(SWS)}, s{sHstA} offen offset:1024 sc1", "hst")]
    if NOEPI: eh = [o for o in eh if not isinstance(o, str)]
    spread(steps, eh, 32 + 2, 32 + OPT("HEND", 22))
    steps[OPT("F1POS", 64 + 8)].setdefault("post", []).extend(aflag(F1, "hst", "f1flag"))
    KT, PA_ = 64, 88
    ek = []
    for i in range(16): ek.append(f"v_mul_f32 v{KT+i}, {hx(LOG2E)}, v{ACB+i}")
    for i in range(16): ek.append(f"v_add_f32 v{ACB+i}, s{sEps}, v{ACB+i}")
    for i in range(16): ek.append(f"v_exp_f32 v{KT+i}, v{KT+i} clamp")
    for i in range(16): ek.append(f"v_max_f32 v{ACB+i}, s{sEps}, v{ACB+i}")
    for i in range(16): ek.append(f"v_add_f32 v{ACB+i}, v{ACB+i}, v{KT+i}")
    for i in range(8): ek.append(f"v_cvt_pk_bf16_f32 v{PA_+i}, v{ACB+2*i}, v{ACB+2*i+1}")
    if NOEPI: ek = []
    spread(steps, ek, 64 + 2, 64 + OPT("KEND", 24))
    stream(P, steps, lambda s: 3 if s < 12 else 6, 3, pre=pre, side=side)
    P.stamp()
    PB_, B0_, D0, D1 = 64, 72, 96, 112
    for i in range(8): P.raw(f"v_cvt_pk_bf16_f32 v{PB_+i}, v{ACB+2*i}, v{ACB+2*i+1}")
    P.raw(f"s_mov_b32 s{sMk}, 0x0000ffff")
    P.raw(f"s_mov_b32 s{sMk+1}, 0x0000ffff")
    for i in range(8): P.raw(f"v_cndmask_b32 v{B0_+i}, v{ONE}, v{PB_+i}, {S(sMk,2)}")
    for i in range(8): P.raw(f"v_cndmask_b32 v{PB_+i}, v{PB_+i}, v{ONE}, {S(sMk,2)}")
    P.raw(mf(D0, PA_, B0_, None))
    P.raw(mf(D1, PA_, PB_, None))
    P.raw(mf(D0, PA_+4, B0_+4, D0))
    P.raw(mf(D1, PA_+4, PB_+4, D1))
    P.raw(f"s_cmp_eq_u32 s{sTT}, 0")
    P.raw("s_cbranch_scc1 A_KV0")
    for i in range(8): P.raw(f"v_mov_b32 v{ACA+i}, v{D0+i}")
    for i in range(8): P.raw(f"v_mov_b32 v{ACA+8+i}, v{D1+8+i}")
    P.raw("s_branch A_KV1")
    P.label("A_KV0")
    for i in range(8): P.raw(f"v_mov_b32 v{ACA+i}, v{D1+8+i}")
    for i in range(8): P.raw(f"v_mov_b32 v{ACA+8+i}, v{D0+i}")
    P.label("A_KV1")
    P.ds(f"ds_write_b128 v{vAX}, {v(ACA,4)} offset:2048", "ex0")
    P.ds(f"ds_write_b128 v{vAX}, {v(ACA+4,4)} offset:3072", "ex1")
    P.raw(f"v_xor_b32 v31, 4096, v{vAX}")
    P.wds_all()
    P.bar("bK2")
    P.ds(f"ds_read_b128 {v(ACA,4)}, v31 offset:2048", "ex0")
    P.ds(f"ds_read_b128 {v(ACA+4,4)}, v31 offset:3072", "ex1")
    P.raw(f"s_add_u32 s72, s{sHead}, s{sTT}")
    P.raw("s_lshl_b32 s72, s72, 5")
    P.raw(f"s_add_u32 s72, s72, s{sM}")
    P.raw("s_lshl_b32 s73, s72, 11")
    P.raw(f"s_add_u32 s73, s73, {hex(W_KVP)}")
    P.raw(f"s_lshl_b32 s{sFkv}, s72, 2")
    P.raw(f"s_add_u32 s{sFkv}, s{sFkv}, {hex(FKV)}")
    P.wds_all()
    for i in range(8): P.raw(f"v_add_f32 v{ACA+i}, v{ACA+i}, v{ACA+8+i}")
    P.vm(f"buffer_store_dwordx4 {v(ACA,4)}, v{vLinA}, {S(SWS)}, s73 offen sc1", "kvp")
    P.vm(f"buffer_store_dwordx4 {v(ACA+4,4)}, v{vLinA}, {S(SWS)}, s73 offen offset:1024 sc1", "kvp")
    def xslice_reads(dst):
        L = []
        for g in range(4):
            if g == 0: L.append(("ds", f"ds_read_b64 {v(dst,2)}, v{vXR}", "xr"))
            else:
                L.append(f"v_xor_b32 v31, {16*g}, v{vXR}")
                L.append(("ds", f"ds_read_b64 {v(dst+2*g,2)}, v31", "xr"))
        return L
    def unpack_ops(dst, src, n=8):
        L = []
        for i in range(n):
            L.append(f"v_lshlrev_b32 v{dst+2*i}, 16, v{src+i}")
            L.append(f"v_and_b32 v{dst+2*i+1}, 0xffff0000, v{src+i}")
        return L
    XRr, STv = 64, 72
    P.run(xslice_reads(XRr))
    P.raw(f"s_lshl_b32 s72, s{sTT}, 9")
    P.raw(f"s_add_u32 s72, s72, {TAB_ST}")
    P.raw(f"v_lshl_add_u32 v31, v{vT31}, 4, s72")
    P.ds(f"ds_read_b64 {v(STv,2)}, v31", "st")
    P.wds_all()
    INI = ACB
    P.run(unpack_ops(INI, XRr))
    for i in range(16): P.raw(f"v_fma_f32 v{INI+i}, v{INI+i}, v{STv+1}, v{STv}")
    P.wvm("kvp")
    P.vm(f"buffer_store_dword v{vNonA}, v{vFl0A}, {S(SWS)}, s{sFkv} offen sc1", "fkv")
    P.stamp()
    def chunk_steps(f0, nch, G0, acc, init, gl=2):
        steps = []
        for c in range(nch):
            f = f0 + c; sl = f % 4
            for j in range(8):
                G = G0 + 8*c + j
                e, ks = j >> 2, j & 3
                off = (sl & 1)*SLOT + e*16384
                h = HF + 4*(G % 8); w = WF + 4*(G % 8)
                reads = [(f"ds_read_b128 {v(h,4)}, v{vHa[sl>>1]} offset:{off + ks*1024}", ("h", G)),
                         (f"ds_read_b64_tr_b16 {v(w,2)}, v{vWf[sl>>1]} offset:{off + ks*2048}", ("w", G, 0)),
                         (f"ds_read_b64_tr_b16 {v(w+2,2)}, v{vWf[sl>>1]} offset:{off + ks*2048 + 1024}", ("w", G, 1))]
                first = c == 0 and j == 0
                st = dict(reads=reads, need=[("w", G, 1)], mfma=mf(acc, w, h, (init if first else acc)))
                if j == 0: st["gate"] = f"b{f}"; st["gl"] = gl
                steps.append(st)
        return steps
    stream(P, chunk_steps(8, 4, 0, ACA, INI), lambda s: 4, 2)
    P.stamp()
    for i in range(8): P.raw(f"v_cvt_pk_bf16_f32 v{X1P+i}, v{ACA+2*i}, v{ACA+2*i+1}")
    P.raw(f"s_add_u32 s72, s{sFrag}, {hex(W_X1)}")
    P.vm(f"buffer_store_dwordx4 {v(X1P,4)}, v{vLinA}, {S(SWS)}, s72 offen sc1", "x1")
    P.vm(f"buffer_store_dwordx4 {v(X1P+4,4)}, v{vLinA}, {S(SWS)}, s72 offen offset:1024 sc1", "x1")
    P.raw("v_mov_b32 v64, 0")
    P.raw("v_mov_b32 v65, 0")
    for i in range(8):
        P.raw(f"v_dot2_f32_bf16 v64, v{X1P+i}, v{ONE}, v64")
        P.raw(f"v_dot2_f32_bf16 v65, v{X1P+i}, v{X1P+i}, v65")
    P.raw(f"s_lshl_b32 s72, s{sM}, 4")
    P.raw(f"s_lshl_b32 s73, s{sN}, 1")
    P.raw("s_add_u32 s72, s72, s73")
    P.raw(f"s_add_u32 s72, s72, s{sCH}")
    P.raw("s_lshl_b32 s72, s72, 1")
    P.raw(f"s_add_u32 s72, s72, s{sTT}")
    P.raw("s_lshl_b32 s72, s72, 8")
    P.raw(f"s_add_u32 s72, s72, {hex(W_ST)}")
    P.raw("v_permlane32_swap_b32 v64, v65")
    P.raw("v_add_f32 v64, v64, v65")
    P.vm(f"buffer_store_dword v64, v{vP4A}, {S(SWS)}, s72 offen sc1", "x1")
    P.raw(f"s_add_u32 s9, s{sFidx}, {hex(F2)}")
    steps = []; pre = {}
    for ks in range(32):
        f = 12 + (ks >> 4)
        st = dict(reads=wread(vWn, f, ks & 15, ks, 512), need=[("w", ks, 1)])
        st["mfma"] = mf(ACA, WF + 4*(ks % 8), ACT + 4*ks, None if ks == 0 else ACA)
        if ks % 16 == 0: st["gate"] = f"b{f}"
        steps.append(st)
    pre[OPT("F2POS", 16)] = [("wvm", "x1"), ("vm", f"buffer_store_dword v{vNonA}, v{vFl0A}, {S(SWS)}, s9 offen sc1", "f2")]
    stream(P, steps, lambda s: 6, 3, pre=pre)
    P.wds_all()
    P.bar("bQ")
    P.stamp()
    PQ = 64
    Q0, Q1 = 96, 112
    for i in range(16): P.raw(f"v_mul_f32 v{Q1+i}, {hx(LOG2E)}, v{ACA+i}")
    for i in range(16): P.raw(f"v_add_f32 v{Q0+i}, s{sEps}, v{ACA+i}")
    for i in range(16): P.raw(f"v_exp_f32 v{Q1+i}, v{Q1+i} clamp")
    for i in range(16): P.raw(f"v_max_f32 v{Q0+i}, s{sEps}, v{Q0+i}")
    for i in range(16): P.raw(f"v_add_f32 v{Q0+i}, v{Q0+i}, v{Q1+i}")
    for i in range(8): P.raw(f"v_cvt_pk_bf16_f32 v{PQ+i}, v{Q0+2*i}, v{Q0+2*i+1}")
    P.ds(f"ds_write_b128 v{vAX}, {v(PQ,4)}", "pq")
    P.ds(f"ds_write_b128 v{vAX}, {v(PQ+4,4)} offset:1024", "pq")
    P.raw(f"s_lshl_b32 s10, s{sHead}, 5")
    P.raw(f"s_add_u32 s10, s10, {hex(FKF)}")
    P.raw(f"s_lshl_b32 s11, s{sHead}, 10")
    P.raw(f"s_add_u32 s11, s11, {hex(W_KVF)}")
    vH3o = 4
    P.raw(f"s_mul_i32 s72, s{sTileA}, {112*1024}")
    P.raw(f"s_lshl_b32 s73, s{sN}, 14")
    P.raw("s_add_u32 s72, s72, s73")
    P.raw(f"s_lshl_b32 s73, s{sCH}, 11")
    P.raw("s_add_u32 s72, s72, s73")
    P.raw(f"s_add_u32 s{sH3A}, s72, {hex(W_H3)}")
    P.raw(f"s_cmp_eq_u32 s{sN}, 7")
    P.raw(f"s_cselect_b32 s72, {hex(OOB)}, 0")
    P.raw(f"v_or_b32 v{vH3o}, s72, v{vLinA}")
    vS2 = 16
    steps = []; pre = {}
    for r in range(4):
        for ks in range(32):
            G = 32*r + ks
            f = 16 + 2*r + (ks >> 4)
            st = dict(reads=wread(vWf, f, ks & 15, G, 1024), need=[("w", G, 1)])
            st["mfma"] = mf(ACB if ks == 31 else ACA, WF + 4*(G % 8), ACT + 4*ks, None if ks == 0 else ACA)
            if r == 0: st["need"].append(("act", ks))
            if ks % 16 == 0: st["gate"] = "b14" if G == 0 else f"b{f}"
            steps.append(st)
    AC6 = 240
    steps += chunk_steps(24, 14, 128, ACA, None) + chunk_steps(38, 4, 240, AC6, None)
    side = [(-3 + ks//2, f"ds_read_b128 {v(ACT+4*ks,4)}, v{vX1a} offset:{(ks >> 4)*32768 + (ks & 15)*1024}", ("act", ks)) for ks in range(32)]
    pre[7] = [("wds", ("act", 15)), ("bar", "Ba2")]
    pre[16] = [("wds", ("act", 31)), ("bar", "Bb2")]
    vCSa = 16
    steps[20].setdefault("post", []).extend(
        [f"s_lshl_b32 s72, s{sTT}, 9", f"s_add_u32 s72, s72, {TAB_S2}", f"v_lshl_add_u32 v31, v{vT31}, 4, s72",
         ("ds", f"ds_read_b128 {v(vMa,4)}, v31", "s2"),
         f"s_lshl_b32 s72, s{sCH}, 7", f"s_add_u32 s72, s72, {TAB_CS}", f"v_lshl_add_u32 v{vCSa}, v{vHf}, 4, s72"])
    def g4epi(r, CS, T1, PK):
        L = [("ds", f"ds_read_b128 {v(CS+4*g,4)}, v{vCSa} offset:{256*r + 32*g}", ("cs", r, g)) for g in range(4)]
        L += [f"s_add_u32 s{sH3r}, s{sH3A}, {4*r*1024}", ("wds", ("cs", r, 3), "s2")]
        g1 = gelu8(ACB, CS, PK, T1, vMa, vArA, vBrA, vRiA); g2 = gelu8(ACB+8, CS+8, PK+4, T1, vMa, vArA, vBrA, vRiA)
        if NOEPI: g1 = g2 = []
        L += g1 + [("vm", f"buffer_store_dwordx4 {v(PK,4)}, v{vH3o}, {S(SWS)}, s{sH3r} offen sc1", f"h3s{r}")]
        L += g2 + [("vm", f"buffer_store_dwordx4 {v(PK+4,4)}, v{vH3o}, {S(SWS)}, s{sH3r} offen offset:1024 sc1", f"h3s{r}")]
        return L
    GE = OPT("GEND", 24); F3P = OPT("F3POS", 40)
    for r in range(3):
        spread(steps, g4epi(r, 64, 80, 88), 32*(r+1) + 1, 32*(r+1) + GE)
        steps[32*(r+1) + F3P].setdefault("post", []).extend(aflag(F3 + r*4096, f"h3s{r}", f"f3f{r}"))
    spread(steps, g4epi(3, 192, 208, 216), 128 + 1, 128 + OPT("GEND3", 14))
    steps[128 + OPT("F3POS3", 28)].setdefault("post", []).extend(aflag(F3 + 3*4096, "h3s3", "f3f3"))
    vKf = 31
    KVF, PQ2, OD = 128, 136, 144
    steps[120].setdefault("post", []).append(("vm", f"buffer_load_dword v17, v{vP4A}, {S(SWS)}, s10 offen sc1", "kf"))
    def kf_check():
        if P.dead: return
        P.wvm("kf")
        saved = list(P.vq)
        OKL = k.newlabel("KFOK")
        P.raw(f"v_cmp_ne_u32 vcc, s{sNon}, v17")
        P.raw("s_and_b64 vcc, vcc, 0xffff")
        P.raw(f"s_cbranch_scc0 {OKL}")
        P.poll(17, vP4A, "s10", 0xffff, 0)
        P.label(OKL)
        P.vq = saved
        P.vm(f"buffer_load_dwordx4 {v(KVF,4)}, v{vLinA}, {S(SWS)}, s11 offen sc1", "kvf")
        P.vm(f"buffer_load_dwordx4 {v(KVF+4,4)}, v{vLinA}, {S(SWS)}, s11 offen offset:1024 sc1", "kvf")
    OJ = 128 + OPT("OJPOS", 14)
    steps[OJ].setdefault("post", []).append(("call", kf_check))
    pqr = [f"s_lshl_b32 s72, s{sWave}, 12", f"s_add_u32 s72, s72, {ACCX}", f"v_add_u32 v31, s72, v{vLinA}",
           ("ds", f"ds_read_b128 {v(PQ2,4)}, v31", "pq2"), ("ds", f"ds_read_b128 {v(PQ2+4,4)}, v31 offset:1024", "pq2")]
    steps[OJ+1].setdefault("post", []).extend(pqr)
    OM = OJ + OPT("OJM", 12)
    steps[OM].setdefault("post", []).extend([("wvm", "kvf"), ("wds", "pq2"), mf(OD, KVF, PQ2, None), mf(OD+16, KVF+4, PQ2+4, None)])
    oj = [f"v_add_f32 v{OD+8}, s{sEps}, v{OD+8}", f"v_add_f32 v{OD+16}, s{sEps}, v{OD+16}",
          f"v_rcp_f32 v{OD+8}, v{OD+8}", f"v_rcp_f32 v{OD+16}, v{OD+16}"]
    for i in range(8): oj.append(f"v_mul_f32 v{OD+i}, v{OD+i}, v{OD+8}")
    for i in range(8): oj.append(f"v_mul_f32 v{OD+24+i}, v{OD+24+i}, v{OD+16}")
    for i in range(4): oj.append(f"v_cvt_pk_bf16_f32 v{KVF+i}, v{OD+2*i}, v{OD+2*i+1}")
    for i in range(4): oj.append(f"v_cvt_pk_bf16_f32 v{KVF+4+i}, v{OD+24+2*i}, v{OD+24+2*i+1}")
    oj.append(f"s_add_u32 s72, s{sFrag}, {hex(W_O)}")
    oj.append(("vm", f"buffer_store_dwordx4 {v(KVF,4)}, v{vLinA}, {S(SWS)}, s72 offen sc1", "o"))
    oj.append(("vm", f"buffer_store_dwordx4 {v(KVF+4,4)}, v{vLinA}, {S(SWS)}, s72 offen offset:1024 sc1", "o"))
    steps[OM+2].setdefault("post", []).extend(oj[:14])
    steps[OM+3].setdefault("post", []).extend(oj[14:])
    steps[OM + OPT("FOPOS", 16)].setdefault("post", []).extend(aflag(FO, "o", "fo"))
    XF = 176; X1F = 192; vOut = 12; XT = 208
    misc = xslice_reads(XT) + unpack_ops(X1F, X1P) + [("wds", "xr")] + unpack_ops(XF, XT)
    misc += [f"s_lshl_b32 s72, s{sTileA}, 15", f"s_lshl_b32 s73, s{sHead}, 5", "s_add_u32 s72, s72, s73",
             f"v_lshl_add_u32 v{vOut}, v{vT31}, 10, s72", f"v_lshl_add_u32 v{vOut}, v{vHf}, 3, v{vOut}"]
    spread(steps, misc, 128 + 80, 128 + 100)
    E = 128; Gt = 144; BV = 160
    sil = []
    for i in range(16): sil.append(f"v_add_f32 v{BV+i}, v{ACA+i}, v{X1F+i}")
    for i in range(16): sil.append(f"v_mul_f32 v{E+i}, {hx(-LOG2E)}, v{BV+i}")
    for i in range(16): sil.append(f"v_exp_f32 v{E+i}, v{E+i}")
    for i in range(16): sil.append(f"v_add_f32 v{E+i}, 1.0, v{E+i}")
    for i in range(16): sil.append(f"v_rcp_f32 v{E+i}, v{E+i}")
    for i in range(16): sil.append(f"v_mul_f32 v{Gt+i}, v{BV+i}, v{E+i}")
    spread(steps, sil, 240 + 2, 240 + 30)
    for r in range(1, 4): pre.setdefault(32*r, []).append(("stamp",))
    stream(P, steps, lambda s: 3 if s < 12 else (6 if s < 122 else 4), 3, pre=pre, side=side)
    P.stamp()
    for i in range(16): P.raw(f"v_fma_f32 v{Gt+i}, v{Gt+i}, v{AC6+i}, v{XF+i}")
    for i in range(8): P.raw(f"v_cvt_pk_bf16_f32 v{E+i}, v{Gt+2*i}, v{Gt+2*i+1}")
    for g in range(4):
        P.vm(f"buffer_store_dwordx2 {v(E+2*g,2)}, v{vOut}, {S(SOUT)}, 0 offen offset:{g*16}", "out")
    P.finish()

    k.label("B_MAIN")
    P = B
    vM, vAr, vBr, vRi = 24, 25, 26, 27
    sPl = 86
    P.wvm("f2")
    k("s_waitcnt lgkmcnt(0)")
    P.stamp()
    P.bar("B1")
    P.bar("Ba")
    P.run(wfill(4, SQKV, Wl3072, sRowQ, 1024, 3072))
    P.wvm("f3")
    P.bar("b3")
    P.wvm("nc")
    if not P.dead: get_nonce(vNon)
    P.bar("Bb")
    P.run(wfill(5, SQKV, Wl3072, sRowQ, 1024 + 256*3072, 3072))
    P.run(wfill(6, SQKV, Wl3072, sRowQ, 2048, 3072))
    P.wvm("f4")
    P.stamp()
    P.bar("b4")
    P.run(wfill(7, SQKV, Wl3072, sRowQ, 2048 + 256*3072, 3072))
    P.wvm("cs3")
    P.raw("v_bfe_u32 v28, v0, 2, 2")
    P.raw(f"v_lshl_add_u32 v28, v{vHf}, 2, v28")
    P.raw("v_lshlrev_b32 v28, 7, v28")
    P.raw("v_bfe_u32 v29, v0, 4, 1")
    P.raw("v_lshl_add_u32 v28, v29, 5, v28")
    P.raw("v_and_b32 v29, 3, v0")
    P.raw("v_lshl_add_u32 v28, v29, 3, v28")
    P.raw(f"s_lshl_b32 s72, s{sBw}, 12")
    P.raw(f"s_add_u32 s72, s72, {ACCX}")
    P.raw("v_add_u32 v28, s72, v28")
    for ks in range(2):
        for n_ in range(2):
            d = 32 + 4*(2*ks + n_)
            P.ds(f"ds_read_b64_tr_b16 {v(d,2)}, v28 offset:{16*ks*128 + 64*n_}", "c")
            P.ds(f"ds_read_b64_tr_b16 {v(d+2,2)}, v28 offset:{(16*ks+8)*128 + 64*n_}", "c")
    P.raw("v_mov_b32 v48, 0")
    P.raw("v_mov_b32 v49, 0")
    P.raw("v_mov_b32 v50, 0x3f803f80")
    P.wds_all()
    for ks in range(2):
        for i in range(4):
            P.raw(f"v_dot2_f32_bf16 v48, v{32 + 8*ks + i}, v50, v48")
            P.raw(f"v_dot2_f32_bf16 v49, v{32 + 8*ks + 4 + i}, v50, v49")
    P.raw("v_permlane32_swap_b32 v48, v49")
    P.raw("v_add_f32 v48, v48, v49")
    P.raw(f"s_lshl_b32 s72, s{sCsG}, 12")
    P.raw(f"s_lshl_b32 s73, s{sCsP}, 8")
    P.raw("s_add_u32 s72, s72, s73")
    P.raw(f"s_add_u32 s72, s72, {hex(W_CS)}")
    P.raw(f"v_or_b32 v49, s{sCsOOB}, v{vP4}")
    P.vm(f"buffer_store_dword v48, v49, {S(SWS)}, s72 offen sc1", "cs3st")
    def chunkW(f, srdn, sbase, const):
        return dma4(sCb, (f % 4)*SLOT, srdn, Wl1024, sbase, const, f"f{f}")
    def chunkH(f, vreg, sbase, const):
        return dma4(sCb, (f % 4)*SLOT + 8192, SWS, vreg, sbase, const, f"f{f}", sc1=True)
    P.wvm("f5"); P.bar("b5")
    P.run(chunkW(8, SW2, sRowC, 0))
    P.raw(f"s_lshl_b32 s72, s{sN}, 6")
    P.raw(f"s_and_b32 s73, s{sM}, 3")
    P.raw("s_lshl_b32 s73, s73, 4")
    P.raw("s_add_u32 s72, s72, s73")
    P.raw(f"s_add_u32 s72, s72, s{sCsP}")
    P.raw("s_lshl_b32 s72, s72, 2")
    P.raw(f"s_add_u32 s{sSt}, s72, {hex(CSF)}")
    P.raw(f"v_or_b32 v31, s{sCsOOB}, v{vFl0}")
    P.wvm("f6", "cs3st")
    P.vm(f"buffer_store_dword v{vNon}, v31, {S(SWS)}, s{sSt} offen sc1", "csf")
    P.bar("b6")
    P.run(chunkW(9, SW2, sRowC, 128*1024))
    P.wvm("f7"); P.bar("b7")
    P.run(chunkW(10, SW2, sRowC, 256*1024))
    P.raw(f"s_cmp_eq_u32 s{sM}, 0")
    P.raw(f"s_cselect_b32 s{sMk}, 0xffff0000, -1")
    P.raw(f"s_cmp_eq_u32 s{sM}, 31")
    P.raw(f"s_cselect_b32 s{sMk+1}, 0, 0xffff")
    P.raw(f"v_lshlrev_b32 v28, 3, v0")
    P.raw(f"s_lshl_b32 s{sT1}, s{sM}, 7")
    P.raw(f"s_add_u32 s{sT1}, s{sT1}, {hex(F1 - 128)}")
    for g, d in enumerate((-1, 1, -2, 2)):
        P.raw(f"s_lshl_b32 s72, s{sTile}, 5")
        P.raw(f"s_add_u32 s72, s72, {hex(d & 0xffffffff)}")
        P.raw(f"v_add_u32 v36, s72, v{vT31}")
        P.raw("v_ashrrev_i32 v29, 5, v36")
        P.raw("v_lshlrev_b32 v29, 15, v29")
        P.raw("v_and_b32 v30, 31, v36")
        P.raw("v_lshl_add_u32 v29, v30, 4, v29")
        P.raw(f"v_lshl_add_u32 v29, v{vHf}, 9, v29")
        P.raw(f"v_cmp_gt_u32 vcc, 0x800, v36")
        P.raw(f"v_mov_b32 v30, {hex(OOB)}")
        P.raw(f"v_cndmask_b32 v{32+g}, v30, v29, vcc")
    if OPT("F1EARLY", 1):
        P.poll(30, 28, f"s{sT1}", None, None, width=2)
        P.stamp()
        for g in range(3): P.run(chunkH(8 + g, 32 + g, sHsrc, 8*g*1024))
        P.bar("bK2")
        P.run(chunkW(11, SW2, sRowC, 384*1024))
        P.run(chunkH(11, 35, sHsrc, 24*1024))
    else:
        P.bar("bK2")
        P.run(chunkW(11, SW2, sRowC, 384*1024))
        P.poll(30, 28, f"s{sT1}", None, None, width=2)
        P.stamp()
        for g in range(4): P.run(chunkH(8 + g, 32 + g, sHsrc, 8*g*1024))
    P.wvm("f8"); P.stamp(); P.bar("b8")
    P.wvm("f9"); P.bar("b9")
    P.run(wfill(12, SQKV, Wl3072, sRowQ, 0, 3072))
    P.wvm("f10"); P.bar("b10")
    P.run(wfill(13, SQKV, Wl3072, sRowQ, 256*3072, 3072))
    P.wvm("f11"); P.bar("b11")
    P.wvm("f12"); P.bar("b12")
    P.wvm("f13"); P.bar("b13")
    P.run(wfill(16, SW3, Wl3584, sRow3, 0, 3584))
    XS, CL = 96, 112
    P.raw(f"s_lshl_b32 s{sT1}, s{sN}, 8")
    P.raw(f"s_add_u32 s{sT1}, s{sT1}, {hex(CSF)}")
    P.raw(f"s_cmp_eq_u32 s{sN}, 7")
    P.raw(f"s_cselect_b32 s{sMk}, 0, -1")
    P.raw(f"s_mov_b32 s{sMk+1}, s{sMk}")
    P.bar("bQ")
    P.run(wfill(17, SW3, Wl3584, sRow3, 256*3584, 3584))
    P.poll(30, vP4, f"s{sT1}", None, None)
    P.raw(f"s_lshl_b32 s72, s{sN}, 2")
    P.raw(f"s_add_u32 s72, s72, s{sBw}")
    P.raw("s_lshl_b32 s72, s72, 12")
    P.raw(f"s_add_u32 s72, s72, {hex(W_CS)}")
    for p in range(16):
        P.vm(f"buffer_load_dword v{CL+p}, v{vP4}, {S(SWS)}, s72 offen offset:{p*256} sc1", "cl")
    P.raw(f"s_lshl_b32 s{sT1}, s{sM}, 7")
    P.raw(f"s_add_u32 s{sT1}, s{sT1}, {hex(F2)}")
    P.poll(30, vP4, f"s{sT1}", 0xffffffff, 0)
    P.stamp()
    for hh in range(2):
        f = 14 + hh
        P.raw(f"s_lshl_b32 s72, s{sTT}, 14")
        P.raw(f"s_lshl_b32 s73, s{sCH}, 13")
        P.raw(f"s_add_u32 s{sT2}, s72, s73")
        P.run(dma4(sT2, (f % 4)*SLOT, SWS, vLin, sX1b, 16*hh*1024, f"f{f}", sc1=True))
        P.run(dma4(sT2, (f % 4)*SLOT + 4096, SWS, vLin, sX1b, 16*hh*1024 + 4096, f"f{f}", sc1=True))
    P.raw(f"s_lshl_b32 s72, s{sM}, 13")
    P.raw(f"s_lshl_b32 s73, s{sTT}, 8")
    P.raw("s_add_u32 s72, s72, s73")
    P.raw(f"s_add_u32 s72, s72, {hex(W_ST)}")
    P.raw("s_add_u32 s73, s72, 4096")
    for p in range(16):
        P.vm(f"buffer_load_dword v{XS+p}, v{vP4}, {S(SWS)}, s{72 + (p >> 3)} offen offset:{(p & 7)*512} sc1", "xs")
    for w_ in (8, 4, 2, 1):
        for i in range(w_): P.raw(f"v_add_f32 v{CL+i}, v{CL+i}, v{CL+w_+i}")
    P.raw(f"s_lshl_b32 s72, s{sBw}, 8")
    P.raw(f"s_add_u32 s72, s72, {TAB_CS}")
    P.raw(f"v_add_u32 v28, s72, v{vP4}")
    P.ds(f"ds_write_b32 v28, v{CL}", "csw")
    P.wvm("f15"); P.stamp(); P.bar("b14")
    P.wvm("xs")
    for w_ in (8, 4, 2, 1):
        for i in range(w_): P.raw(f"v_add_f32 v{XS+i}, v{XS+i}, v{XS+w_+i}")
    P.raw(f"v_mov_b32 v{XS+1}, v{XS}")
    P.raw(f"v_permlane32_swap_b32 v{XS}, v{XS+1}")
    P.raw(f"v_mul_f32 v{vM}, {hx(1.0/512)}, v{XS}")
    P.raw(f"v_mul_f32 v{XS+1}, {hx(1.0/512)}, v{XS+1}")
    P.raw(f"v_fma_f32 v{XS+1}, -v{vM}, v{vM}, v{XS+1}")
    P.raw(f"v_max_f32 v{XS+1}, 0, v{XS+1}")
    P.raw(f"v_add_f32 v{XS+1}, {hx(EPS_LN)}, v{XS+1}")
    P.raw(f"v_rsq_f32 v{XS+2}, v{XS+1}")
    P.raw(f"v_sqrt_f32 v{vRi}, v{XS+1}")
    P.raw(f"v_mul_f32 v{vAr}, {hx(GA)}, v{XS+2}")
    P.raw(f"v_mul_f32 v{vBr}, v{XS+2}, v{XS+2}")
    P.raw(f"v_mul_f32 v{vBr}, v{vBr}, v{XS+2}")
    P.raw(f"v_mul_f32 v{vBr}, {hx(GB)}, v{vBr}")
    P.raw(f"s_lshl_b32 s72, s{sTT}, 9")
    P.raw(f"s_add_u32 s72, s72, {TAB_S2}")
    P.raw(f"v_lshl_add_u32 v28, v{vT31}, 4, s72")
    P.ds(f"ds_write_b128 v28, {v(vM,4)}", "s2w")
    P.wds_all()
    P.bar("Ba2")
    P.run(wfill(18, SW3, Wl3584, sRow3, 128, 3584))
    P.wvm("f17"); P.bar("b17")
    KP = 128; vKr = 37; vKo = 38
    P.raw(f"s_cmp_eq_u32 s{sBw}, 0")
    P.raw(f"s_cselect_b32 s87, 0, {hex(OOB)}")
    P.raw(f"s_cselect_b32 s88, -1, 0")
    P.raw(f"s_lshl_b32 s89, s{sM}, 7")
    P.raw(f"s_add_u32 s89, s89, {hex(FKV)}")
    P.vm(f"buffer_load_dword v39, v{vP4}, {S(SWS)}, s89 offen sc1", "kp")
    P.raw("v_lshrrev_b32 v28, 4, v0")
    P.raw("v_lshlrev_b32 v28, 11, v28")
    P.raw("v_bfe_u32 v29, v0, 3, 1")
    P.raw("v_lshl_add_u32 v28, v29, 10, v28")
    P.raw("v_and_b32 v30, 7, v0")
    P.raw("v_lshl_add_u32 v28, v30, 4, v28")
    P.raw(f"s_lshl_b32 s72, s{sN}, 7")
    P.raw("v_add_u32 v28, s72, v28")
    P.raw(f"v_or_b32 v{vKr}, s87, v28")
    P.raw("v_lshlrev_b32 v30, 4, v30")
    P.raw("v_lshl_add_u32 v30, v29, 3, v30")
    P.raw("v_add_u32 v30, s72, v30")
    P.raw(f"v_mov_b32 v29, {hex(OOB)}")
    P.raw("v_cmp_gt_u32 vcc, 16, v0")
    P.raw("v_cndmask_b32 v30, v29, v30, vcc")
    P.raw(f"v_or_b32 v{vKo}, s87, v30")
    P.bar("Bb2")
    P.run(wfill(19, SW3, Wl3584, sRow3, 128 + 256*3584, 3584))
    P.run(wfill(20, SW3, Wl3584, sRow3, 256, 3584))
    def acheck(tag, vreg, soff, mlo, mhi_, preset=False):
        if P.dead: return
        P.wvm(tag)
        saved = list(P.vq)
        OKL = k.newlabel("AOK")
        if not preset:
            P.raw(f"s_mov_b32 s{sMk}, {hex(mlo)}"); P.raw(f"s_mov_b32 s{sMk+1}, {hex(mhi_)}")
        P.raw(f"v_cmp_ne_u32 vcc, s{sNon}, v{vreg}")
        P.raw(f"s_and_b64 vcc, vcc, {S(sMk,2)}")
        P.raw(f"s_cbranch_scc0 {OKL}")
        P.poll(vreg, vP4, soff, None, None)
        P.label(OKL)
        P.vq = saved
    P.wvm("f18"); P.bar("b18")
    P.raw(f"s_mov_b32 s{sMk}, s88"); P.raw(f"s_mov_b32 s{sMk+1}, 0")
    acheck("kp", 39, "s89", None, None, preset=True)
    P.raw(f"s_lshl_b32 s72, s{sM}, 16")
    P.raw(f"s_add_u32 s72, s72, {hex(W_KVP)}")
    for i in range(8):
        if i: P.raw("s_add_u32 s72, s72, 8192")
        P.vm(f"buffer_load_dwordx4 {v(KP+4*i,4)}, v{vKr}, {S(SWS)}, s72 offen sc1", "kl")
    P.run(wfill(21, SW3, Wl3584, sRow3, 256 + 256*3584, 3584))
    P.wvm("f19"); P.bar("b19")
    P.run(wfill(22, SW3, Wl3584, sRow3, 384, 3584))
    P.wvm("kl")
    for w_ in (4, 2, 1):
        for j in range(w_):
            for i in range(4): P.raw(f"v_add_f32 v{KP+4*j+i}, v{KP+4*j+i}, v{KP+4*(j+w_)+i}")
    for op in ("v_permlane32_swap_b32", "v_permlane16_swap_b32"):
        for i in range(4): P.raw(f"v_mov_b32 v{KP+4+i}, v{KP+i}")
        for i in range(4): P.raw(f"{op} v{KP+i}, v{KP+4+i}")
        for i in range(4): P.raw(f"v_add_f32 v{KP+i}, v{KP+i}, v{KP+4+i}")
    for i in range(2): P.raw(f"v_cvt_pk_bf16_f32 v{KP+8+i}, v{KP+2*i}, v{KP+2*i+1}")
    P.raw(f"s_lshl_b32 s72, s{sM}, 10")
    P.raw(f"s_add_u32 s72, s72, {hex(W_KVF)}")
    P.vm(f"buffer_store_dwordx2 {v(KP+8,2)}, v{vKo}, {S(SWS)}, s72 offen sc1", "kvf")
    P.wvm("f20"); P.bar("b20")
    P.run(wfill(23, SW3, Wl3584, sRow3, 384 + 256*3584, 3584))
    def g5W(c):
        alt = c in (3, 10)
        return chunkW(24 + c, SW4, sW4b if alt else sW4a, F0(2*c)*1024)
    def g5H(c):
        alt = c in (3, 10)
        return chunkH(24 + c, vLin, sH3b if alt else sH3a, F0(2*c)*64)
    def pl_issue(base, reg, sreg, tag):
        P.raw(f"s_lshl_b32 s{sreg}, s{sM}, 7")
        P.raw(f"s_add_u32 s{sreg}, s{sreg}, {hex(base)}")
        P.vm(f"buffer_load_dword v{reg}, v{vP4}, {S(SWS)}, s{sreg} offen sc1", tag)
    P.wvm("f21"); P.bar("b21")
    P.run(g5W(0))
    P.raw(f"s_lshl_b32 s72, s{sM}, 3")
    P.raw(f"s_add_u32 s72, s72, s{sN}")
    P.raw("s_lshl_b32 s72, s72, 2")
    P.raw(f"s_add_u32 s72, s72, {hex(FKF)}")
    P.raw(f"v_or_b32 v28, s87, v{vFl0}")
    P.wvm("kvf")
    P.vm(f"buffer_store_dword v{vNon}, v28, {S(SWS)}, s72 offen sc1", "fkf")
    P.wvm("f22"); P.bar("b22")
    P.run(g5W(1))
    pl_issue(F3, 40, 90, "pl0")
    P.wvm("f23"); P.stamp(); P.bar("b23")
    acheck("pl0", 40, "s90", 0x0fffffff, 0)
    P.run(g5H(0)); P.run(g5H(1)); P.run(g5W(2)); P.run(g5H(2))
    HISS = {nx: nx - 3 for nx in range(3, 18)}
    HISS[3] = OPT("H3ISS", 1)
    need_r = {3: 1, 7: 2, 10: 3, 14: 4}
    for c in range(18):
        f = 24 + c
        P.wvm(f"f{f}"); P.bar(f"b{f}")
        for nx, r in need_r.items():
            if HISS[nx] - 1 == c or (HISS[nx] == 0 and c == 0):
                pl_issue(F3 + r*4096 if r < 4 else FO, 40 + r, 90 + r, f"pl{r}")
        nxw = c + 3
        hl = [nx for nx in range(3, 18) if HISS[nx] == c]
        for nx in hl:
            if nx < nxw:
                if nx in need_r:
                    r = need_r[nx]; acheck(f"pl{r}", 40 + r, f"s{90+r}", 0x0fffffff if r < 4 else 0xffffffff, 0)
                P.run(g5H(nx))
        if nxw < 14: P.run(g5W(nxw))
        elif nxw < 18: P.run(chunkW(24 + nxw, SWO, sRowC, 128*(nxw-14)*1024))
        for nx in hl:
            if nx >= nxw:
                if nx in need_r:
                    r = need_r[nx]; acheck(f"pl{r}", 40 + r, f"s{90+r}", 0x0fffffff if r < 4 else 0xffffffff, 0)
                if nx < 14: P.run(g5H(nx))
                else: P.run(chunkH(24 + nx, vLin, sOb, 8*(nx-14)*1024))
        if c == 13: P.stamp()
    P.finish()
    k.label("P_END")
    k("s_endpgm")
    a_main = A.bars; b_main = B.bars
    if a_main != b_main:
        print("BARRIER MISMATCH"); print(a_main); print(b_main); raise SystemExit(1)
    return k

HDR = open("cdna_kernels/" + NAME + ".s.ref").read().split("\n")
def build():
    lines = []
    for l in HDR:
        if not l.startswith(";"): break
        if "@launch" in l: continue
        lines.append(l)
    lines.append(f"; @launch grid=(256,1,1) block=(512,1,1) lds={LDS}")
    lines.append('.amdgcn_target "amdgcn-amd-amdhsa--gfx950"')
    k = gen()
    k.fix_hazards(verbose=OPT("V", 0))
    return "\n".join(lines) + "\n" + header(KN) + k.text() + descriptor(KN)

if __name__ == "__main__":
    open(sys.argv[1], "w").write(build())
    if STAMP:
        import json; json.dump(NAMES, open(sys.argv[1] + ".names.json", "w"))
```

```python
import sys, os, copy
sys.path.insert(0, "gen")
from common import *

KN = NAME + "_kernel"
SLOT = 32768
ACCX, XTR, TAB = 131072, 147456, 155648
TAB_ST, TAB_CS, TAB_S2 = TAB, TAB + 1024, TAB + 2048
LDS = 163840
W_H, W_X1, W_O, W_H3, W_KVP, W_KVF, W_ST, W_CS, W_FL, W_STAMP = [x*MB for x in (2, 4, 6, 10, 18, 20, 21, 22, 23, 32)]
WS_SIZE = 40*MB
F1, F2, F3, FO, FKV, FKF, CSF = [W_FL + x for x in (128, 8192, 12288, 28672, 32768, 36864, 40960)]
OOB = 0x7f000000
STOP = OPT("STOP", "")
STAMP = OPT("STAMP", 0)
STFROM = OPT("STFROM", "")
import re
STSKIP = OPT("STSKIP", "")
SPIN = 1 << 16

sWave, sM, sN, sNon, sTT, sCH = 26, 27, 28, 29, 30, 31
sG, sIdx = 84, 85
SX, SQKV, SW1, SW2, SW3, SW4, SWO, SWS, SOUT, SDBG = 32, 36, 40, 44, 48, 52, 56, 60, 64, 68
sT0, sT1, sT2, sT3, sT4, sT5, sSpin = 72, 73, 74, 75, 76, 77, 78
sMk = 80
def S(n, c=4): return f"s[{n}:{n+c-1}]"

NAMES = {}
class Prog:
    def __init__(self, k, name):
        self.k = k; self.name = name
        self.dq = []; self.vq = []; self.bars = []
        self.dead = False; self.nst = 0; self.names = []; self.sv = 5 if name[0] == 'A' else 255; self.st_on = False
    def fork(self, name):
        p = Prog(self.k, name)
        p.dq = list(self.dq); p.vq = list(self.vq); p.bars = []; p.dead = self.dead; p.nst = self.nst; p.names = list(self.names); p.st_on = self.st_on
        return p
    def raw(self, t):
        if not self.dead: self.k(t)
    def label(self, l):
        if not self.dead: self.k.label(l)
    def ds(self, t, tag=None):
        if self.dead: return
        if len(self.dq) >= 15: self._wds(len(self.dq) - 15)
        self.k(t); self.dq.append(tag)
    def _wds(self, i):
        n = len(self.dq) - 1 - i
        self.k(f"s_waitcnt lgkmcnt({n})"); self.dq = self.dq[i+1:]
    def wds(self, *tags):
        if self.dead: return
        idx = [i for i, t in enumerate(self.dq) if t in tags]
        if idx: self._wds(max(idx))
    def wds_all(self):
        if self.dead: return
        if self.dq: self._wds(len(self.dq) - 1)
    def vm(self, t, tag=None):
        if self.dead: return
        self.k(t); self.vq.append(tag)
    def wvm(self, *tags):
        if self.dead: return
        idx = [i for i, t in enumerate(self.vq) if t in tags]
        if not idx: return
        i = max(idx); n = len(self.vq) - 1 - i
        self.k(f"s_waitcnt vmcnt({min(n, 63)})")
        if n <= 63: self.vq = self.vq[i+1:]
        else: self.vq = self.vq[len(self.vq)-63:]
    def wvm_all(self):
        if self.dead: return
        self.k("s_waitcnt vmcnt(0)"); self.vq = []
    def tmark(self, name):
        DM = OPT("TMK", "").split(",")
        if self.dead or self.name[0] != "B" or name not in DM: return
        slot = 4 + DM.index(name)
        k = self.k
        k("s_memrealtime s[82:83]")
        k("s_waitcnt lgkmcnt(0)"); self.dq = []
        k(f"v_mov_b32 v255, s82")
        self.vm(f"buffer_store_dword v255, v253, {S(SDBG)}, 0 offen offset:{4*slot}", "tm")
    def bar(self, name):
        if self.dead: return
        if name == STOP:
            self.finish(); return
        if STAMP == 2: self.stamp("@" + name)
        self.tmark(name)
        self.k(f"s_barrier ; {name}"); self.bars.append(name)
    def stamp(self, name=None):
        if self.dead or not STAMP: return
        if STAMP == 2 and not (name or "").startswith("@"): return
        if STSKIP and re.fullmatch(STSKIP, name or ""): return
        if STFROM and not self.st_on:
            if name == STFROM: self.st_on = True
            else: return
        i = self.nst; self.nst += 1
        assert i < 60, "too many stamps"
        self.names.append(name or f"s{i}")
        if (self.name[0] == "B" and not OPT("SPF", 1)) or OPT("STEX", 0):
            if i == 0: self.k(f"v_writelane_b32 v{self.sv}, s82, 0")
            self.k("s_memtime s[82:83]")
            self.k("s_waitcnt lgkmcnt(0)")
            self.k(f"v_writelane_b32 v{self.sv}, s82, {i+1}")
            self.dq = []
        else:
            self.k(f"v_writelane_b32 v{self.sv}, s82, {i}")
            self.k("s_memtime s[82:83]")
    def finish(self):
        if self.dead: return
        self.k("s_waitcnt vmcnt(0) lgkmcnt(0)")
        if OPT("TMK", "") and self.name[0] == "B":
            self.tmark("end")
            self.k("v_mov_b32 v254, s79")
            self.k(f"buffer_store_dword v254, v253, {S(SDBG)}, 0 offen offset:12")
            self.k("s_not_b32 s79, s79")
            self.k("v_mov_b32 v254, s79")
            self.k(f"buffer_atomic_umax v254, v252, {S(SDBG)}, 0 offen offset:4 sc1")
            self.k(f"buffer_atomic_umax v255, v252, {S(SDBG)}, 0 offen offset:8 sc1")
            self.k("s_waitcnt vmcnt(0)")
        self.flush_stamps()
        self.k("s_branch P_END")
        self.dead = True
    def flush_stamps(self):
        if not STAMP: return
        k = self.k; i = self.nst
        NAMES[self.name] = list(self.names) + ["end"]
        k("s_waitcnt lgkmcnt(0)")
        k(f"v_writelane_b32 v{self.sv}, s82, {i}")
        k("s_memtime s[82:83]")
        k("s_waitcnt lgkmcnt(0)")
        k(f"v_writelane_b32 v{self.sv}, s82, {i+1}")
        k("s_memrealtime s[82:83]")
        k("s_waitcnt lgkmcnt(0)")
        k(f"v_writelane_b32 v{self.sv}, s82, 62")
        k(f"v_writelane_b32 v{self.sv}, s79, 63")
        k("s_lshl_b32 s72, s2, 11")
        k(f"s_lshl_b32 s73, s{sWave}, 8")
        k("s_add_u32 s72, s72, s73")
        k(f"s_add_u32 s72, s72, {hex(W_STAMP)}")
        k("v_lshlrev_b32 v1, 2, v0")
        k(f"buffer_store_dword v{self.sv}, v1, {S(SWS)}, s72 offen")
        k("s_waitcnt vmcnt(0)")
    def emit(self, op):
        if isinstance(op, str): self.raw(op); return
        kind = op[0]
        if kind == "ds": self.ds(op[1], op[2] if len(op) > 2 else None)
        elif kind == "vm": self.vm(op[1], op[2] if len(op) > 2 else None)
        elif kind == "wds": self.wds(*op[1:])
        elif kind == "wvm": self.wvm(*op[1:])
        elif kind == "bar": self.bar(op[1])
        elif kind == "stamp": self.stamp(op[1] if len(op) > 1 else None)
        elif kind == "call": op[1]()
        elif kind == "grp":
            for o in op[1]: self.emit(o)
        else: raise ValueError(op)
    def run(self, ops):
        for o in ops: self.emit(o)
    def poll(self, vdst, voff, soff, mlo, mhi, width=1):
        if self.dead: return
        k = self.k
        L = k.newlabel("PL"); D = k.newlabel("PD")
        if mlo is not None:
            k(f"s_mov_b32 s{sMk}, {hex(mlo)}"); k(f"s_mov_b32 s{sMk+1}, {hex(mhi)}")
        k.label(L)
        sfx = {1: "dword", 2: "dwordx2"}[width]
        k(f"buffer_load_{sfx} {v(vdst, width)}, v{voff}, {S(SWS)}, {soff} offen sc1")
        k("s_waitcnt vmcnt(0)")
        k(f"v_cmp_ne_u32 vcc, s{sNon}, v{vdst}")
        if width == 2:
            k(f"v_cmp_ne_u32 s[{sT4}:{sT5}], s{sNon}, v{vdst+1}")
            k(f"s_or_b64 vcc, vcc, s[{sT4}:{sT5}]")
        k(f"s_and_b64 vcc, vcc, {S(sMk,2)}")
        k(f"s_cbranch_scc0 {D}")
        k(f"s_sub_u32 s{sSpin}, s{sSpin}, 1")
        k(f"s_cmp_gt_i32 s{sSpin}, 0")
        k(f"s_cbranch_scc1 {L}")
        k.label(D)
        self.vq = []

def interleave(main, extra, start=0, end=None):
    main = list(main)
    if not extra: return main
    end = len(main) if end is None else min(end, len(main))
    n = max(end - start, 1)
    out = main[:start]
    step = n / len(extra); j = 0
    for i, o in enumerate(main[start:end]):
        while j < len(extra) and j*step <= i:
            out.append(extra[j]); j += 1
        out.append(o)
    out += extra[j:]
    out += main[end:]
    return out

def stream(P, steps, la, GL, pre=None, side=None, side_rate=2):
    pre = pre or {}
    side = list(side or [])
    n = len(steps); nxt = 0; lastw = None
    s = -la(0)
    WM = OPT("WMERGE", 2); WAGE = OPT("WAGE", 3)
    issued = {}
    while s < n:
        for o in pre.get(s, []): P.emit(o)
        cnt = 0
        while nxt < n and nxt <= s + la(s) and cnt < 4:
            st = steps[nxt]
            if st.get("gate"):
                if nxt > 0 and s < nxt - st.get("gl", GL): break
                if lastw is not None: P.wds(lastw)
                for o in st.get("gpre", []): P.emit(o)
                P.bar(st["gate"])
            for t, tag in st["reads"]:
                P.ds(t, tag); lastw = tag; issued[tag] = s
            nxt += 1; cnt += 1
        c = 0
        while side and c < side_rate and side[0][0] <= s and nxt > 0:
            _, t, tag = side.pop(0); P.ds(t, tag); c += 1; issued[tag] = s
        if s >= 0:
            need = list(steps[s]["need"])
            if any(t in P.dq for t in need):
                for j in range(1, WM):
                    if s + j < n:
                        for t in steps[s + j]["need"]:
                            if t in issued and s - issued[t] >= WAGE: need.append(t)
            P.wds(*need)
            P.raw(steps[s]["mfma"])
            for o in steps[s].get("post", []): P.emit(o)
        s += 1
    assert not side

TRANS_OPS = ("v_exp_f32", "v_rcp_f32", "v_rsq_f32", "v_sqrt_f32", "v_log_f32")
def opcost(o):
    if isinstance(o, str):
        if o.startswith(TRANS_OPS): return 8
        if o.startswith("v_mfma"): return 8
        return 4
    if o[0] in ("wds", "wvm", "stamp"): return 0
    if o[0] == "vm": return 8
    if o[0] == "grp": return sum(opcost(x) for x in o[1])
    return 4

def spread(steps, ops, s0, s1):
    n = s1 - s0
    if not OPT("WSPREAD", 1):
        for j, o in enumerate(ops):
            steps[s0 + (j*n)//len(ops)].setdefault("post", []).append(o)
        return
    tot = sum(opcost(o) for o in ops); acc = 0
    for o in ops:
        j = min(n - 1, int((acc + opcost(o)/2) * n / max(tot, 1)))
        steps[s0 + j].setdefault("post", []).append(o)
        acc += opcost(o)

def mf(d, a, b, c):
    return f"v_mfma_f32_32x32x16_bf16 {v(d,16)}, {v(a,4)}, {v(b,4)}, " + ("0" if c is None else v(c,16))

def F0(g): return 256*(g % 7) + 64*(g // 7)

def gen():
    k = Kern()
    vT31, vHf = 1, 2
    k("s_cmp_ge_u32 s2, 256")
    k("s_cbranch_scc1 P_END")
    k("s_load_dwordx16 s[4:19], s[0:1], 0")
    k("s_load_dwordx4 s[20:23], s[0:1], 64")
    k("s_load_dwordx2 s[24:25], s[0:1], 80")
    if STAMP or OPT("TMK", ""):
        k("s_memrealtime s[80:81]")
    if STAMP:
        k("s_memtime s[82:83]")
    k("v_lshrrev_b32 v1, 6, v0")
    k("v_and_b32 v0, 63, v0")
    k("v_mov_b32 v3, 0")
    k(f"v_readfirstlane_b32 s{sWave}, v1")
    k("s_and_b32 s72, s2, 7")
    k("s_lshr_b32 s73, s2, 3")
    k("s_lshr_b32 s74, s72, 1")
    k("s_lshl_b32 s74, s74, 3")
    k("s_lshr_b32 s75, s73, 2")
    k(f"s_add_u32 s{sM}, s74, s75")
    k("s_and_b32 s74, s72, 1")
    k("s_lshl_b32 s74, s74, 2")
    if OPT("NROT", 0): k(f"s_add_u32 s73, s73, {OPT('NROT', 0)}")
    k("s_and_b32 s75, s73, 3")
    k(f"s_add_u32 s{sN}, s74, s75")
    k(f"s_and_b32 s{sTT}, s{sWave}, 1")
    k(f"s_bfe_u32 s{sCH}, s{sWave}, 0x10001")
    k(f"s_mov_b32 s{sSpin}, {SPIN}")
    k(f"v_and_b32 v{vT31}, 31, v0")
    k(f"v_lshrrev_b32 v{vHf}, 5, v0")
    k(f"s_and_b32 s{sG}, s2, 7")
    k(f"s_lshr_b32 s{sIdx}, s2, 3")
    vXg, vXW, vST0, vNc = 60, (61, 62), 58, 63
    X = 64
    k("v_lshrrev_b32 v6, 4, v0")
    k("v_and_b32 v7, 15, v0")
    k(f"s_lshl_b32 s72, s{sWave}, 3")
    k("v_add_u32 v6, s72, v6")
    k("v_lshrrev_b32 v9, 3, v7")
    k("v_lshlrev_b32 v9, 13, v9")
    k("v_and_b32 v10, 7, v7")
    for j in range(2):
        k(f"v_add_u32 v8, {4*j}, v6")
        k("v_bfe_u32 v11, v8, 1, 3")
        k("v_xor_b32 v11, v10, v11")
        k("v_lshl_add_u32 v11, v11, 4, v9")
        k(f"v_lshl_add_u32 v{vXW[j]}, v8, 7, v11")
    k(f"v_lshlrev_b32 v{vST0}, 4, v6")
    k(f"v_add_u32 v{vST0}, {TAB_ST}, v{vST0}")
    k(f"s_lshl_b32 s72, s{sM}, 6")
    k("v_add_u32 v6, s72, v6")
    k("v_lshlrev_b32 v6, 10, v6")
    k(f"v_lshl_add_u32 v{vXg}, v7, 4, v6")
    k("s_movk_i32 s71, 0x1000")
    k("v_mov_b32 v128, 0x3f803f80")
    k("v_mov_b32 v59, 0")
    k(f"s_cmp_ge_u32 s{sWave}, 4")
    k("s_cbranch_scc1 B_PRE")
    A = Prog(k, "A"); B = Prog(k, "B")
    def xloads(P):
        srd(k, SX, P_X, 2*MB)
        for j in range(2):
            for i in range(4):
                P.vm(f"buffer_load_dwordx4 {v(X+16*j+4*i,4)}, v{vXg}, {S(SX)}, {'s71' if j else '0'} offen offset:{256*i}", f"x{j}")
    def p0_group(P, j):
        XJ = X + 16*j; ones = 128
        P.wvm(f"x{j}")
        P.stamp("@P0C" if j == 0 else "@P0D")
        sm = [130, 131]; sq = [132, 133]
        for i in range(16):
            P.raw(f"v_dot2_f32_bf16 v{sm[i&1]}, v{XJ+i}, v{ones}, " + ("0" if i < 2 else f"v{sm[i&1]}"))
            P.raw(f"v_dot2_f32_bf16 v{sq[i&1]}, v{XJ+i}, v{XJ+i}, " + ("0" if i < 2 else f"v{sq[i&1]}"))
        T = 144
        for i in range(2):
            for jj in range(4):
                P.raw(f"v_lshlrev_b32 v{T+8*i+2*jj}, 16, v{XJ+4*i+jj}")
                P.raw(f"v_and_b32 v{T+8*i+2*jj+1}, 0xffff0000, v{XJ+4*i+jj}")
        P.raw("v_add_f32 v130, v130, v131")
        P.raw("v_add_f32 v132, v132, v133")
        for dpp in ("quad_perm:[1,0,3,2]", "quad_perm:[2,3,0,1]", "row_half_mirror", "row_mirror"):
            P.raw(f"v_add_f32_dpp v130, v130, v130 {dpp} row_mask:0xf bank_mask:0xf")
            P.raw(f"v_add_f32_dpp v132, v132, v132 {dpp} row_mask:0xf bank_mask:0xf")
        P.raw(f"v_mul_f32 v130, {hx(1.0/512)}, v130")
        P.raw(f"v_mul_f32 v132, {hx(1.0/512)}, v132")
        P.raw("v_fma_f32 v132, -v130, v130, v132")
        P.raw("v_max_f32 v132, 0, v132")
        P.raw(f"v_add_f32 v133, {hx(EPS_LN)}, v132")
        P.raw("v_rsq_f32 v137, v133")
        P.raw("v_mov_b32 v139, 0")
        P.raw("v_mul_f32 v136, v130, v137")
        P.raw("v_sub_f32 v136, 0, v136")
        P.raw("v_mul_f32 v138, v137, v137")
        P.raw("v_mul_f32 v138, v138, v132")
        P.raw(f"v_add_f32 v138, {hx(EPS_LN)}, v138")
        P.raw("v_rsq_f32 v138, v138")
        for i in range(4):
            t = T + 8*(i & 1)
            if i >= 2:
                for jj in range(4):
                    P.raw(f"v_lshlrev_b32 v{t+2*jj}, 16, v{XJ+4*i+jj}")
                    P.raw(f"v_and_b32 v{t+2*jj+1}, 0xffff0000, v{XJ+4*i+jj}")
            for jj in range(4): P.raw(f"v_pk_fma_f32 v[{t+2*jj}:{t+2*jj+1}], v[{t+2*jj}:{t+2*jj+1}], v[136:137], v[136:137] op_sel:[0,1,0] op_sel_hi:[1,1,0]")
            for jj in range(4): P.raw(f"v_cvt_pk_bf16_f32 v{XJ+4*i+jj}, v{t+2*jj}, v{t+2*jj+1}")
            P.ds(f"ds_write_b128 v{vXW[j]}, {v(XJ+4*i,4)} offset:{16384*i}", "xw")
        P.ds(f"ds_write_b128 v{vST0}, v[136:139] offset:{64*j}", "xw")
    k("s_waitcnt lgkmcnt(0)")
    if STAMP or OPT("TMK", ""): k("s_mov_b32 s79, s80")
    xloads(A)
    if OPT("SPF1", 0):
        k(f"s_lshl_b32 s72, s{sIdx}, 2")
        k(f"s_add_u32 s72, s72, s{sWave}")
        k("s_lshl_b32 s72, s72, 12")
        k(f"s_and_b32 s73, s{sG}, 1")
        k("s_lshl_b32 s73, s73, 9")
        k("s_add_u32 s72, s72, s73")
        k(f"s_add_u32 s86, s{P_W1}, s72")
        k(f"s_addc_u32 s87, s{P_W1+1}, 0")
        for r in range(4):
            for c in range(8): k(f"s_load_dword s{88 + ((8*r + c) & 7)}, s[86:87], {r*1024 + c*64}")
    srd(k, SDBG, P_DBG, 256)
    k(f"s_or_b32 s73, s2, s{sWave}")
    k("s_cmp_lg_u32 s73, 0")
    k("s_cbranch_scc1 P_NON")
    k("s_memrealtime s[74:75]")
    k("v_mov_b32 v6, 0")
    k("s_waitcnt lgkmcnt(0)")
    k("s_or_b32 s74, s74, 1")
    k("v_mov_b32 v7, s74")
    k("s_mov_b64 exec, 1")
    k(f"buffer_store_dword v7, v6, {S(SDBG)}, 0 offen sc1")
    k("s_mov_b64 exec, -1")
    k.label("P_NON")
    A.vm(f"buffer_load_dword v{vNc}, v59, {S(SDBG)}, 0 offen sc1", "nc")
    srd(k, SWS, P_WS, WS_SIZE)
    srd(k, SOUT, P_OUT, 2*MB)

    vWn, vWf, vHa = (6, 7), (8, 9), (10, 11)
    xa = [12, 13, 14, 15]
    vX1a, vAX, vXR, vNonA, vFl0A, vLinA = 16, 17, 18, 19, 20, 21
    X1P, ONE = 22, 30
    vP4A = 3
    ACA, ACB, HF, WF, ACT = 32, 48, 64, 96, 128
    k("v_bfe_u32 v3, v0, 2, 2")
    k("v_and_b32 v4, 3, v0")
    k("v_bfe_u32 v5, v0, 4, 1")
    k(f"s_lshl_b32 s72, s{sCH}, 2")
    k("v_lshrrev_b32 v30, 1, v4")
    k("v_lshl_add_u32 v30, v5, 1, v30")
    k("v_add_u32 v30, s72, v30")
    k("v_lshrrev_b32 v31, 1, v3")
    k("v_lshlrev_b32 v31, 2, v31")
    k("v_xor_b32 v30, v30, v31")
    k("v_lshlrev_b32 v30, 4, v30")
    k("v_and_b32 v31, 1, v4")
    k("v_lshl_add_u32 v30, v31, 3, v30")
    k(f"v_lshl_add_u32 v31, v{vHf}, 3, v3")
    k(f"v_lshl_add_u32 v{vWn[0]}, v31, 7, v30")
    k(f"v_add_u32 v{vWn[1]}, 0x10000, v{vWn[0]}")
    k(f"v_lshl_add_u32 v31, v{vHf}, 2, v3")
    k(f"v_lshl_add_u32 v{vWf[0]}, v31, 7, v30")
    k(f"v_add_u32 v{vWf[1]}, 0x10000, v{vWf[0]}")
    k(f"v_lshlrev_b32 v{vLinA}, 4, v0")
    k(f"s_lshl_b32 s72, s{sTT}, 12")
    k("s_add_u32 s72, s72, 8192")
    k(f"v_add_u32 v{vHa[0]}, s72, v{vLinA}")
    k(f"v_add_u32 v{vHa[1]}, 0x10000, v{vHa[0]}")
    k(f"v_bfe_u32 v30, v{vT31}, 1, 3")
    k(f"v_xor_b32 v30, v30, v{vHf}")
    k("v_lshlrev_b32 v30, 4, v30")
    k(f"v_lshl_add_u32 v{xa[0]}, v{vT31}, 7, v30")
    k(f"s_lshl_b32 s72, s{sTT}, 12")
    k(f"v_add_u32 v{xa[0]}, s72, v{xa[0]}")
    for j in range(1, 4): k(f"v_xor_b32 v{xa[j]}, {32*j}, v{xa[0]}")
    k(f"s_lshl_b32 s72, s{sTT}, 14")
    k("s_add_u32 s72, s72, 0x10000")
    k(f"v_add_u32 v{vX1a}, s72, v{vLinA}")
    k(f"s_lshl_b32 s72, s{sWave}, 12")
    k(f"s_add_u32 s72, s72, {ACCX}")
    k(f"v_add_u32 v{vAX}, s72, v{vLinA}")
    k(f"s_lshl_b32 s72, s{sTT}, 5")
    k(f"v_add_u32 v30, s72, v{vT31}")
    k("v_bfe_u32 v31, v30, 1, 3")
    k(f"s_lshl_b32 s72, s{sCH}, 2")
    k("v_xor_b32 v31, s72, v31")
    k("v_lshlrev_b32 v31, 4, v31")
    k("v_lshl_add_u32 v31, v30, 7, v31")
    k(f"v_lshl_add_u32 v31, v{vHf}, 3, v31")
    k(f"v_add_u32 v{vXR}, {XTR}, v31")
    k(f"v_mov_b32 v{vFl0A}, {hex(OOB)}")
    k("v_mov_b32 v30, 0")
    k("v_cmp_eq_u32 vcc, 0, v0")
    k(f"v_cndmask_b32 v{vFl0A}, v{vFl0A}, v30, vcc")
    k(f"v_lshlrev_b32 v{vP4A}, 2, v0")
    k(f"v_mov_b32 v{ONE}, 0x3f803f80")
    sHead, sFkv, sTileA, sFrag, sFidx = 4, 5, 6, 7, 8
    k(f"s_lshl_b32 s{sHead}, s{sN}, 2")
    k(f"s_lshl_b32 s72, s{sCH}, 1")
    k(f"s_add_u32 s{sHead}, s{sHead}, s72")
    k(f"s_lshl_b32 s{sTileA}, s{sM}, 1")
    k(f"s_add_u32 s{sTileA}, s{sTileA}, s{sTT}")
    k(f"s_lshl_b32 s72, s{sTileA}, 15")
    k(f"s_lshl_b32 s73, s{sHead}, 10")
    k(f"s_add_u32 s{sFrag}, s72, s73")
    k(f"s_lshl_b32 s{sFidx}, s{sM}, 5")
    k(f"s_lshl_b32 s72, s{sN}, 2")
    k(f"s_add_u32 s{sFidx}, s{sFidx}, s72")
    k(f"s_add_u32 s{sFidx}, s{sFidx}, s{sWave}")
    k(f"s_lshl_b32 s{sFidx}, s{sFidx}, 2")
    if STAMP: k("v_mov_b32 v5, 0")
    p0_group(A, 0)
    p0_group(A, 1)
    k("s_branch A_MAIN")

    k.label("B_PRE")
    sWb, sRowQ, sRow1, sRow3, sCb, sRowC, sW4a, sW4b, sH3a, sH3b, sOb, sX1b, sHst, sH3st, sBw, sTile = range(4, 20)
    sCsP, sCsOOB, sCsG, sFidxB, sHsrc, sSt = 20, 21, 22, 23, 24, 25
    Wl3072, Wl1024, Wl3584 = [4, 5, 6, 7], [8, 9, 10, 11], [12, 13, 14, 15]
    vLin, vAXb, vHs, vNon, vFl0, vP4 = 16, 17, 18, 19, 20, 21
    k(f"s_sub_u32 s77, s{sWave}, 4")
    if STAMP: k("v_mov_b32 v255, 0")
    if OPT("TMK", ""):
        k(f"v_mov_b32 v252, {hex(OOB)}")
        k("v_mov_b32 v253, 0")
        k("v_cmp_eq_u32 vcc, 0, v0")
        k("v_cndmask_b32 v253, v252, v253, vcc")
        k(f"s_cmp_eq_u32 s{sWave}, 4")
        k(f"s_cselect_b32 s72, 0, {hex(OOB)}")
        k("v_or_b32 v252, s72, v253")
        k(f"s_cmp_eq_u32 s2, {OPT('TMWG', 59)}")
        k(f"s_cselect_b32 s72, 0, {hex(OOB)}")
        k("v_or_b32 v253, s72, v252")
    vPFD = 254
    sBw_ = 77
    def pf(P, srdn, pitch, nmat, complete, colstep=1024, col0=0, nl=4, half=512, rows=512, tag="pf"):
        nw = 128 if complete else 512
        per = rows*nl // nw
        assert per*nw == rows*nl and per*nmat <= 64
        P.raw(f"s_lshl_b32 s72, s{sIdx}, 2")
        P.raw(f"s_add_u32 s72, s72, s{sBw_}")
        if not complete:
            P.raw(f"s_lshr_b32 s73, s{sG}, 1")
            P.raw("s_lshl_b32 s73, s73, 7")
            P.raw("s_add_u32 s72, s72, s73")
        P.raw(f"s_mul_i32 s72, s72, {per}")
        if nmat > 1:
            assert per & (per - 1) == 0
            sh = per.bit_length() - 1
            P.raw(f"v_lshrrev_b32 v29, {sh}, v0")
            P.raw(f"v_and_b32 v28, {per-1}, v0")
        else:
            P.raw("v_mov_b32 v28, v0")
        P.raw("v_add_u32 v28, s72, v28")
        lsh = nl.bit_length() - 1
        assert 1 << lsh == nl
        P.raw(f"v_lshrrev_b32 v30, {lsh}, v28")
        P.raw(f"v_and_b32 v28, {nl-1}, v28")
        P.raw("v_lshlrev_b32 v28, 7, v28")
        P.raw(f"s_movk_i32 s73, {pitch}")
        P.raw("v_mad_u32_u24 v28, v30, s73, v28")
        if nmat > 1:
            P.raw(f"s_movk_i32 s73, {colstep}")
            P.raw("v_mad_u32_u24 v28, v29, s73, v28")
        P.raw(f"s_and_b32 s73, s{sG}, 1")
        P.raw(f"s_mul_i32 s73, s73, {half}")
        if col0: P.raw(f"s_add_u32 s73, s73, {col0}")
        P.raw(f"v_mov_b32 v30, {hex(OOB)}")
        P.raw(f"v_cmp_gt_u32 vcc, {per*nmat}, v0")
        P.raw("v_cndmask_b32 v28, v30, v28, vcc")
        P.vm(f"buffer_load_dword v{vPFD}, v28, {srdn}, s73 offen", tag)
    def pfs(P, at):
        for name, dflt, fn in (("PFW1", "A:c", lambda c: pf(P, S(SW1), 1024, 1, c)),
                               ("PFKV", "B:c", lambda c: pf(P, S(SQKV), 3072, 2, c, col0=1024)),
                               ("PFQ", "D:d", lambda c: pf(P, S(SQKV), 3072, 1, c)),
                               ("PFW2", "D:d", lambda c: pf(P, S(SW2), 1024, 1, c)),
                               ("PFW3", "E:d", lambda c: pf(P, S(SW3), 3584, 1, c, nl=16, half=2048)),
                               ("PFW4", "E:d", lambda c: pf(P, S(SW4), 1024, 1, c, rows=2048 if False else 1792)),
                               ("PFWO", "E:d", lambda c: pf(P, S(SWO), 1024, 1, c))):
            if OPT("SPF", 1) and name in OPT("SPFM", "Q,W2,W3,W4,WO").replace("Q", "PFQ").replace("W", "PFW").split(","): continue
            o = OPT(name, dflt)
            if o and o.split(":")[0] == at: fn(o.split(":")[1] == "c")
    spq = []
    def spf_setup(P):
        if not OPT("SPF", 1): return
        P.raw(f"s_lshl_b32 s98, s{sIdx}, 2")
        P.raw(f"s_add_u32 s98, s98, s{sBw}")
        P.raw(f"s_lshr_b32 s72, s{sG}, 1")
        P.raw("s_lshl_b32 s72, s72, 7")
        P.raw("s_add_u32 s98, s98, s72")
        P.raw(f"s_and_b32 s99, s{sG}, 1")
        ms = OPT("SPFM", "Q,W2,W3,W4,WO").split(",")
        ents = {e[0]: e for e in (("W2", SW2, 1024, 512, 88, [64*j for j in range(8)]),
                                                ("Q", SQKV, 3072, 512, 86, [64*j for j in range(8)]),
                                                ("W3", SW3, 3584, 1536, 90, [64*j for j in range(32)]),
                                                ("W4", SW4, 4096, 512, 92, [1024*r + 64*j for r in range(4) for j in range(8)]),
                                                ("WO", SWO, 1024, 512, 94, [64*j for j in range(8)]))}
        for nm, sr, pitch, hoff, base, offs in [ents[x] for x in OPT("SPFORD", "W2,Q,W3,W4,WO").split(",")]:
            if nm not in ms: continue
            if nm == "W4":
                P.raw("s_min_u32 s73, s98, 447")
                P.raw(f"s_mul_i32 s72, s73, {pitch}")
            else:
                P.raw(f"s_mul_i32 s72, s98, {pitch}")
            P.raw(f"s_mul_i32 s73, s99, {hoff}")
            P.raw("s_add_u32 s72, s72, s73")
            P.raw(f"s_add_u32 s{base}, s{sr}, s72")
            P.raw(f"s_addc_u32 s{base+1}, s{sr+1}, 0")
            spq.extend((base, o_) for o_ in offs)
    def spf(P, cnt=None):
        cnt = OPT("SPFN", 8) if cnt is None else cnt
        for _ in range(min(cnt, len(spq))):
            b, o_ = spq.pop(0)
            P.raw(f"s_load_dword s96, s[{b}:{b+1}], {hex(o_)}")
    k("v_lshrrev_b32 v22, 3, v0")
    k("v_and_b32 v23, 7, v0")
    k("v_bfe_u32 v24, v0, 4, 1")
    k("v_lshlrev_b32 v24, 2, v24")
    k("v_xor_b32 v23, v23, v24")
    k("v_lshlrev_b32 v23, 4, v23")
    def wl(regs, pitch):
        k(f"v_mul_u32_u24 v{regs[0]}, {pitch}, v22")
        k(f"v_add_u32 v{regs[0]}, v{regs[0]}, v23")
        for j in range(1, 4):
            k(f"v_add_u32 v{regs[j]}, {j*(8*pitch - 1024)}, v{regs[0]}")
    wl(Wl1024, 1024)
    wl(Wl3072, 3072)
    wl(Wl3584, 3584)
    k("s_waitcnt lgkmcnt(0)")
    if STAMP or OPT("TMK", ""): k("s_mov_b32 s79, s80")
    xloads(B)
    srd(k, SW1, P_W1, 512*1024)
    srd(k, SQKV, P_WQKV, 512*3072)
    srd(k, SWS, P_WS, WS_SIZE)
    srd(k, SW3, P_W3, 512*3584)
    srd(k, SDBG, P_DBG, 256)
    srd(k, SW2, P_W2, 512*1024)
    srd(k, SW4, P_W4, 1792*1024)
    srd(k, SWO, P_WO, 512*1024)
    pfs(B, "A")
    B.stamp("@pf1i")
    k(f"s_mov_b32 s{sBw}, s77")
    k(f"s_lshl_b32 s{sWb}, s{sBw}, 13")
    k(f"s_lshl_b32 s72, s{sN}, 7")
    if OPT("HACKN3", 0) == 2:
        k(f"s_cmp_eq_u32 s{sN}, 3")
        k("s_cselect_b32 s72, 256, s72")
    k(f"s_lshl_b32 s73, s{sBw}, 16")
    k(f"s_add_u32 s{sRow1}, s73, s72")
    k(f"s_mul_i32 s73, s{sBw}, {64*3072}")
    k(f"s_add_u32 s{sRowQ}, s73, s72")
    def dma4(m0base, m0c, srdn, regs, sbase, const, tag, sc1=False):
        out = []
        for j in range(4):
            g = []
            if j == 0:
                g.append(f"s_add_u32 m0, s{m0base}, {m0c}")
                g.append(f"s_add_u32 s{sT0}, s{sbase}, {hex(const & 0xffffffff)}")
            r = regs[j] if isinstance(regs, list) else regs
            g.append(("vm", f"buffer_load_dwordx4 v{r}, {S(srdn)}, s{sT0} offen offset:{j*1024}" + (" sc1" if sc1 else "") + " lds", tag))
            out.append(("grp", g))
        return out
    def wfill(f, srdn, regs, sRow, const, pitch):
        sl = (f % 4)*SLOT
        return dma4(sWb, sl, srdn, regs, sRow, const, f"f{f}") + dma4(sWb, sl + 4096, srdn, regs, sRow, const + 32*pitch, f"f{f}")
    k(f"s_lshr_b32 s72, s{sM}, 2")
    k("s_lshl_b32 s72, s72, 2")
    k(f"s_add_u32 s{sCsP}, s72, s{sBw}")
    k(f"s_and_b32 s74, s{sM}, 3")
    k(f"s_lshl_b32 s75, s{sN}, 2")
    k(f"s_add_u32 s{sCsG}, s74, s75")
    k(f"s_cmp_lt_u32 s{sM}, 16")
    k("s_cselect_b32 s75, 1, 0")
    k(f"s_cmp_lt_u32 s{sN}, 7")
    k("s_cselect_b32 s75, s75, 0")
    k("s_cmp_eq_u32 s75, 1")
    k(f"s_cselect_b32 s{sCsOOB}, 0, {hex(OOB)}")
    def cs3_dma(P):
        vC3 = 24
        P.raw("v_lshrrev_b32 v22, 3, v0")
        P.raw("v_and_b32 v25, 7, v0")
        P.raw("v_mul_u32_u24 v24, 3584, v22")
        P.raw(f"v_lshl_add_u32 v{vC3}, v25, 4, v24")
        P.raw(f"s_mul_i32 s73, s{sCsP}, {32*3584}")
        P.raw(f"s_lshl_b32 s74, s{sCsG}, 7")
        P.raw("s_add_u32 s73, s73, s74")
        P.raw(f"s_cmp_eq_u32 s{sCsOOB}, 0")
        P.raw("s_cselect_b32 s73, s73, 0")
        P.raw(f"v_or_b32 v{vC3}, s{sCsOOB}, v{vC3}")
        P.raw(f"s_lshl_b32 s72, s{sBw}, 12")
        P.raw(f"s_add_u32 m0, s72, {ACCX}")
        for j in range(4):
            if j: P.raw(f"v_add_u32 v{vC3}, {8*3584 - 1024}, v{vC3}")
            P.vm(f"buffer_load_dwordx4 v{vC3}, {S(SW3)}, s73 offen offset:{j*1024} lds", "cs3")
    def xtr_dma(P):
        P.raw("v_lshrrev_b32 v22, 3, v0")
        P.raw(f"s_lshl_b32 s72, s{sBw}, 4")
        P.raw("v_add_u32 v24, s72, v22")
        P.raw("v_bfe_u32 v25, v24, 1, 3")
        P.raw("v_and_b32 v26, 7, v0")
        P.raw("v_xor_b32 v25, v25, v26")
        P.raw("v_lshlrev_b32 v25, 4, v25")
        P.raw(f"s_lshl_b32 s72, s{sM}, 6")
        P.raw("v_add_u32 v24, s72, v24")
        P.raw("v_lshl_add_u32 v24, v24, 10, v25")
        P.raw(f"s_lshl_b32 s72, s{sN}, 7")
        P.raw("v_add_u32 v24, s72, v24")
        P.raw(f"s_lshl_b32 s72, s{sBw}, 11")
        P.raw(f"s_add_u32 m0, s72, {XTR}")
        P.vm(f"buffer_load_dwordx4 v24, {S(SX)}, 0 offen lds", "xt")
        P.raw("v_add_u32 v24, 8192 - 1024, v24")
        P.raw("v_xor_b32 v24, 64, v24")
        P.vm(f"buffer_load_dwordx4 v24, {S(SX)}, 0 offen offset:1024 lds", "xt")
    k(f"v_lshlrev_b32 v{vLin}, 4, v0")
    k(f"v_lshlrev_b32 v{vP4}, 2, v0")
    k(f"s_lshl_b32 s72, s{sBw}, 12")
    k(f"s_add_u32 s72, s72, {ACCX}")
    k(f"v_add_u32 v{vAXb}, s72, v{vLin}")
    k(f"v_mov_b32 v{vFl0}, {hex(OOB)}")
    k("v_mov_b32 v24, 0")
    k("v_cmp_eq_u32 vcc, 0, v0")
    k(f"v_cndmask_b32 v{vFl0}, v{vFl0}, v24, vcc")
    k(f"s_lshl_b32 s72, s{sN}, 9")
    k(f"s_mul_i32 s73, s{sBw}, {64*3584}")
    k(f"s_add_u32 s{sRow3}, s73, s72")
    k(f"s_lshl_b32 s72, s{sCH}, 14")
    k(f"s_lshl_b32 s73, s{sTT}, 12")
    k(f"s_add_u32 s{sCb}, s72, s73")
    k(f"s_lshl_b32 s72, s{sN}, 7")
    if OPT("HACKN3", 0) in (1, 2):
        k(f"s_cmp_eq_u32 s{sN}, 3")
        k("s_cselect_b32 s72, 256, s72")
    k(f"s_lshl_b32 s73, s{sBw}, 15")
    k(f"s_add_u32 s{sRowC}, s73, s72")
    k(f"s_lshl_b32 s73, s{sTT}, 15")
    k("s_add_u32 s72, s72, s73")
    k(f"s_lshl_b32 s73, s{sCH}, 18")
    k(f"s_add_u32 s{sW4a}, s72, s73")
    k(f"s_mul_i32 s73, s{sCH}, {-1472*1024}")
    k(f"s_add_u32 s{sW4b}, s72, s73")
    k(f"s_lshl_b32 s{sTile}, s{sM}, 1")
    k(f"s_add_u32 s{sTile}, s{sTile}, s{sTT}")
    k(f"s_mul_i32 s72, s{sTile}, {112*1024}")
    k(f"s_add_u32 s72, s72, {hex(W_H3)}")
    k(f"s_lshl_b32 s73, s{sCH}, 14")
    k(f"s_add_u32 s{sH3a}, s72, s73")
    k(f"s_mul_i32 s73, s{sCH}, {-1472*64}")
    k(f"s_add_u32 s{sH3b}, s72, s73")
    k(f"s_lshl_b32 s73, s{sN}, 14")
    k("s_add_u32 s72, s72, s73")
    k(f"s_lshl_b32 s73, s{sCH}, 11")
    k(f"s_add_u32 s{sH3st}, s72, s73")
    k(f"s_lshl_b32 s72, s{sTile}, 15")
    k(f"s_lshl_b32 s73, s{sCH}, 12")
    k(f"s_add_u32 s{sHsrc}, s73, {hex(W_H)}")
    k("s_add_u32 s73, s73, s72")
    k(f"s_add_u32 s{sOb}, s73, {hex(W_O)}")
    k(f"s_lshl_b32 s73, s{sCH}, 13")
    k("s_add_u32 s73, s73, s72")
    k(f"s_add_u32 s{sX1b}, s73, {hex(W_X1)}")
    k(f"s_lshl_b32 s73, s{sN}, 12")
    k("s_add_u32 s72, s72, s73")
    k(f"s_lshl_b32 s73, s{sCH}, 11")
    k("s_add_u32 s72, s72, s73")
    k(f"s_add_u32 s{sHst}, s72, {hex(W_H)}")
    k(f"s_lshl_b32 s{sFidxB}, s{sM}, 5")
    k(f"s_lshl_b32 s72, s{sN}, 2")
    k(f"s_add_u32 s{sFidxB}, s{sFidxB}, s72")
    k(f"s_add_u32 s{sFidxB}, s{sFidxB}, s{sBw}")
    k(f"s_lshl_b32 s{sFidxB}, s{sFidxB}, 2")
    p0_group(B, 0)
    B.run(wfill(2, SW1, Wl1024, sRow1, 0, 1024))
    B.stamp("@f2i")
    pfs(B, "B")
    p0_group(B, 1)
    B.run(wfill(3, SW1, Wl1024, sRow1, 256*1024, 1024))
    B.stamp("@f3i")
    pfs(B, "C")
    B.vm(f"buffer_load_dword v{vNc}, v59, {S(SDBG)}, 0 offen sc1", "nc")
    k("s_branch B_MAIN")

    def get_nonce(vdst):
        L = k.newlabel("NC"); D = k.newlabel("ND")
        k(f"v_readfirstlane_b32 s{sNon}, v{vNc}")
        k(f"s_cmp_lg_u32 s{sNon}, 0")
        k(f"s_cbranch_scc1 {D}")
        k.label(L)
        k("v_mov_b32 v59, 0")
        k(f"buffer_load_dword v{vNc}, v59, {S(SDBG)}, 0 offen sc1")
        k("s_waitcnt vmcnt(0)")
        k(f"v_readfirstlane_b32 s{sNon}, v{vNc}")
        k(f"s_sub_u32 s{sSpin}, s{sSpin}, 1")
        k(f"s_cmp_le_i32 s{sSpin}, 0")
        k(f"s_cbranch_scc1 {D}")
        k(f"s_cmp_eq_u32 s{sNon}, 0")
        k(f"s_cbranch_scc1 {L}")
        k.label(D)
        k(f"v_mov_b32 v{vdst}, s{sNon}")

    P = A
    k.label("A_MAIN")
    k("s_waitcnt vmcnt(0) lgkmcnt(0)")
    A.vq = []; A.dq = []
    get_nonce(vNonA)
    P.stamp()
    def wread(base, f, ks16, ring, second):
        sl = f % 4
        off = (sl & 1)*SLOT + ks16*2048
        d = WF + 4*(ring % 8)
        return [(f"ds_read_b64_tr_b16 {v(d,2)}, v{base[sl>>1]} offset:{off}", ("w", ring, 0)),
                (f"ds_read_b64_tr_b16 {v(d+2,2)}, v{base[sl>>1]} offset:{off + second}", ("w", ring, 1))]
    vMa, vArA, vBrA, vRiA = 12, 13, 14, 15
    sHstA, sEps, sH3A, sH3r, sFlg = 12, 13, 14, 15, 16
    def gelu8(a, c, pk, T1, vM, vAr, vBr, vRi):
        L = []
        if c is not None:
            for i in range(8): L.append(f"v_fma_f32 v{a+i}, -v{vM}, v{c+i}, v{a+i}")
        for i in range(8): L.append(f"v_mul_f32 v{T1+i}, v{a+i}, v{a+i}")
        for i in range(8): L.append(f"v_fma_f32 v{T1+i}, v{T1+i}, v{vBr}, v{vAr}")
        for i in range(8): L.append(f"v_mul_f32 v{T1+i}, v{T1+i}, v{a+i}")
        for i in range(8): L.append(f"v_exp_f32 v{T1+i}, v{T1+i}")
        for i in range(8): L.append(f"v_fma_f32 v{T1+i}, v{T1+i}, v{vRi}, v{vRi}")
        for i in range(8): L.append(f"v_rcp_f32 v{T1+i}, v{T1+i}")
        for i in range(8): L.append(f"v_mul_f32 v{a+i}, v{a+i}, v{T1+i}")
        for i in range(4): L.append(f"v_cvt_pk_bf16_f32 v{pk+i}, v{a+2*i}, v{a+2*i+1}")
        return L
    def aflag(off_const, tagwait, tag):
        return [("stamp", "@w" + tag), ("wvm", tagwait), f"s_add_u32 s{sFlg}, s{sFidx}, {hex(off_const)}",
                ("vm", f"buffer_store_dword v{vNonA}, v{vFl0A}, {S(SWS)}, s{sFlg} offen sc1", tag), ("stamp", "@i" + tag)]
    NOEPI = OPT("NOEPI", 0)
    steps = []; pre = {}
    for R, (f0, wfirst) in enumerate(((2, True), (4, False), (6, False))):
        for ks in range(32):
            G = 32*R + ks
            f = f0 + (ks >> 4)
            st = dict(reads=wread(vWn, f, ks & 15, G, 512), need=[("w", G, 1)])
            d = ACB if ks == 31 else ACA
            c = None if ks == 0 else ACA
            a_, b_ = (WF + 4*(G % 8), ACT + 4*ks)
            st["mfma"] = mf(d, a_, b_, c) if wfirst else mf(d, b_, a_, c)
            if R == 0: st["need"].append(("act", ks))
            if ks % 16 == 0: st["gate"] = {0: "B1", 16: "b3", 32: "b4", 48: "b5", 64: "b6", 80: "b7"}[G]
            steps.append(st)
    side = [(-3 + ks//4, f"ds_read_b128 {v(ACT+4*ks,4)}, v{xa[ks&3]} offset:{(ks >> 2)*8192}", ("act", ks)) for ks in range(32)]
    pre[OPT("BAPOS", 6)] = [("wds", ("act", 31)), ("bar", "Ba")]
    cst = [f"s_lshl_b32 s72, s{sTT}, 9", f"s_add_u32 s72, s72, {TAB_ST + 8}", f"v_lshl_add_u32 v31, v{vT31}, 4, s72",
           ("ds", "ds_read_b32 v4, v31", "rh"),
           f"s_add_u32 s{sHstA}, s{sFrag}, {hex(W_H)}", f"s_mov_b32 s{sEps}, {hx(EPS_PHI)}"]
    steps[17].setdefault("post", []).extend(cst)
    cst2 = [("wds", "rh"), f"v_mul_f32 v{vArA}, {hx(GA)}, v4", f"v_mul_f32 v{vBrA}, v4, v4", f"v_rcp_f32 v{vRiA}, v4",
            f"v_mul_f32 v{vBrA}, v{vBrA}, v4", f"v_mul_f32 v{vBrA}, {hx(GB)}, v{vBrA}"]
    steps[24].setdefault("post", []).extend(cst2)
    T1h, PKh = 64, 72
    eh = gelu8(ACB, None, PKh, T1h, vMa, vArA, vBrA, vRiA) + \
         [("vm", f"buffer_store_dwordx4 {v(PKh,4)}, v{vLinA}, {S(SWS)}, s{sHstA} offen sc1", "hst")] + \
         gelu8(ACB+8, None, PKh+4, T1h, vMa, vArA, vBrA, vRiA) + \
         [("vm", f"buffer_store_dwordx4 {v(PKh+4,4)}, v{vLinA}, {S(SWS)}, s{sHstA} offen offset:1024 sc1", "hst")]
    if NOEPI: eh = [o for o in eh if not isinstance(o, str)]
    spread(steps, eh, 32 + 2, 32 + OPT("HEND", 22))
    steps[OPT("F1POS", 64 + 8)].setdefault("post", []).extend(aflag(F1, "hst", "f1flag"))
    KT, PA_ = 64, 88
    ek = []
    for i in range(16): ek.append(f"v_mul_f32 v{KT+i}, {hx(LOG2E)}, v{ACB+i}")
    for i in range(16): ek.append(f"v_add_f32 v{ACB+i}, s{sEps}, v{ACB+i}")
    for i in range(16): ek.append(f"v_exp_f32 v{KT+i}, v{KT+i} clamp")
    for i in range(16): ek.append(f"v_max_f32 v{ACB+i}, s{sEps}, v{ACB+i}")
    for i in range(16): ek.append(f"v_add_f32 v{ACB+i}, v{ACB+i}, v{KT+i}")
    for i in range(8): ek.append(f"v_cvt_pk_bf16_f32 v{PA_+i}, v{ACB+2*i}, v{ACB+2*i+1}")
    if NOEPI: ek = []
    spread(steps, ek, 64 + 2, 64 + OPT("KEND", 24))
    stream(P, steps, lambda s: 3 if s < 6 else 6, 3, pre=pre, side=side, side_rate=4)
    P.stamp()
    PB_, B0_, D0, D1 = 64, 72, 96, 112
    for i in range(8): P.raw(f"v_cvt_pk_bf16_f32 v{PB_+i}, v{ACB+2*i}, v{ACB+2*i+1}")
    P.raw(f"s_mov_b32 s{sMk}, 0x0000ffff")
    P.raw(f"s_mov_b32 s{sMk+1}, 0x0000ffff")
    for i in range(8): P.raw(f"v_cndmask_b32 v{B0_+i}, v{ONE}, v{PB_+i}, {S(sMk,2)}")
    for i in range(8): P.raw(f"v_cndmask_b32 v{PB_+i}, v{PB_+i}, v{ONE}, {S(sMk,2)}")
    P.raw(mf(D0, PA_, B0_, None))
    P.raw(mf(D1, PA_, PB_, None))
    P.raw(mf(D0, PA_+4, B0_+4, D0))
    P.raw(mf(D1, PA_+4, PB_+4, D1))
    P.raw(f"s_cmp_eq_u32 s{sTT}, 0")
    P.raw("s_cbranch_scc1 A_KV0")
    for i in range(8): P.raw(f"v_mov_b32 v{ACA+i}, v{D0+i}")
    for i in range(8): P.raw(f"v_mov_b32 v{ACA+8+i}, v{D1+8+i}")
    P.raw("s_branch A_KV1")
    P.label("A_KV0")
    for i in range(8): P.raw(f"v_mov_b32 v{ACA+i}, v{D1+8+i}")
    for i in range(8): P.raw(f"v_mov_b32 v{ACA+8+i}, v{D0+i}")
    P.label("A_KV1")
    P.ds(f"ds_write_b128 v{vAX}, {v(ACA,4)} offset:2048", "ex0")
    P.ds(f"ds_write_b128 v{vAX}, {v(ACA+4,4)} offset:3072", "ex1")
    P.raw(f"v_xor_b32 v31, 4096, v{vAX}")
    P.wds_all()
    P.bar("bK2")
    P.ds(f"ds_read_b128 {v(ACA,4)}, v31 offset:2048", "ex0")
    P.ds(f"ds_read_b128 {v(ACA+4,4)}, v31 offset:3072", "ex1")
    P.raw(f"s_add_u32 s72, s{sHead}, s{sTT}")
    P.raw("s_lshl_b32 s72, s72, 5")
    P.raw(f"s_add_u32 s72, s72, s{sM}")
    P.raw("s_lshl_b32 s73, s72, 11")
    P.raw(f"s_add_u32 s73, s73, {hex(W_KVP)}")
    P.raw(f"s_lshl_b32 s{sFkv}, s72, 2")
    P.raw(f"s_add_u32 s{sFkv}, s{sFkv}, {hex(FKV)}")
    P.wds_all()
    for i in range(8): P.raw(f"v_add_f32 v{ACA+i}, v{ACA+i}, v{ACA+8+i}")
    P.vm(f"buffer_store_dwordx4 {v(ACA,4)}, v{vLinA}, {S(SWS)}, s73 offen sc1", "kvp")
    P.vm(f"buffer_store_dwordx4 {v(ACA+4,4)}, v{vLinA}, {S(SWS)}, s73 offen offset:1024 sc1", "kvp")
    def xslice_reads(dst):
        L = []
        for g in range(4):
            if g == 0: L.append(("ds", f"ds_read_b64 {v(dst,2)}, v{vXR}", "xr"))
            else:
                L.append(f"v_xor_b32 v31, {16*g}, v{vXR}")
                L.append(("ds", f"ds_read_b64 {v(dst+2*g,2)}, v31", "xr"))
        return L
    def unpack_ops(dst, src, n=8):
        L = []
        for i in range(n):
            L.append(f"v_lshlrev_b32 v{dst+2*i}, 16, v{src+i}")
            L.append(f"v_and_b32 v{dst+2*i+1}, 0xffff0000, v{src+i}")
        return L
    XRr, STv = 64, 72
    P.run(xslice_reads(XRr))
    P.raw(f"s_lshl_b32 s72, s{sTT}, 9")
    P.raw(f"s_add_u32 s72, s72, {TAB_ST}")
    P.raw(f"v_lshl_add_u32 v31, v{vT31}, 4, s72")
    P.ds(f"ds_read_b64 {v(STv,2)}, v31", "st")
    P.wds_all()
    INI = ACB
    P.run(unpack_ops(INI, XRr))
    for i in range(16): P.raw(f"v_fma_f32 v{INI+i}, v{INI+i}, v{STv+1}, v{STv}")
    def chunk_steps(f0, nch, G0, acc, init, gl=2):
        steps = []
        for c in range(nch):
            f = f0 + c; sl = f % 4
            for j in range(8):
                G = G0 + 8*c + j
                e, ks = j >> 2, j & 3
                off = (sl & 1)*SLOT + e*16384
                h = HF + 4*(G % 8); w = WF + 4*(G % 8)
                reads = [(f"ds_read_b128 {v(h,4)}, v{vHa[sl>>1]} offset:{off + ks*1024}", ("h", G)),
                         (f"ds_read_b64_tr_b16 {v(w,2)}, v{vWf[sl>>1]} offset:{off + ks*2048}", ("w", G, 0)),
                         (f"ds_read_b64_tr_b16 {v(w+2,2)}, v{vWf[sl>>1]} offset:{off + ks*2048 + 1024}", ("w", G, 1))]
                first = c == 0 and j == 0
                st = dict(reads=reads, need=[("w", G, 1)], mfma=mf(acc, w, h, (init if first else acc)))
                if j == 0: st["gate"] = f"b{f}"; st["gl"] = gl
                steps.append(st)
        return steps
    stream(P, chunk_steps(8, 4, 0, ACA, INI), lambda s: 4, 2)
    P.wvm("kvp")
    P.vm(f"buffer_store_dword v{vNonA}, v{vFl0A}, {S(SWS)}, s{sFkv} offen sc1", "fkv")
    for i in range(8): P.raw(f"v_cvt_pk_bf16_f32 v{X1P+i}, v{ACA+2*i}, v{ACA+2*i+1}")
    P.raw(f"s_add_u32 s72, s{sFrag}, {hex(W_X1)}")
    P.vm(f"buffer_store_dwordx4 {v(X1P,4)}, v{vLinA}, {S(SWS)}, s72 offen sc1", "x1")
    P.vm(f"buffer_store_dwordx4 {v(X1P+4,4)}, v{vLinA}, {S(SWS)}, s72 offen offset:1024 sc1", "x1")
    P.raw("v_mov_b32 v64, 0")
    P.raw("v_mov_b32 v65, 0")
    for i in range(8):
        P.raw(f"v_dot2_f32_bf16 v64, v{X1P+i}, v{ONE}, v64")
        P.raw(f"v_dot2_f32_bf16 v65, v{X1P+i}, v{X1P+i}, v65")
    P.raw(f"s_lshl_b32 s72, s{sM}, 4")
    P.raw(f"s_lshl_b32 s73, s{sN}, 1")
    P.raw("s_add_u32 s72, s72, s73")
    P.raw(f"s_add_u32 s72, s72, s{sCH}")
    P.raw("s_lshl_b32 s72, s72, 1")
    P.raw(f"s_add_u32 s72, s72, s{sTT}")
    P.raw("s_lshl_b32 s72, s72, 8")
    P.raw(f"s_add_u32 s72, s72, {hex(W_ST)}")
    P.raw("v_permlane32_swap_b32 v64, v65")
    P.raw("v_add_f32 v64, v64, v65")
    P.vm(f"buffer_store_dword v64, v{vP4A}, {S(SWS)}, s72 offen sc1", "x1")
    P.raw(f"s_add_u32 s9, s{sFidx}, {hex(F2)}")
    steps = []; pre = {}
    for ks in range(32):
        f = 12 + (ks >> 4)
        st = dict(reads=wread(vWn, f, ks & 15, ks, 512), need=[("w", ks, 1)])
        st["mfma"] = mf(ACA, WF + 4*(ks % 8), ACT + 4*ks, None if ks == 0 else ACA)
        if ks % 16 == 0: st["gate"] = f"b{f}"
        steps.append(st)
    pre[OPT("F2POS", 16)] = [("stamp", "@wf2"), ("wvm", "x1"), ("vm", f"buffer_store_dword v{vNonA}, v{vFl0A}, {S(SWS)}, s9 offen sc1", "f2"), ("stamp", "@if2")]
    stream(P, steps, lambda s: 6, 3, pre=pre)
    P.wds_all()
    P.bar("bQ")
    P.stamp()
    PQ = 64
    Q0, Q1 = 96, 112
    for i in range(16): P.raw(f"v_mul_f32 v{Q1+i}, {hx(LOG2E)}, v{ACA+i}")
    for i in range(16): P.raw(f"v_add_f32 v{Q0+i}, s{sEps}, v{ACA+i}")
    for i in range(16): P.raw(f"v_exp_f32 v{Q1+i}, v{Q1+i} clamp")
    for i in range(16): P.raw(f"v_max_f32 v{Q0+i}, s{sEps}, v{Q0+i}")
    for i in range(16): P.raw(f"v_add_f32 v{Q0+i}, v{Q0+i}, v{Q1+i}")
    for i in range(8): P.raw(f"v_cvt_pk_bf16_f32 v{PQ+i}, v{Q0+2*i}, v{Q0+2*i+1}")
    P.ds(f"ds_write_b128 v{vAX}, {v(PQ,4)}", "pq")
    P.ds(f"ds_write_b128 v{vAX}, {v(PQ+4,4)} offset:1024", "pq")
    P.raw(f"s_lshl_b32 s10, s{sHead}, 5")
    P.raw(f"s_add_u32 s10, s10, {hex(FKF)}")
    P.raw(f"s_lshl_b32 s11, s{sHead}, 10")
    P.raw(f"s_add_u32 s11, s11, {hex(W_KVF)}")
    vH3o = 4
    P.raw(f"s_mul_i32 s72, s{sTileA}, {112*1024}")
    P.raw(f"s_lshl_b32 s73, s{sN}, 14")
    P.raw("s_add_u32 s72, s72, s73")
    P.raw(f"s_lshl_b32 s73, s{sCH}, 11")
    P.raw("s_add_u32 s72, s72, s73")
    P.raw(f"s_add_u32 s{sH3A}, s72, {hex(W_H3)}")
    P.raw(f"s_cmp_eq_u32 s{sN}, 7")
    P.raw(f"s_cselect_b32 s72, {hex(OOB)}, 0")
    P.raw(f"v_or_b32 v{vH3o}, s72, v{vLinA}")
    vS2 = 16
    steps = []; pre = {}
    for r in range(4):
        for ks in range(32):
            G = 32*r + ks
            f = 16 + 2*r + (ks >> 4)
            st = dict(reads=wread(vWf, f, ks & 15, G, 1024), need=[("w", G, 1)])
            st["mfma"] = mf(ACB if ks == 31 else ACA, WF + 4*(G % 8), ACT + 4*ks, None if ks == 0 else ACA)
            if r == 0: st["need"].append(("act", ks))
            if ks % 16 == 0: st["gate"] = "b14" if G == 0 else f"b{f}"
            steps.append(st)
    AC6 = 240
    steps += chunk_steps(24, 14, 128, ACA, None) + chunk_steps(38, 4, 240, AC6, None)
    side = [((-3 + ks//4) if ks < 16 else 10, f"ds_read_b128 {v(ACT+4*ks,4)}, v{vX1a} offset:{(ks >> 4)*32768 + (ks & 15)*1024}", ("act", ks)) for ks in range(32)]
    pre[OPT("BA2POS", 2)] = [("wds", ("act", 15)), ("bar", "Ba2")]
    pre[10] = [("bar", "b15")]
    pre[OPT("BB2POS", 15)] = [("wds", ("act", 31)), ("bar", "Bb2")]
    vCSa = 16
    steps[30].setdefault("post", []).extend(
        [f"s_lshl_b32 s72, s{sTT}, 9", f"s_add_u32 s72, s72, {TAB_S2}", f"v_lshl_add_u32 v31, v{vT31}, 4, s72",
         ("ds", f"ds_read_b128 {v(vMa,4)}, v31", "s2"),
         f"s_lshl_b32 s72, s{sCH}, 7", f"s_add_u32 s72, s72, {TAB_CS}", f"v_lshl_add_u32 v{vCSa}, v{vHf}, 4, s72"])
    def g4cs(r, CS):
        return [("ds", f"ds_read_b128 {v(CS+4*g,4)}, v{vCSa} offset:{256*r + 32*g}", ("cs", r, g)) for g in range(4)]
    def g4epi(r, CS, T1, PK):
        L = [f"s_add_u32 s{sH3r}, s{sH3A}, {4*r*1024}", ("wds", ("cs", r, 3), "s2")]
        g1 = gelu8(ACB, CS, PK, T1, vMa, vArA, vBrA, vRiA); g2 = gelu8(ACB+8, CS+8, PK+4, T1, vMa, vArA, vBrA, vRiA)
        if NOEPI: g1 = g2 = []
        L += g1 + [("vm", f"buffer_store_dwordx4 {v(PK,4)}, v{vH3o}, {S(SWS)}, s{sH3r} offen sc1", f"h3s{r}")]
        L += g2 + [("vm", f"buffer_store_dwordx4 {v(PK+4,4)}, v{vH3o}, {S(SWS)}, s{sH3r} offen offset:1024 sc1", f"h3s{r}")]
        return L
    GE = [OPT("GEND0", 20), OPT("GEND", 31), OPT("GEND", 31)]; F3P = [OPT("F3POS0", 40), OPT("F3POS", 54), OPT("F3POS2", 38)]
    for r in range(3):
        steps[32*r + 30].setdefault("post", []).extend(g4cs(r, 64))
        spread(steps, g4epi(r, 64, 80, 88), 32*(r+1) + 1, 32*(r+1) + GE[r])
        steps[32*(r+1) + F3P[r]].setdefault("post", []).extend(aflag(F3 + r*4096, f"h3s{r}", f"f3f{r}"))
    if OPT("R3SER", 1):
        steps[126].setdefault("post", []).extend(g4cs(3, 64))
        steps[127].setdefault("post", []).extend(g4epi(3, 64, 80, 88))
        steps[128]["gl"] = 0
    else:
        steps[128].setdefault("post", []).extend(g4cs(3, 192))
        spread(steps, g4epi(3, 192, 208, 216), 128 + 2, 128 + OPT("GEND3", 14))
    steps[128 + OPT("F3POS3", 28)].setdefault("post", []).extend(aflag(F3 + 3*4096, "h3s3", "f3f3"))
    vKf = 31
    KVF, PQ2, OD = 128, 136, 144
    steps[120].setdefault("post", []).append(("vm", f"buffer_load_dword v17, v{vP4A}, {S(SWS)}, s10 offen sc1", "kf"))
    def kf_check():
        if P.dead: return
        P.wvm("kf")
        saved = list(P.vq)
        OKL = k.newlabel("KFOK")
        P.raw(f"v_cmp_ne_u32 vcc, s{sNon}, v17")
        P.raw("s_and_b64 vcc, vcc, 0xffff")
        P.raw(f"s_cbranch_scc0 {OKL}")
        P.poll(17, vP4A, "s10", 0xffff, 0)
        P.label(OKL)
        P.vq = saved
        P.vm(f"buffer_load_dwordx4 {v(KVF,4)}, v{vLinA}, {S(SWS)}, s11 offen sc1", "kvf")
        P.vm(f"buffer_load_dwordx4 {v(KVF+4,4)}, v{vLinA}, {S(SWS)}, s11 offen offset:1024 sc1", "kvf")
    OJ = 128 + OPT("OJPOS", 14)
    steps[OJ].setdefault("post", []).append(("call", kf_check))
    pqr = [f"s_lshl_b32 s72, s{sWave}, 12", f"s_add_u32 s72, s72, {ACCX}", f"v_add_u32 v31, s72, v{vLinA}",
           ("ds", f"ds_read_b128 {v(PQ2,4)}, v31", "pq2"), ("ds", f"ds_read_b128 {v(PQ2+4,4)}, v31 offset:1024", "pq2")]
    steps[OJ+1].setdefault("post", []).extend(pqr)
    OM = OJ + OPT("OJM", 12)
    steps[OM].setdefault("post", []).extend([("wvm", "kvf"), ("wds", "pq2"), mf(OD, KVF, PQ2, None), mf(OD+16, KVF+4, PQ2+4, None)])
    oj = [f"v_add_f32 v{OD+8}, s{sEps}, v{OD+8}", f"v_add_f32 v{OD+16}, s{sEps}, v{OD+16}",
          f"v_rcp_f32 v{OD+8}, v{OD+8}", f"v_rcp_f32 v{OD+16}, v{OD+16}"]
    for i in range(8): oj.append(f"v_mul_f32 v{OD+i}, v{OD+i}, v{OD+8}")
    for i in range(8): oj.append(f"v_mul_f32 v{OD+24+i}, v{OD+24+i}, v{OD+16}")
    for i in range(4): oj.append(f"v_cvt_pk_bf16_f32 v{KVF+i}, v{OD+2*i}, v{OD+2*i+1}")
    for i in range(4): oj.append(f"v_cvt_pk_bf16_f32 v{KVF+4+i}, v{OD+24+2*i}, v{OD+24+2*i+1}")
    oj.append(f"s_add_u32 s72, s{sFrag}, {hex(W_O)}")
    oj.append(("vm", f"buffer_store_dwordx4 {v(KVF,4)}, v{vLinA}, {S(SWS)}, s72 offen sc1", "o"))
    oj.append(("vm", f"buffer_store_dwordx4 {v(KVF+4,4)}, v{vLinA}, {S(SWS)}, s72 offen offset:1024 sc1", "o"))
    steps[OM+2].setdefault("post", []).extend(oj[:14])
    steps[OM+3].setdefault("post", []).extend(oj[14:])
    steps[OM + OPT("FOPOS", 16)].setdefault("post", []).extend(aflag(FO, "o", "fo"))
    XF = 176; X1F = 192; vOut = 12; XT = 208
    misc = xslice_reads(XT) + unpack_ops(X1F, X1P) + [("wds", "xr")] + unpack_ops(XF, XT)
    misc += [f"s_lshl_b32 s72, s{sTileA}, 15", f"s_lshl_b32 s73, s{sHead}, 5", "s_add_u32 s72, s72, s73",
             f"v_lshl_add_u32 v{vOut}, v{vT31}, 10, s72", f"v_lshl_add_u32 v{vOut}, v{vHf}, 3, v{vOut}"]
    spread(steps, misc, 128 + 80, 128 + 100)
    E = 128; Gt = 144; BV = 160
    sil = []
    for i in range(16): sil.append(f"v_add_f32 v{BV+i}, v{ACA+i}, v{X1F+i}")
    for i in range(16): sil.append(f"v_mul_f32 v{E+i}, {hx(-LOG2E)}, v{BV+i}")
    for i in range(16): sil.append(f"v_exp_f32 v{E+i}, v{E+i}")
    for i in range(16): sil.append(f"v_add_f32 v{E+i}, 1.0, v{E+i}")
    for i in range(16): sil.append(f"v_rcp_f32 v{E+i}, v{E+i}")
    for i in range(16): sil.append(f"v_mul_f32 v{Gt+i}, v{BV+i}, v{E+i}")
    spread(steps, sil, 240 + 2, 240 + 30)
    for r in range(1, 4): pre.setdefault(32*r, []).append(("stamp",))
    stream(P, steps, lambda s: 3 if s < 12 else (6 if s < 122 else 4), 3, pre=pre, side=side, side_rate=4)
    P.stamp()
    for i in range(16): P.raw(f"v_fma_f32 v{Gt+i}, v{Gt+i}, v{AC6+i}, v{XF+i}")
    for i in range(8): P.raw(f"v_cvt_pk_bf16_f32 v{E+i}, v{Gt+2*i}, v{Gt+2*i+1}")
    for g in range(4):
        P.vm(f"buffer_store_dwordx2 {v(E+2*g,2)}, v{vOut}, {S(SOUT)}, 0 offen offset:{g*16}", "out")
    P.finish()

    k.label("B_MAIN")
    P = B
    vM, vAr, vBr, vRi = 24, 25, 26, 27
    sPl = 86
    def chunkW(f, srdn, sbase, const):
        return dma4(sCb, (f % 4)*SLOT, srdn, Wl1024, sbase, const, f"f{f}")
    def chunkH(f, vreg, sbase, const):
        return dma4(sCb, (f % 4)*SLOT + 8192, SWS, vreg, sbase, const, f"f{f}", sc1=not OPT("PLAIN", 0))
    STG = OPT("STG", 0)
    SREG = lambda c: 64 + 16*(c - 3)
    vSW = (52, 53)
    NS1, NS2 = OPT("NS1", 3), OPT("NS2", 4)
    staged = set(range(3, 14)) if STG else set()
    def stage_ld(c):
        if c not in staged: return
        alt = c in (3, 10)
        sb = sW4b if alt else sW4a
        P.raw(f"s_add_u32 s{sT0}, s{sb}, {hex((F0(2*c)*1024) & 0xffffffff)}")
        for j in range(4):
            P.vm(f"buffer_load_dwordx4 {v(SREG(c)+4*j,4)}, v{Wl1024[j]}, {S(SW4)}, s{sT0} offen offset:{j*1024}", f"s{c}")
    def stage_wr(c):
        f = 24 + c; sl = f % 4
        P.wvm(f"s{c}")
        for j in range(4):
            P.ds(f"ds_write_b128 v{vSW[sl>>1]}, {v(SREG(c)+4*j,4)} offset:{(sl & 1)*SLOT + j*1024}", ("sw", c))
    P.wvm("f2")
    P.wds_all()
    P.bar("B1")
    if STG:
        P.raw(f"v_add_u32 v{vSW[0]}, s{sCb}, v{vLin}")
        P.raw(f"v_add_u32 v{vSW[1]}, 0x10000, v{vSW[0]}")
    spf_setup(P)
    spf(P)
    P.bar("Ba")
    P.run(wfill(4, SQKV, Wl3072, sRowQ, 1024, 3072))
    pfs(P, "D")
    spf(P)
    P.wvm("f3")
    P.bar("b3")
    P.run(wfill(5, SQKV, Wl3072, sRowQ, 1024 + 256*3072, 3072))
    P.wvm("nc")
    if not P.dead: get_nonce(vNon)
    spf(P)
    P.wvm("f4")
    P.bar("b4")
    P.run(wfill(6, SQKV, Wl3072, sRowQ, 2048, 3072))
    spf(P)
    P.wvm("f5"); P.bar("b5")
    P.run(wfill(7, SQKV, Wl3072, sRowQ, 2048 + 256*3072, 3072))
    spf(P)
    P.wvm("f6"); P.bar("b6")
    P.run(chunkW(8, SW2, sRowC, 0))
    spf(P)
    P.wvm("f7"); P.bar("b7")
    xtr_dma(P)
    P.run(chunkW(9, SW2, sRowC, 128*1024))
    spf(P)
    P.raw(f"s_cmp_eq_u32 s{sM}, 0")
    P.raw(f"s_cselect_b32 s{sMk}, 0xffff0000, -1")
    P.raw(f"s_cmp_eq_u32 s{sM}, 31")
    P.raw(f"s_cselect_b32 s{sMk+1}, 0, 0xffff")
    for g, d in enumerate((-1, 1, -2, 2)):
        P.raw(f"s_lshl_b32 s72, s{sTile}, 5")
        P.raw(f"s_add_u32 s72, s72, {hex(d & 0xffffffff)}")
        P.raw(f"v_add_u32 v36, s72, v{vT31}")
        P.raw("v_ashrrev_i32 v29, 5, v36")
        P.raw("v_lshlrev_b32 v29, 15, v29")
        P.raw("v_and_b32 v30, 31, v36")
        P.raw("v_lshl_add_u32 v29, v30, 4, v29")
        P.raw(f"v_lshl_add_u32 v29, v{vHf}, 9, v29")
        P.raw(f"v_cmp_gt_u32 vcc, 0x800, v36")
        P.raw(f"v_mov_b32 v30, {hex(OOB)}")
        P.raw(f"v_cndmask_b32 v{32+g}, v30, v29, vcc")
    P.wvm("xt")
    P.bar("bK2")
    P.run(chunkW(10, SW2, sRowC, 256*1024))
    P.run(chunkW(11, SW2, sRowC, 384*1024))
    pfs(P, "E")
    spf(P)
    for c in range(3, 3 + NS1): stage_ld(c)
    P.raw(f"v_lshlrev_b32 v28, 3, v0")
    P.raw(f"s_lshl_b32 s{sT1}, s{sM}, 7")
    P.raw(f"s_add_u32 s{sT1}, s{sT1}, {hex(F1 - 128)}")
    P.stamp("@F1p")
    P.poll(30, 28, f"s{sT1}", None, None, width=2)
    P.stamp("@F1ok")
    P.run(chunkH(8, 32, sHsrc, 0))
    P.run(chunkH(9, 33, sHsrc, 8*1024))
    P.wvm("f8"); P.bar("b8")
    P.run(chunkH(10, 34, sHsrc, 16*1024))
    P.wvm("f9"); P.bar("b9")
    P.run(chunkH(11, 35, sHsrc, 24*1024))
    P.wvm("f10"); P.bar("b10")
    if OPT("HACKN3", 0) in (1, 4):
        P.raw(f"s_cmp_eq_u32 s{sN}, 3")
        P.raw("s_cselect_b32 s72, 128, 0")
        P.raw(f"s_sub_u32 s{sRowQ}, s{sRowQ}, s72")
    P.run(wfill(12, SQKV, Wl3072, sRowQ, 0, 3072))
    spf(P)
    P.wvm("f11"); P.bar("b11")
    P.run(wfill(13, SQKV, Wl3072, sRowQ, 256*3072, 3072))
    cs3_dma(P)
    spf(P)
    P.wvm("f12"); P.bar("b12")
    P.wvm("f13"); P.bar("b13")
    if OPT("HACKN3", 0) in (3, 4):
        P.raw(f"s_cmp_eq_u32 s{sN}, 3")
        P.raw("s_cselect_b32 s72, 128, 0")
        for r_ in (sRowC, sW4a, sW4b): P.raw(f"s_sub_u32 s{r_}, s{r_}, s72")
    P.run(wfill(16, SW3, Wl3584, sRow3, 0, 3584))
    spf(P, 99)
    assert not spq
    if OPT("NS2POS", 0) == 0:
        for c in range(3 + NS1, 3 + NS1 + NS2): stage_ld(c)
    P.wvm("cs3")
    P.raw("v_bfe_u32 v28, v0, 2, 2")
    P.raw(f"v_lshl_add_u32 v28, v{vHf}, 2, v28")
    P.raw("v_lshlrev_b32 v28, 7, v28")
    P.raw("v_bfe_u32 v29, v0, 4, 1")
    P.raw("v_lshl_add_u32 v28, v29, 5, v28")
    P.raw("v_and_b32 v29, 3, v0")
    P.raw("v_lshl_add_u32 v28, v29, 3, v28")
    P.raw(f"s_lshl_b32 s72, s{sBw}, 12")
    P.raw(f"s_add_u32 s72, s72, {ACCX}")
    P.raw("v_add_u32 v28, s72, v28")
    for ks in range(2):
        for n_ in range(2):
            d = 32 + 4*(2*ks + n_)
            P.ds(f"ds_read_b64_tr_b16 {v(d,2)}, v28 offset:{16*ks*128 + 64*n_}", "c")
            P.ds(f"ds_read_b64_tr_b16 {v(d+2,2)}, v28 offset:{(16*ks+8)*128 + 64*n_}", "c")
    P.raw("v_mov_b32 v48, 0")
    P.raw("v_mov_b32 v49, 0")
    P.raw("v_mov_b32 v50, 0x3f803f80")
    P.wds_all()
    for ks in range(2):
        for i in range(4):
            P.raw(f"v_dot2_f32_bf16 v48, v{32 + 8*ks + i}, v50, v48")
            P.raw(f"v_dot2_f32_bf16 v49, v{32 + 8*ks + 4 + i}, v50, v49")
    P.raw("v_permlane32_swap_b32 v48, v49")
    P.raw("v_add_f32 v48, v48, v49")
    P.raw(f"s_lshl_b32 s72, s{sCsG}, 12")
    P.raw(f"s_lshl_b32 s73, s{sCsP}, 8")
    P.raw("s_add_u32 s72, s72, s73")
    P.raw(f"s_add_u32 s72, s72, {hex(W_CS)}")
    P.raw(f"v_or_b32 v49, s{sCsOOB}, v{vP4}")
    P.vm(f"buffer_store_dword v48, v49, {S(SWS)}, s72 offen sc1", "cs3st")
    P.raw(f"s_lshl_b32 s72, s{sN}, 6")
    P.raw(f"s_and_b32 s73, s{sM}, 3")
    P.raw("s_lshl_b32 s73, s73, 4")
    P.raw("s_add_u32 s72, s72, s73")
    P.raw(f"s_add_u32 s72, s72, s{sCsP}")
    P.raw("s_lshl_b32 s72, s72, 2")
    P.raw(f"s_add_u32 s{sSt}, s72, {hex(CSF)}")
    P.raw(f"v_or_b32 v31, s{sCsOOB}, v{vFl0}")
    if OPT("NS2POS", 0) == 1:
        for c in range(3 + NS1, 3 + NS1 + NS2): stage_ld(c)
    def csf_flag():
        P.wvm("cs3st")
        P.vm(f"buffer_store_dword v{vNon}, v31, {S(SWS)}, s{sSt} offen sc1", "csf")
    XS, CL = (SREG(13), SREG(12)) if STG else (96, 112)
    def acheck(tag, vreg, soff, mlo, mhi_, preset=False):
        if P.dead: return
        P.wvm(tag)
        saved = list(P.vq)
        OKL = k.newlabel("AOK")
        if not preset:
            P.raw(f"s_mov_b32 s{sMk}, {hex(mlo)}"); P.raw(f"s_mov_b32 s{sMk+1}, {hex(mhi_)}")
        P.raw(f"v_cmp_ne_u32 vcc, s{sNon}, v{vreg}")
        P.raw(f"s_and_b64 vcc, vcc, {S(sMk,2)}")
        P.raw(f"s_cbranch_scc0 {OKL}")
        P.poll(vreg, vP4, soff, None, None)
        P.label(OKL)
        P.vq = saved
    P.raw(f"s_lshl_b32 s95, s{sN}, 8")
    P.raw(f"s_add_u32 s95, s95, {hex(CSF)}")
    P.raw(f"s_lshl_b32 s{sT1}, s{sM}, 7")
    P.raw(f"s_add_u32 s{sT1}, s{sT1}, {hex(F2)}")
    P.bar("bQ")
    P.run(wfill(17, SW3, Wl3584, sRow3, 256*3584, 3584))
    csf_flag()
    P.stamp("@F2p")
    P.poll(30, vP4, f"s{sT1}", 0xffffffff, 0)
    P.stamp("@F2ok")
    def x1fill(hh):
        f = 14 + hh
        P.raw(f"s_lshl_b32 s72, s{sTT}, 14")
        P.raw(f"s_lshl_b32 s73, s{sCH}, 13")
        P.raw(f"s_add_u32 s{sT2}, s72, s73")
        P.run(dma4(sT2, (f % 4)*SLOT, SWS, vLin, sX1b, 16*hh*1024, f"f{f}", sc1=not OPT("PLAIN", 0)))
        P.run(dma4(sT2, (f % 4)*SLOT + 4096, SWS, vLin, sX1b, 16*hh*1024 + 4096, f"f{f}", sc1=not OPT("PLAIN", 0)))
    x1fill(0); x1fill(1)
    def xs_loads():
        P.vm(f"buffer_load_dword v45, v{vP4}, {S(SWS)}, s95 offen sc1", "cf")
        P.raw(f"s_lshl_b32 s72, s{sM}, 13")
        P.raw(f"s_lshl_b32 s73, s{sTT}, 8")
        P.raw("s_add_u32 s72, s72, s73")
        P.raw(f"s_add_u32 s72, s72, {hex(W_ST)}")
        P.raw("s_add_u32 s73, s72, 4096")
        if XSH:
            P.raw(f"s_cmp_eq_u32 s{sCH}, 0")
            P.raw(f"s_cselect_b32 s74, 0, {hex(OOB)}")
            P.raw(f"v_or_b32 v46, s74, v{vP4}")
        for p in range(16):
            P.vm(f"buffer_load_dword v{XS+p}, v{46 if XSH else vP4}, {S(SWS)}, s{72 + (p >> 3)} offen offset:{(p & 7)*512} sc1", "xs")
    XSH = OPT("XSH", 1)
    XSPOS = OPT("XSPOS", 1)
    if XSPOS == 0: xs_loads()
    P.wvm("f14"); P.bar("b14")
    if XSPOS == 1: xs_loads()
    P.bar("Ba2")
    if XSPOS == 2: xs_loads()
    P.run(wfill(18, SW3, Wl3584, sRow3, 128, 3584))
    if XSPOS == 3: xs_loads()
    P.wvm("f15"); P.bar("b15")
    P.raw(f"s_cmp_eq_u32 s{sN}, 7")
    P.raw(f"s_cselect_b32 s{sMk}, 0, -1")
    P.raw(f"s_mov_b32 s{sMk+1}, s{sMk}")
    acheck("cf", 45, "s95", None, None, preset=True)
    P.raw(f"s_lshl_b32 s72, s{sN}, 2")
    P.raw(f"s_add_u32 s72, s72, s{sBw}")
    P.raw("s_lshl_b32 s72, s72, 12")
    P.raw(f"s_add_u32 s72, s72, {hex(W_CS)}")
    for p in range(16):
        P.vm(f"buffer_load_dword v{CL+p}, v{vP4}, {S(SWS)}, s72 offen offset:{p*256} sc1", "cl")
    P.wvm("xs")
    for w_ in (8, 4, 2, 1):
        for i in range(w_): P.raw(f"v_add_f32 v{XS+i}, v{XS+i}, v{XS+w_+i}")
    P.raw(f"v_mov_b32 v{XS+1}, v{XS}")
    P.raw(f"v_permlane32_swap_b32 v{XS}, v{XS+1}")
    P.raw(f"v_mul_f32 v{vM}, {hx(1.0/512)}, v{XS}")
    P.raw(f"v_mul_f32 v{XS+1}, {hx(1.0/512)}, v{XS+1}")
    P.raw(f"v_fma_f32 v{XS+1}, -v{vM}, v{vM}, v{XS+1}")
    P.raw(f"v_max_f32 v{XS+1}, 0, v{XS+1}")
    P.raw(f"v_add_f32 v{XS+1}, {hx(EPS_LN)}, v{XS+1}")
    P.raw(f"v_rsq_f32 v{XS+2}, v{XS+1}")
    P.raw(f"v_sqrt_f32 v{vRi}, v{XS+1}")
    P.raw(f"v_mul_f32 v{vAr}, {hx(GA)}, v{XS+2}")
    P.raw(f"v_mul_f32 v{vBr}, v{XS+2}, v{XS+2}")
    P.raw(f"v_mul_f32 v{vBr}, v{vBr}, v{XS+2}")
    P.raw(f"v_mul_f32 v{vBr}, {hx(GB)}, v{vBr}")
    P.raw(f"s_lshl_b32 s72, s{sTT}, 9")
    P.raw(f"s_add_u32 s72, s72, {TAB_S2}")
    P.raw(f"v_lshl_add_u32 v28, v{vT31}, 4, s72")
    if XSH:
        P.raw(f"s_cmp_eq_u32 s{sCH}, 0")
        P.raw("s_cselect_b64 exec, -1, 0")
    P.ds(f"ds_write_b128 v28, {v(vM,4)}", "s2w")
    if XSH: P.raw("s_mov_b64 exec, -1")
    P.wvm("f17"); P.bar("b17")
    KP = SREG(10) if STG else 128; vKr = 37; vKo = 38
    P.raw(f"s_cmp_eq_u32 s{sBw}, 0")
    P.raw(f"s_cselect_b32 s87, 0, {hex(OOB)}")
    P.raw(f"s_cselect_b32 s88, -1, 0")
    P.raw(f"s_lshl_b32 s89, s{sM}, 7")
    P.raw(f"s_add_u32 s89, s89, {hex(FKV)}")
    P.vm(f"buffer_load_dword v39, v{vP4}, {S(SWS)}, s89 offen sc1", "kp")
    P.raw("v_lshrrev_b32 v28, 4, v0")
    P.raw("v_lshlrev_b32 v28, 11, v28")
    P.raw("v_bfe_u32 v29, v0, 3, 1")
    P.raw("v_lshl_add_u32 v28, v29, 10, v28")
    P.raw("v_and_b32 v30, 7, v0")
    P.raw("v_lshl_add_u32 v28, v30, 4, v28")
    P.raw(f"s_lshl_b32 s72, s{sN}, 7")
    P.raw("v_add_u32 v28, s72, v28")
    P.raw(f"v_or_b32 v{vKr}, s87, v28")
    P.raw("v_lshlrev_b32 v30, 4, v30")
    P.raw("v_lshl_add_u32 v30, v29, 3, v30")
    P.raw("v_add_u32 v30, s72, v30")
    P.raw(f"v_mov_b32 v29, {hex(OOB)}")
    P.raw("v_cmp_gt_u32 vcc, 16, v0")
    P.raw("v_cndmask_b32 v30, v29, v30, vcc")
    P.raw(f"v_or_b32 v{vKo}, s87, v30")
    P.wvm("cl")
    for w_ in (8, 4, 2, 1):
        for i in range(w_): P.raw(f"v_add_f32 v{CL+i}, v{CL+i}, v{CL+w_+i}")
    P.raw(f"s_lshl_b32 s72, s{sBw}, 8")
    P.raw(f"s_add_u32 s72, s72, {TAB_CS}")
    P.raw(f"v_add_u32 v28, s72, v{vP4}")
    P.ds(f"ds_write_b32 v28, v{CL}", "csw")
    P.bar("Bb2")
    P.run(wfill(19, SW3, Wl3584, sRow3, 128 + 256*3584, 3584))
    P.run(wfill(20, SW3, Wl3584, sRow3, 256, 3584))
    P.wds_all()
    P.wvm("f18"); P.bar("b18")
    P.raw(f"s_mov_b32 s{sMk}, s88"); P.raw(f"s_mov_b32 s{sMk+1}, 0")
    acheck("kp", 39, "s89", None, None, preset=True)
    P.raw(f"s_lshl_b32 s72, s{sM}, 16")
    P.raw(f"s_add_u32 s72, s72, {hex(W_KVP)}")
    for i in range(8):
        if i: P.raw("s_add_u32 s72, s72, 8192")
        P.vm(f"buffer_load_dwordx4 {v(KP+4*i,4)}, v{vKr}, {S(SWS)}, s72 offen sc1", "kl")
    P.run(wfill(21, SW3, Wl3584, sRow3, 256 + 256*3584, 3584))
    rest = [c for c in range(3 + NS1 + NS2, 10)]
    for c in rest: stage_ld(c)
    P.wvm("f19"); P.bar("b19")
    P.run(wfill(22, SW3, Wl3584, sRow3, 384, 3584))
    stage_ld(12); stage_ld(13)
    P.wvm("kl")
    for w_ in (4, 2, 1):
        for j in range(w_):
            for i in range(4): P.raw(f"v_add_f32 v{KP+4*j+i}, v{KP+4*j+i}, v{KP+4*(j+w_)+i}")
    for op in ("v_permlane32_swap_b32", "v_permlane16_swap_b32"):
        for i in range(4): P.raw(f"v_mov_b32 v{KP+4+i}, v{KP+i}")
        for i in range(4): P.raw(f"{op} v{KP+i}, v{KP+4+i}")
        for i in range(4): P.raw(f"v_add_f32 v{KP+i}, v{KP+i}, v{KP+4+i}")
    for i in range(2): P.raw(f"v_cvt_pk_bf16_f32 v{KP+8+i}, v{KP+2*i}, v{KP+2*i+1}")
    P.raw(f"s_lshl_b32 s72, s{sM}, 10")
    P.raw(f"s_add_u32 s72, s72, {hex(W_KVF)}")
    P.vm(f"buffer_store_dwordx2 {v(KP+8,2)}, v{vKo}, {S(SWS)}, s72 offen sc1", "kvf")
    P.wvm("f20"); P.bar("b20")
    P.run(wfill(23, SW3, Wl3584, sRow3, 384 + 256*3584, 3584))
    stage_ld(10); stage_ld(11)
    def g5W(c):
        alt = c in (3, 10)
        if OPT("NOW4", 0) and c >= 2: return []
        return chunkW(24 + c, SW4, sW4b if alt else sW4a, F0(2*c)*1024)
    def g5H(c):
        alt = c in (3, 10)
        if OPT("NOH3", 0) and c >= 2: return []
        return chunkH(24 + c, vLin, sH3b if alt else sH3a, F0(2*c)*64)
    def pl_issue(base, reg, sreg, tag):
        P.raw(f"s_lshl_b32 s{sreg}, s{sM}, 7")
        P.raw(f"s_add_u32 s{sreg}, s{sreg}, {hex(base)}")
        P.vm(f"buffer_load_dword v{reg}, v{vP4}, {S(SWS)}, s{sreg} offen sc1", tag)
    P.wvm("f21"); P.bar("b21")
    P.run(g5W(0))
    P.raw(f"s_lshl_b32 s72, s{sM}, 3")
    P.raw(f"s_add_u32 s72, s72, s{sN}")
    P.raw("s_lshl_b32 s72, s72, 2")
    P.raw(f"s_add_u32 s72, s72, {hex(FKF)}")
    P.raw(f"v_or_b32 v28, s87, v{vFl0}")
    P.wvm("kvf")
    P.vm(f"buffer_store_dword v{vNon}, v28, {S(SWS)}, s72 offen sc1", "fkf")
    P.wvm("f22"); P.bar("b22")
    P.run(g5W(1))
    pl_issue(F3, 40, 90, "pl0")
    P.wvm("f23"); P.stamp(); P.bar("b23")
    acheck("pl0", 40, "s90", 0x0fffffff, 0)
    P.run(g5H(0)); P.run(g5H(1)); P.run(g5W(2)); P.run(g5H(2))
    HISS = {nx: nx - 3 for nx in range(3, 18)}
    HISS[3] = OPT("H3ISS", 1)
    HISS[7] = OPT("H7ISS", 4)
    HISS[10] = OPT("H10ISS", 7)
    HISS[14] = OPT("H14ISS", 11)
    for nx in range(4, 18): HISS[nx] = max(HISS[nx], HISS[nx-1]) if nx not in (7, 10, 14) else HISS[nx]
    need_r = {3: 1, 7: 2, 10: 3, 14: 4}
    for c in range(18):
        f = 24 + c
        P.wvm(f"f{f}"); P.wds(("sw", c)); P.bar(f"b{f}")
        for nx, r in need_r.items():
            if HISS[nx] - 1 == c or (HISS[nx] == 0 and c == 0):
                pl_issue(F3 + r*4096 if r < 4 else FO, 40 + r, 90 + r, f"pl{r}")
        nxw = c + 3
        hl = [nx for nx in range(3, 18) if HISS[nx] == c]
        for nx in hl:
            if nx < nxw:
                if nx in need_r:
                    r = need_r[nx]; acheck(f"pl{r}", 40 + r, f"s{90+r}", 0x0fffffff if r < 4 else 0xffffffff, 0)
                if nx < 14: P.run(g5H(nx))
                else: P.run(chunkH(24 + nx, vLin, sOb, 8*(nx-14)*1024))
        if nxw in staged: stage_wr(nxw)
        elif nxw < 14: P.run(g5W(nxw))
        elif nxw < 18: P.run(chunkW(24 + nxw, SWO, sRowC, 128*(nxw-14)*1024))
        for nx in hl:
            if nx >= nxw:
                if nx in need_r:
                    r = need_r[nx]; acheck(f"pl{r}", 40 + r, f"s{90+r}", 0x0fffffff if r < 4 else 0xffffffff, 0)
                if nx < 14: P.run(g5H(nx))
                else: P.run(chunkH(24 + nx, vLin, sOb, 8*(nx-14)*1024))
        if c == 13: P.stamp()
    P.finish()
    k.label("P_END")
    k("s_endpgm")
    a_main = A.bars; b_main = B.bars
    if a_main != b_main:
        print("BARRIER MISMATCH"); print(a_main); print(b_main); raise SystemExit(1)
    return k

HDR = open("cdna_kernels/" + NAME + ".s.ref").read().split("\n")
def build():
    lines = []
    for l in HDR:
        if not l.startswith(";"): break
        if "@launch" in l: continue
        lines.append(l)
    lines.append(f"; @launch grid=(256,1,1) block=(512,1,1) lds={LDS}")
    lines.append('.amdgcn_target "amdgcn-amd-amdhsa--gfx950"')
    k = gen()
    k.fix_hazards(verbose=OPT("V", 0))
    return "\n".join(lines) + "\n" + header(KN) + k.text() + descriptor(KN)

if __name__ == "__main__":
    open(sys.argv[1], "w").write(build())
    if STAMP:
        import json; json.dump(NAMES, open(sys.argv[1] + ".names.json", "w"))
```

```python
import sys, os, copy
sys.path.insert(0, "gen")
from common import *

KN = NAME + "_kernel"
SLOT = 32768
ACCX, XTR, TAB = 131072, 147456, 155648
TAB_ST, TAB_CS, TAB_S2 = TAB, TAB + 1024, TAB + 2048
LDS = 163840
W_H, W_X1, W_O, W_H3, W_KVP, W_KVF, W_ST, W_CS, W_FL, W_STAMP = [x*MB for x in (2, 4, 6, 10, 18, 20, 21, 22, 23, 32)]
WS_SIZE = 40*MB
F1, F2, F3, FO, FKV, FKF, CSF = [W_FL + x for x in (128, 8192, 12288, 28672, 32768, 36864, 40960)]
OOB = 0x7f000000
STOP = OPT("STOP", "")
STAMP = OPT("STAMP", 0)
STFROM = OPT("STFROM", "")
import re
STSKIP = OPT("STSKIP", "")
SPIN = 1 << 16
SWAPS = [x for x in OPT("SWAP", "").split(",") if x]

sWave, sM, sN, sNon, sTT, sCH = 26, 27, 28, 29, 30, 31
sG, sIdx = 84, 85
sDl = 3
SX, SQKV, SW1, SW2, SW3, SW4, SWO, SWS, SOUT, SDBG = 32, 36, 40, 44, 48, 52, 56, 60, 64, 68
sT0, sT1, sT2, sT3, sT4, sT5, sSpin = 72, 73, 74, 75, 76, 77, 78
sMk = 80
def S(n, c=4): return f"s[{n}:{n+c-1}]"

NAMES = {}
class Prog:
    def __init__(self, k, name):
        self.k = k; self.name = name
        self.dq = []; self.vq = []; self.bars = []
        self.dead = False; self.nst = 0; self.names = []; self.sv = 5 if name[0] == 'A' else 255; self.st_on = False; self.hook = None; self.prew = None
    def fork(self, name):
        p = Prog(self.k, name)
        p.dq = list(self.dq); p.vq = list(self.vq); p.bars = []; p.dead = self.dead; p.nst = self.nst; p.names = list(self.names); p.st_on = self.st_on
        return p
    def raw(self, t):
        if not self.dead: self.k(t)
    def label(self, l):
        if not self.dead: self.k.label(l)
    def ds(self, t, tag=None):
        if self.dead: return
        if len(self.dq) >= 15: self._wds(len(self.dq) - 15)
        self.k(t); self.dq.append(tag)
    def _wds(self, i):
        n = len(self.dq) - 1 - i
        self.k(f"s_waitcnt lgkmcnt({n})"); self.dq = self.dq[i+1:]
    def wds(self, *tags):
        if self.dead: return
        idx = [i for i, t in enumerate(self.dq) if t in tags]
        if idx: self._wds(max(idx))
    def wds_all(self):
        if self.dead: return
        if self.dq: self._wds(len(self.dq) - 1)
    def vm(self, t, tag=None):
        if self.dead: return
        self.k(t); self.vq.append(tag)
    def wvm(self, *tags):
        if self.dead: return
        if self.prew: self.prew(self, "w" + str(tags[0]))
        idx = [i for i, t in enumerate(self.vq) if t in tags]
        if not idx: return
        i = max(idx); n = len(self.vq) - 1 - i
        self.k(f"s_waitcnt vmcnt({min(n, 63)})")
        if n <= 63: self.vq = self.vq[i+1:]
        else: self.vq = self.vq[len(self.vq)-63:]
    def wvm_all(self):
        if self.dead: return
        self.k("s_waitcnt vmcnt(0)"); self.vq = []
    def tmark(self, name):
        DM = OPT("TMK", "").split(",")
        if self.dead or self.name[0] != "B" or name not in DM: return
        slot = 4 + DM.index(name)
        k = self.k
        k("s_memrealtime s[82:83]")
        k("s_waitcnt lgkmcnt(0)"); self.dq = []
        k(f"v_writelane_b32 v255, s82, {slot}")
    def bar(self, name):
        if self.dead: return
        if name == STOP:
            self.finish(); return
        if STAMP == 2: self.stamp("@" + name)
        self.tmark(name)
        self.k(f"s_barrier ; {name}"); self.bars.append(name)
        if self.hook: self.hook(self, name)
    def stamp(self, name=None):
        if self.dead or not STAMP: return
        if STAMP == 2 and not (name or "").startswith("@"): return
        if STSKIP and re.fullmatch(STSKIP, name or ""): return
        if STFROM and not self.st_on:
            if name == STFROM: self.st_on = True
            else: return
        i = self.nst; self.nst += 1
        assert i < 60, "too many stamps"
        self.names.append(name or f"s{i}")
        if (self.name[0] == "B" and not OPT("SPF", 1)) or OPT("STEX", 0):
            if i == 0: self.k(f"v_writelane_b32 v{self.sv}, s82, 0")
            self.k("s_memtime s[82:83]")
            self.k("s_waitcnt lgkmcnt(0)")
            self.k(f"v_writelane_b32 v{self.sv}, s82, {i+1}")
            self.dq = []
        else:
            self.k(f"v_writelane_b32 v{self.sv}, s82, {i}")
            self.k("s_memtime s[82:83]")
    def finish(self):
        if self.dead: return
        self.k("s_waitcnt vmcnt(0) lgkmcnt(0)")
        if OPT("TMK", "") and self.name[0] == "B":
            self.tmark("end")
            self.k("v_writelane_b32 v255, s79, 3")
            self.k("v_writelane_b32 v255, s82, 2")
            self.k("v_not_b32 v254, v255")
            if OPT("TMMIN", 0): self.k("v_not_b32 v255, v255"); self.k("v_writelane_b32 v255, 0, 0")
            self.k("v_writelane_b32 v255, s82, 2")
            self.k("s_not_b32 s79, s79")
            self.k("v_writelane_b32 v255, s79, 1")
            self.k(f"buffer_atomic_umax v255, v253, {S(SDBG)}, 0 offen sc1")
            self.k("s_waitcnt vmcnt(0)")
        self.flush_stamps()
        self.k("s_branch P_END")
        self.dead = True
    def flush_stamps(self):
        if not STAMP: return
        k = self.k; i = self.nst
        NAMES[self.name] = list(self.names) + ["end"]
        k("s_waitcnt lgkmcnt(0)")
        k(f"v_writelane_b32 v{self.sv}, s82, {i}")
        k("s_memtime s[82:83]")
        k("s_waitcnt lgkmcnt(0)")
        k(f"v_writelane_b32 v{self.sv}, s82, {i+1}")
        k("s_memrealtime s[82:83]")
        k("s_waitcnt lgkmcnt(0)")
        k(f"v_writelane_b32 v{self.sv}, s82, 62")
        k(f"v_writelane_b32 v{self.sv}, s79, 63")
        k("s_lshl_b32 s72, s2, 11")
        k(f"s_lshl_b32 s73, s{sWave}, 8")
        k("s_add_u32 s72, s72, s73")
        k(f"s_add_u32 s72, s72, {hex(W_STAMP)}")
        k("v_lshlrev_b32 v1, 2, v0")
        k(f"buffer_store_dword v{self.sv}, v1, {S(SWS)}, s72 offen")
        k("s_waitcnt vmcnt(0)")
    def emit(self, op):
        if isinstance(op, str): self.raw(op); return
        kind = op[0]
        if kind == "ds": self.ds(op[1], op[2] if len(op) > 2 else None)
        elif kind == "vm": self.vm(op[1], op[2] if len(op) > 2 else None)
        elif kind == "wds": self.wds(*op[1:])
        elif kind == "wvm": self.wvm(*op[1:])
        elif kind == "bar": self.bar(op[1])
        elif kind == "stamp": self.stamp(op[1] if len(op) > 1 else None)
        elif kind == "call": op[1]()
        elif kind == "grp":
            for o in op[1]: self.emit(o)
        else: raise ValueError(op)
    def run(self, ops):
        for o in ops: self.emit(o)
    def poll(self, vdst, voff, soff, mlo, mhi, width=1):
        if self.dead: return
        k = self.k
        L = k.newlabel("PL"); D = k.newlabel("PD")
        if mlo is not None:
            k(f"s_mov_b32 s{sMk}, {hex(mlo)}"); k(f"s_mov_b32 s{sMk+1}, {hex(mhi)}")
        k.label(L)
        sfx = {1: "dword", 2: "dwordx2"}[width]
        k(f"buffer_load_{sfx} {v(vdst, width)}, v{voff}, {S(SWS)}, {soff} offen sc1")
        k("s_waitcnt vmcnt(0)")
        k(f"v_cmp_ne_u32 vcc, s{sNon}, v{vdst}")
        if width == 2:
            k(f"v_cmp_ne_u32 s[{sT4}:{sT5}], s{sNon}, v{vdst+1}")
            k(f"s_or_b64 vcc, vcc, s[{sT4}:{sT5}]")
        k(f"s_and_b64 vcc, vcc, {S(sMk,2)}")
        k(f"s_cbranch_scc0 {D}")
        k(f"s_sub_u32 s{sSpin}, s{sSpin}, 1")
        k(f"s_cmp_gt_i32 s{sSpin}, 0")
        k(f"s_cbranch_scc1 {L}")
        k.label(D)
        self.vq = []

def interleave(main, extra, start=0, end=None):
    main = list(main)
    if not extra: return main
    end = len(main) if end is None else min(end, len(main))
    n = max(end - start, 1)
    out = main[:start]
    step = n / len(extra); j = 0
    for i, o in enumerate(main[start:end]):
        while j < len(extra) and j*step <= i:
            out.append(extra[j]); j += 1
        out.append(o)
    out += extra[j:]
    out += main[end:]
    return out

def stream(P, steps, la, GL, pre=None, side=None, side_rate=2):
    pre = pre or {}
    side = list(side or [])
    n = len(steps); nxt = 0; lastw = None
    s = -la(0)
    WM = OPT("WMERGE", 2); WAGE = OPT("WAGE", 3)
    issued = {}
    while s < n:
        for o in pre.get(s, []): P.emit(o)
        cnt = 0
        while nxt < n and nxt <= s + la(s) and cnt < 4:
            st = steps[nxt]
            if st.get("gate"):
                if nxt > 0 and s < nxt - st.get("gl", GL): break
                if lastw is not None: P.wds(lastw)
                for o in st.get("gpre", []): P.emit(o)
                P.bar(st["gate"])
            for t, tag in st["reads"]:
                P.ds(t, tag); lastw = tag; issued[tag] = s
            nxt += 1; cnt += 1
        c = 0
        while side and c < side_rate and side[0][0] <= s and nxt > 0:
            _, t, tag = side.pop(0); P.ds(t, tag); c += 1; issued[tag] = s
        if s >= 0:
            need = list(steps[s]["need"])
            if any(t in P.dq for t in need):
                for j in range(1, WM):
                    if s + j < n:
                        for t in steps[s + j]["need"]:
                            if t in issued and s - issued[t] >= WAGE: need.append(t)
            P.wds(*need)
            P.raw(steps[s]["mfma"])
            for o in steps[s].get("post", []): P.emit(o)
        s += 1
    assert not side

TRANS_OPS = ("v_exp_f32", "v_rcp_f32", "v_rsq_f32", "v_sqrt_f32", "v_log_f32")
def opcost(o):
    if isinstance(o, str):
        if o.startswith(TRANS_OPS): return 8
        if o.startswith("v_mfma"): return 8
        return 4
    if o[0] in ("wds", "wvm", "stamp"): return 0
    if o[0] == "vm": return 8
    if o[0] == "grp": return sum(opcost(x) for x in o[1])
    return 4

def spread(steps, ops, s0, s1):
    n = s1 - s0
    if not OPT("WSPREAD", 1):
        for j, o in enumerate(ops):
            steps[s0 + (j*n)//len(ops)].setdefault("post", []).append(o)
        return
    tot = sum(opcost(o) for o in ops); acc = 0
    for o in ops:
        j = min(n - 1, int((acc + opcost(o)/2) * n / max(tot, 1)))
        steps[s0 + j].setdefault("post", []).append(o)
        acc += opcost(o)

def mf(d, a, b, c):
    return f"v_mfma_f32_32x32x16_bf16 {v(d,16)}, {v(a,4)}, {v(b,4)}, " + ("0" if c is None else v(c,16))

def F0(g): return 256*(g % 7) + 64*(g // 7)

def gen():
    k = Kern()
    vT31, vHf = 1, 2
    k("s_cmp_ge_u32 s2, 256")
    k("s_cbranch_scc1 P_END")
    k("s_load_dwordx16 s[4:19], s[0:1], 0")
    k("s_load_dwordx4 s[20:23], s[0:1], 64")
    k("s_load_dwordx2 s[24:25], s[0:1], 80")
    if STAMP or OPT("TMK", ""):
        k("s_memrealtime s[80:81]")
    if STAMP:
        k("s_memtime s[82:83]")
    k("v_lshrrev_b32 v1, 6, v0")
    k("v_and_b32 v0, 63, v0")
    k("v_mov_b32 v3, 0")
    k(f"v_readfirstlane_b32 s{sWave}, v1")
    k("s_and_b32 s72, s2, 7")
    k("s_lshr_b32 s73, s2, 3")
    k("s_lshr_b32 s74, s72, 1")
    k("s_lshl_b32 s74, s74, 3")
    k("s_lshr_b32 s75, s73, 2")
    k(f"s_add_u32 s{sM}, s74, s75")
    k("s_and_b32 s74, s72, 1")
    k("s_lshl_b32 s74, s74, 2")
    if OPT("NROT", 0): k(f"s_add_u32 s73, s73, {OPT('NROT', 0)}")
    k("s_and_b32 s75, s73, 3")
    k(f"s_add_u32 s{sN}, s74, s75")
    k(f"s_and_b32 s{sTT}, s{sWave}, 1")
    k(f"s_bfe_u32 s{sCH}, s{sWave}, 0x10001")
    k(f"s_mov_b32 s{sSpin}, {SPIN}")
    k(f"v_and_b32 v{vT31}, 31, v0")
    k(f"v_lshrrev_b32 v{vHf}, 5, v0")
    k(f"s_and_b32 s{sG}, s2, 7")
    k(f"s_lshr_b32 s{sIdx}, s2, 3")
    vXg, vXW, vST0, vNc = 60, (61, 62), 58, 63
    X = 64
    k("v_lshrrev_b32 v6, 4, v0")
    k("v_and_b32 v7, 15, v0")
    k(f"s_lshl_b32 s72, s{sWave}, 3")
    k("v_add_u32 v6, s72, v6")
    k("v_lshrrev_b32 v9, 3, v7")
    k("v_lshlrev_b32 v9, 13, v9")
    k("v_and_b32 v10, 7, v7")
    for j in range(2):
        k(f"v_add_u32 v8, {4*j}, v6")
        k("v_bfe_u32 v11, v8, 1, 3")
        k("v_xor_b32 v11, v10, v11")
        k("v_lshl_add_u32 v11, v11, 4, v9")
        k(f"v_lshl_add_u32 v{vXW[j]}, v8, 7, v11")
    k(f"v_lshlrev_b32 v{vST0}, 4, v6")
    k(f"v_add_u32 v{vST0}, {TAB_ST}, v{vST0}")
    k(f"s_lshl_b32 s72, s{sM}, 6")
    k("v_add_u32 v6, s72, v6")
    k("v_lshlrev_b32 v6, 10, v6")
    k(f"v_lshl_add_u32 v{vXg}, v7, 4, v6")
    k("s_movk_i32 s71, 0x1000")
    k("v_mov_b32 v128, 0x3f803f80")
    k("v_mov_b32 v59, 0")
    k(f"s_cmp_ge_u32 s{sWave}, 4")
    k("s_cbranch_scc1 B_PRE")
    A = Prog(k, "A"); B = Prog(k, "B")
    def xloads(P):
        srd(k, SX, P_X, 2*MB)
        for j in range(2):
            for i in range(4):
                P.vm(f"buffer_load_dwordx4 {v(X+16*j+4*i,4)}, v{vXg}, {S(SX)}, {'s71' if j else '0'} offen offset:{256*i}", f"x{j}")
    def p0_group(P, j):
        XJ = X + 16*j; ones = 128
        P.wvm(f"x{j}")
        P.stamp("@P0C" if j == 0 else "@P0D")
        sm = [130, 131]; sq = [132, 133]
        for i in range(16):
            P.raw(f"v_dot2_f32_bf16 v{sm[i&1]}, v{XJ+i}, v{ones}, " + ("0" if i < 2 else f"v{sm[i&1]}"))
            P.raw(f"v_dot2_f32_bf16 v{sq[i&1]}, v{XJ+i}, v{XJ+i}, " + ("0" if i < 2 else f"v{sq[i&1]}"))
        T = 144
        for i in range(2):
            for jj in range(4):
                P.raw(f"v_lshlrev_b32 v{T+8*i+2*jj}, 16, v{XJ+4*i+jj}")
                P.raw(f"v_and_b32 v{T+8*i+2*jj+1}, 0xffff0000, v{XJ+4*i+jj}")
        P.raw("v_add_f32 v130, v130, v131")
        P.raw("v_add_f32 v132, v132, v133")
        for dpp in ("quad_perm:[1,0,3,2]", "quad_perm:[2,3,0,1]", "row_half_mirror", "row_mirror"):
            P.raw(f"v_add_f32_dpp v130, v130, v130 {dpp} row_mask:0xf bank_mask:0xf")
            P.raw(f"v_add_f32_dpp v132, v132, v132 {dpp} row_mask:0xf bank_mask:0xf")
        P.raw(f"v_mul_f32 v130, {hx(1.0/512)}, v130")
        P.raw(f"v_mul_f32 v132, {hx(1.0/512)}, v132")
        P.raw("v_fma_f32 v132, -v130, v130, v132")
        P.raw("v_max_f32 v132, 0, v132")
        P.raw(f"v_add_f32 v133, {hx(EPS_LN)}, v132")
        P.raw("v_rsq_f32 v137, v133")
        P.raw("v_mov_b32 v139, 0")
        P.raw("v_mul_f32 v136, v130, v137")
        P.raw("v_sub_f32 v136, 0, v136")
        P.raw("v_mul_f32 v138, v137, v137")
        P.raw("v_mul_f32 v138, v138, v132")
        P.raw(f"v_add_f32 v138, {hx(EPS_LN)}, v138")
        P.raw("v_rsq_f32 v138, v138")
        for i in range(4):
            t = T + 8*(i & 1)
            if i >= 2:
                for jj in range(4):
                    P.raw(f"v_lshlrev_b32 v{t+2*jj}, 16, v{XJ+4*i+jj}")
                    P.raw(f"v_and_b32 v{t+2*jj+1}, 0xffff0000, v{XJ+4*i+jj}")
            for jj in range(4): P.raw(f"v_pk_fma_f32 v[{t+2*jj}:{t+2*jj+1}], v[{t+2*jj}:{t+2*jj+1}], v[136:137], v[136:137] op_sel:[0,1,0] op_sel_hi:[1,1,0]")
            for jj in range(4): P.raw(f"v_cvt_pk_bf16_f32 v{XJ+4*i+jj}, v{t+2*jj}, v{t+2*jj+1}")
            P.ds(f"ds_write_b128 v{vXW[j]}, {v(XJ+4*i,4)} offset:{16384*i}", "xw")
        P.ds(f"ds_write_b128 v{vST0}, v[136:139] offset:{64*j}", "xw")
    k("s_waitcnt lgkmcnt(0)")
    if STAMP or OPT("TMK", ""): k("s_mov_b32 s79, s80")
    xloads(A)
    if OPT("SPF1", 0):
        k(f"s_lshl_b32 s72, s{sIdx}, 2")
        k(f"s_add_u32 s72, s72, s{sWave}")
        k("s_lshl_b32 s72, s72, 12")
        k(f"s_and_b32 s73, s{sG}, 1")
        k("s_lshl_b32 s73, s73, 9")
        k("s_add_u32 s72, s72, s73")
        k(f"s_add_u32 s86, s{P_W1}, s72")
        k(f"s_addc_u32 s87, s{P_W1+1}, 0")
        for r in range(4):
            for c in range(8): k(f"s_load_dword s{88 + ((8*r + c) & 7)}, s[86:87], {r*1024 + c*64}")
    srd(k, SDBG, P_DBG, 256)
    k(f"s_or_b32 s73, s2, s{sWave}")
    k("s_cmp_lg_u32 s73, 0")
    k("s_cbranch_scc1 P_NON")
    k("s_memrealtime s[74:75]")
    k("v_mov_b32 v6, 0")
    k("s_waitcnt lgkmcnt(0)")
    k("s_or_b32 s74, s74, 1")
    k("v_mov_b32 v7, s74")
    k("s_mov_b64 exec, 1")
    k(f"buffer_store_dword v7, v6, {S(SDBG)}, 0 offen sc1")
    k("s_mov_b64 exec, -1")
    k.label("P_NON")
    A.vm(f"buffer_load_dword v{vNc}, v59, {S(SDBG)}, 0 offen sc1", "nc")
    srd(k, SWS, P_WS, WS_SIZE)
    srd(k, SOUT, P_OUT, 2*MB)

    vWn, vWf, vHa = (6, 7), (8, 9), (10, 11)
    xa = [12, 13, 14, 15]
    vX1a, vAX, vXR, vNonA, vFl0A, vLinA = 16, 17, 18, 19, 20, 21
    X1P, ONE = 22, 30
    vP4A = 3
    ACA, ACB, HF, WF, ACT = 32, 48, 64, 96, 128
    k("v_bfe_u32 v3, v0, 2, 2")
    k("v_and_b32 v4, 3, v0")
    k("v_bfe_u32 v5, v0, 4, 1")
    k(f"s_lshl_b32 s72, s{sCH}, 2")
    k("v_lshrrev_b32 v30, 1, v4")
    k("v_lshl_add_u32 v30, v5, 1, v30")
    k("v_add_u32 v30, s72, v30")
    k("v_lshrrev_b32 v31, 1, v3")
    k("v_lshlrev_b32 v31, 2, v31")
    k("v_xor_b32 v30, v30, v31")
    k("v_lshlrev_b32 v30, 4, v30")
    k("v_and_b32 v31, 1, v4")
    k("v_lshl_add_u32 v30, v31, 3, v30")
    k(f"v_lshl_add_u32 v31, v{vHf}, 3, v3")
    k(f"v_lshl_add_u32 v{vWn[0]}, v31, 7, v30")
    k(f"v_add_u32 v{vWn[1]}, 0x10000, v{vWn[0]}")
    k(f"v_lshl_add_u32 v31, v{vHf}, 2, v3")
    k(f"v_lshl_add_u32 v{vWf[0]}, v31, 7, v30")
    k(f"v_add_u32 v{vWf[1]}, 0x10000, v{vWf[0]}")
    k(f"v_lshlrev_b32 v{vLinA}, 4, v0")
    k(f"s_lshl_b32 s72, s{sTT}, 12")
    k("s_add_u32 s72, s72, 8192")
    k(f"v_add_u32 v{vHa[0]}, s72, v{vLinA}")
    k(f"v_add_u32 v{vHa[1]}, 0x10000, v{vHa[0]}")
    k(f"v_bfe_u32 v30, v{vT31}, 1, 3")
    k(f"v_xor_b32 v30, v30, v{vHf}")
    k("v_lshlrev_b32 v30, 4, v30")
    k(f"v_lshl_add_u32 v{xa[0]}, v{vT31}, 7, v30")
    k(f"s_lshl_b32 s72, s{sTT}, 12")
    k(f"v_add_u32 v{xa[0]}, s72, v{xa[0]}")
    for j in range(1, 4): k(f"v_xor_b32 v{xa[j]}, {32*j}, v{xa[0]}")
    k(f"s_lshl_b32 s72, s{sTT}, 14")
    k("s_add_u32 s72, s72, 0x10000")
    k(f"v_add_u32 v{vX1a}, s72, v{vLinA}")
    k(f"s_lshl_b32 s72, s{sWave}, 12")
    k(f"s_add_u32 s72, s72, {ACCX}")
    k(f"v_add_u32 v{vAX}, s72, v{vLinA}")
    k(f"s_lshl_b32 s72, s{sTT}, 5")
    k(f"v_add_u32 v30, s72, v{vT31}")
    k("v_bfe_u32 v31, v30, 1, 3")
    k(f"s_lshl_b32 s72, s{sCH}, 2")
    k("v_xor_b32 v31, s72, v31")
    k("v_lshlrev_b32 v31, 4, v31")
    k("v_lshl_add_u32 v31, v30, 7, v31")
    k(f"v_lshl_add_u32 v31, v{vHf}, 3, v31")
    k(f"v_add_u32 v{vXR}, {XTR}, v31")
    k(f"v_mov_b32 v{vFl0A}, {hex(OOB)}")
    k("v_mov_b32 v30, 0")
    k("v_cmp_eq_u32 vcc, 0, v0")
    k(f"v_cndmask_b32 v{vFl0A}, v{vFl0A}, v30, vcc")
    k(f"v_lshlrev_b32 v{vP4A}, 2, v0")
    k(f"v_mov_b32 v{ONE}, 0x3f803f80")
    sHead, sFkv, sTileA, sFrag, sFidx = 4, 5, 6, 7, 8
    k(f"s_lshl_b32 s{sHead}, s{sN}, 2")
    k(f"s_lshl_b32 s72, s{sCH}, 1")
    k(f"s_add_u32 s{sHead}, s{sHead}, s72")
    if SWAPS:
        k(f"s_and_b32 s72, s{sN}, 3")
        k("s_cmp_eq_u32 s72, 3")
        k(f"s_cselect_b32 s{sDl}, 16, 0")
    k(f"s_lshl_b32 s{sTileA}, s{sM}, 1")
    k(f"s_add_u32 s{sTileA}, s{sTileA}, s{sTT}")
    k(f"s_lshl_b32 s72, s{sTileA}, 15")
    k(f"s_lshl_b32 s73, s{sHead}, 10")
    k(f"s_add_u32 s{sFrag}, s72, s73")
    k(f"s_lshl_b32 s{sFidx}, s{sM}, 5")
    k(f"s_lshl_b32 s72, s{sN}, 2")
    k(f"s_add_u32 s{sFidx}, s{sFidx}, s72")
    k(f"s_add_u32 s{sFidx}, s{sFidx}, s{sWave}")
    k(f"s_lshl_b32 s{sFidx}, s{sFidx}, 2")
    if STAMP: k("v_mov_b32 v5, 0")
    p0_group(A, 0)
    p0_group(A, 1)
    k("s_branch A_MAIN")

    k.label("B_PRE")
    sWb, sRowQ, sRow1, sRow3, sCb, sRowC, sW4a, sW4b, sH3a, sH3b, sOb, sX1b, sHst, sH3st, sBw, sTile = range(4, 20)
    sCsP, sCsOOB, sCsG, sFidxB, sHsrc, sSt = 20, 21, 22, 23, 24, 25
    Wl3072, Wl1024, Wl3584 = [4, 5, 6, 7], [8, 9, 10, 11], [12, 13, 14, 15]
    vLin, vAXb, vHs, vNon, vFl0, vP4 = 16, 17, 18, 19, 20, 21
    k(f"s_sub_u32 s77, s{sWave}, 4")
    if STAMP: k("v_mov_b32 v255, 0")
    if OPT("TMK", ""):
        k(f"v_mov_b32 v252, {hex(OOB)}")
        k("v_mov_b32 v255, 0")
        k("v_lshlrev_b32 v253, 2, v0")
        k("v_cmp_gt_u32 vcc, 16, v0")
        k("v_cndmask_b32 v253, v252, v253, vcc")
        k(f"s_cmp_eq_u32 s{sWave}, 4")
        k(f"s_cselect_b32 s72, 0, {hex(OOB)}")
        sel = OPT("TMSEL", "")
        if sel:
            k(f"s_cmp_eq_u32 s{sN}, {sel}")
            k(f"s_cselect_b32 s72, s72, {hex(OOB)}")
        k("v_or_b32 v253, s72, v253")
    vPFD = 254
    sBw_ = 77
    def pf(P, srdn, pitch, nmat, complete, colstep=1024, col0=0, nl=4, half=512, rows=512, tag="pf", swap=False):
        nw = 128 if complete else 512
        per = rows*nl // nw
        assert per*nw == rows*nl and per*nmat <= 64
        P.raw(f"s_lshl_b32 s72, s{sIdx}, 2")
        P.raw(f"s_add_u32 s72, s72, s{sBw_}")
        if not complete:
            P.raw(f"s_lshr_b32 s73, s{sG}, 1")
            P.raw("s_lshl_b32 s73, s73, 7")
            P.raw("s_add_u32 s72, s72, s73")
        P.raw(f"s_mul_i32 s72, s72, {per}")
        if nmat > 1:
            assert per & (per - 1) == 0
            sh = per.bit_length() - 1
            P.raw(f"v_lshrrev_b32 v29, {sh}, v0")
            P.raw(f"v_and_b32 v28, {per-1}, v0")
        else:
            P.raw("v_mov_b32 v28, v0")
        P.raw("v_add_u32 v28, s72, v28")
        lsh = nl.bit_length() - 1
        assert 1 << lsh == nl
        P.raw(f"v_lshrrev_b32 v30, {lsh}, v28")
        P.raw(f"v_and_b32 v28, {nl-1}, v28")
        if swap:
            P.raw(f"s_and_b32 s73, s{sG}, 1")
            P.raw("s_lshl_b32 s73, s73, 3")
            P.raw("s_sub_u32 s73, 4, s73")
            P.raw("v_add_u32 v31, s73, v28")
            P.raw("v_cmp_eq_u32 vcc, 3, v28")
            P.raw("v_cndmask_b32 v28, v28, v31, vcc")
        P.raw("v_lshlrev_b32 v28, 7, v28")
        P.raw(f"s_movk_i32 s73, {pitch}")
        P.raw("v_mad_u32_u24 v28, v30, s73, v28")
        if nmat > 1:
            P.raw(f"s_movk_i32 s73, {colstep}")
            P.raw("v_mad_u32_u24 v28, v29, s73, v28")
        P.raw(f"s_and_b32 s73, s{sG}, 1")
        P.raw(f"s_mul_i32 s73, s73, {half}")
        if col0: P.raw(f"s_add_u32 s73, s73, {col0}")
        P.raw(f"v_mov_b32 v30, {hex(OOB)}")
        P.raw(f"v_cmp_gt_u32 vcc, {per*nmat}, v0")
        P.raw("v_cndmask_b32 v28, v30, v28, vcc")
        P.vm(f"buffer_load_dword v{vPFD}, v28, {srdn}, s73 offen", tag)
    def pfs(P, at):
        for name, dflt, fn in (("PFW1", "A:c", lambda c: pf(P, S(SW1), 1024, 1, c, swap="W1" in SWAPS)),
                               ("PFKV", "B:c", lambda c: pf(P, S(SQKV), 3072, 2, c, col0=1024, swap="K" in SWAPS)),
                               ("PFQ", "D:d", lambda c: pf(P, S(SQKV), 3072, 1, c)),
                               ("PFW2", "D:d", lambda c: pf(P, S(SW2), 1024, 1, c)),
                               ("PFW3", "E:d", lambda c: pf(P, S(SW3), 3584, 1, c, nl=16, half=2048)),
                               ("PFW4", "E:d", lambda c: pf(P, S(SW4), 1024, 1, c, rows=2048 if False else 1792)),
                               ("PFWO", "E:d", lambda c: pf(P, S(SWO), 1024, 1, c))):
            if OPT("SPF", 1) and name in OPT("SPFM", "Q,W2,W3,W4,WO").replace("Q", "PFQ").replace("W", "PFW").split(","): continue
            o = OPT(name, dflt)
            if o and o.split(":")[0] == at: fn(o.split(":")[1] == "c")
    spq = []
    def spf_setup(P):
        if not OPT("SPF", 1): return
        P.raw(f"s_lshl_b32 s98, s{sIdx}, 2")
        P.raw(f"s_add_u32 s98, s98, s{sBw}")
        P.raw(f"s_lshr_b32 s72, s{sG}, 1")
        P.raw("s_lshl_b32 s72, s72, 7")
        P.raw("s_add_u32 s98, s98, s72")
        P.raw(f"s_and_b32 s99, s{sG}, 1")
        ms = OPT("SPFM", "Q,W2,W3,W4,WO").split(",")
        ents = {e[0]: e for e in (("W2", SW2, 1024, 512, 88, [64*j for j in range(8)]),
                                                ("Q", SQKV, 3072, 512, 86, [64*j for j in range(8)]),
                                                ("W3", SW3, 3584, 1536, 90, [64*j for j in range(32)]),
                                                ("W4", SW4, 4096, 512, 92, [1024*r + 64*j for r in range(4) for j in range(8)]),
                                                ("WO", SWO, 1024, 512, 94, [64*j for j in range(8)]))}
        for nm, sr, pitch, hoff, base, offs in [ents[x] for x in OPT("SPFORD", "W2,Q,W3,W4,WO").split(",")]:
            if nm not in ms: continue
            if nm == "W4":
                P.raw("s_min_u32 s73, s98, 447")
                P.raw(f"s_mul_i32 s72, s73, {pitch}")
            else:
                P.raw(f"s_mul_i32 s72, s98, {pitch}")
            P.raw(f"s_mul_i32 s73, s99, {hoff}")
            P.raw("s_add_u32 s72, s72, s73")
            P.raw(f"s_add_u32 s{base}, s{sr}, s72")
            P.raw(f"s_addc_u32 s{base+1}, s{sr+1}, 0")
            spq.extend((base, o_) for o_ in offs)
    spq2 = []
    def spf2_setup(P, late):
        ms = [x for x in OPT("SP2M", "").split(",") if x]
        if not ms: return
        ents = {"W4": (SW4, 1024, 14, 68, 0), "WO": (SWO, 1024, 4, 70, 0), "W2": (SW2, 1024, 4, 100, 0), "Q": (SQKV, 3072, 4, 0, 0),
                "K": (SQKV, 3072, 4, 100, 1024), "V": (SQKV, 3072, 4, 0, 2048)}
        if not late:
            for nm in ms:
                sr, pitch, rows, base, col = ents[nm]
                spq2.extend((base, r*pitch + 64*h) for r in range(rows) for h in range(OPT("SP2H", 2)))
        sel = [nm for nm in ms if (ents[nm][3] in (68, 70)) == late]
        if not sel: return
        P.raw(f"s_lshl_b32 s98, s{sIdx}, 2")
        P.raw(f"s_add_u32 s98, s98, s{sBw}")
        P.raw(f"s_and_b32 s99, s{sG}, 1")
        for nm in sel:
            sr, pitch, rows, base, col = ents[nm]
            P.raw(f"s_mul_i32 s72, s98, {pitch*rows}")
            ev, od = (384, 896) if nm not in OPT("SWAP", "").split(",") else (896, 384)
            P.raw(f"s_mul_i32 s73, s99, {od - ev}")
            P.raw(f"s_add_u32 s73, s73, {ev + col}")
            P.raw("s_add_u32 s72, s72, s73")
            P.raw(f"s_add_u32 s{base}, s{sr}, s72")
            P.raw(f"s_addc_u32 s{base+1}, s{sr+1}, 0")
    VT = dict((x.split(":")[0], x.split(":")[1]) for x in OPT("VT", "").split(",") if x)
    vTA = {"W4": 70, "WO": 71, "W2": 73, "Q": 74, "K": 75, "V": 76, "H3": 77, "O": 78}
    VTALL = OPT("VTALL", 0)
    def vt_setup(P):
        if not VT: return
        P.raw(f"s_lshl_b32 s98, s{sIdx}, 2")
        P.raw(f"s_add_u32 s98, s98, s{sBw}")
        SW_ = OPT("SWAP", "").split(",")
        P.raw(f"s_and_b32 s99, s{sG}, 1")
        LS = 2 if VTALL else 0
        if VTALL:
            P.raw("v_lshrrev_b32 v27, 2, v0")
            P.raw("v_and_b32 v26, 3, v0")
            P.raw("v_lshlrev_b32 v26, 7, v26")
            P.raw("s_lshl_b32 s72, s99, 9")
            P.raw("v_add_u32 v26, s72, v26")
        else:
            P.raw("v_mov_b32 v27, v0")
        def colsel(nm, col):
            own = 1 if nm in SW_ else 0
            P.raw(f"s_cmp_eq_u32 s99, {own}")
            P.raw(f"s_mov_b32 s72, {hex(OOB)}")
            P.raw(f"s_cselect_b32 s73, 0, s72")
            P.raw(f"s_or_b32 s73, s73, {384 + col}")
        used = set(x.split(".")[0] for v_ in VT.values() for x in v_.split("+"))
        if "W4" in used:
            P.raw("s_lshr_b32 s72, s98, 6")
            P.raw("v_lshl_add_u32 v28, v27, 1, s72")
            P.raw("v_mul_u32_u24 v29, 37, v28")
            P.raw("v_lshrrev_b32 v29, 8, v29")
            P.raw("v_mul_u32_u24 v30, 7, v29")
            P.raw("v_sub_u32 v28, v28, v30")
            P.raw("v_lshlrev_b32 v28, 8, v28")
            P.raw("v_lshl_add_u32 v28, v29, 6, v28")
            P.raw("s_and_b32 s72, s98, 63")
            P.raw("v_add_u32 v28, s72, v28")
            P.raw("v_lshlrev_b32 v28, 10, v28")
            if VTALL:
                P.raw(f"v_add_u32 v{vTA['W4']}, v26, v28")
            else:
                colsel("W4", 0)
                P.raw(f"v_or_b32 v{vTA['W4']}, s73, v28")
        for nm, pitch, col in (("WO", 1024, 0), ("W2", 1024, 0), ("Q", 3072, 0), ("K", 3072, 1024), ("V", 3072, 2048)):
            if nm not in used: continue
            P.raw("v_lshl_add_u32 v28, v27, 7, s98")
            P.raw(f"v_mul_u32_u24 v28, {pitch}, v28")
            if VTALL:
                if col: P.raw(f"v_add_u32 v28, {col}, v28")
                P.raw(f"v_add_u32 v{vTA[nm]}, v26, v28")
            else:
                colsel({"WO": "W4", "V": "K"}.get(nm, nm), 0)
                P.raw("s_and_b32 s72, s73, 0x7f000000")
                P.raw(f"v_add_u32 v28, {384 + col}, v28")
                P.raw(f"v_or_b32 v{vTA[nm]}, s72, v28")
        if "H3" in used:
            P.raw(f"s_and_b32 s72, s{sN}, 3")
            P.raw("s_lshl_b32 s72, s72, 2")
            P.raw(f"s_add_u32 s72, s72, s{sBw}")
            P.raw("s_lshr_b32 s73, s72, 3")
            P.raw("s_and_b32 s72, s72, 7")
            P.raw("s_mul_i32 s72, s72, 28")
            P.raw("v_add_u32 v28, s72, v0")
            P.raw("v_lshrrev_b32 v29, 5, v28")
            P.raw("v_lshlrev_b32 v29, 14, v29")
            P.raw("v_and_b32 v28, 31, v28")
            P.raw("v_lshl_add_u32 v28, v28, 7, v29")
            P.raw("s_mul_i32 s73, s73, 114688")
            P.raw(f"s_mul_i32 s72, s{sM}, 229376")
            P.raw("s_add_u32 s72, s72, s73")
            P.raw(f"s_add_u32 s72, s72, {hex(W_H3)}")
            P.raw("v_add_u32 v28, s72, v28")
            P.raw(f"v_mov_b32 v29, {hex(OOB)}")
            P.raw("v_cmp_gt_u32 vcc, 28, v0")
            P.raw(f"v_cndmask_b32 v{vTA['H3']}, v29, v28, vcc")
        if "O" in used or "X1" in used or "H" in used:
            P.raw(f"s_and_b32 s72, s{sN}, 3")
            P.raw("s_lshl_b32 s72, s72, 2")
            P.raw(f"s_add_u32 s72, s72, s{sBw}")
            P.raw("s_lshl_b32 s72, s72, 12")
            P.raw(f"s_lshl_b32 s73, s{sM}, 16")
            P.raw("s_add_u32 s72, s72, s73")
            P.raw("v_lshl_add_u32 v28, v0, 7, s72")
            P.raw(f"v_mov_b32 v29, {hex(OOB)}")
            P.raw("v_cmp_gt_u32 vcc, 32, v0")
            P.raw(f"v_cndmask_b32 v{vTA['O']}, v29, v28, vcc")
    def vt(P, at):
        if at not in VT: return
        for it in VT.pop(at).split("+"):
            nm, a, b = (it.split(".") + ["0", "0"])[:3]; a = int(a); b = int(b)
            if nm == "H3":
                P.vm(f"buffer_load_dword v72, v{vTA['H3']}, {S(SWS)}, 0 offen offset:0 sc1" if a == 0 else
                     ("grp", []), "vt") if False else None
                P.raw(f"s_mov_b32 s73, {a*4096}")
                P.vm(f"buffer_load_dword v72, v{vTA['H3']}, {S(SWS)}, s73 offen sc1", "vt")
                continue
            if nm in ("O", "X1", "H"):
                P.raw(f"s_mov_b32 s73, {hex({'O': W_O, 'X1': W_X1, 'H': W_H}[nm])}")
                P.vm(f"buffer_load_dword v72, v{vTA['O']}, {S(SWS)}, s73 offen sc1", "vt")
                continue
            sr = {"W4": SW4, "WO": SWO, "W2": SW2, "Q": SQKV, "K": SQKV, "V": SQKV}[nm]
            if VTALL: a *= 4; b *= 4
            mask = ((1 << b) - 1) ^ ((1 << a) - 1)
            P.raw(f"s_mov_b32 exec_lo, {hex(mask & 0xffffffff)}")
            P.raw(f"s_mov_b32 exec_hi, {hex(mask >> 32)}")
            P.vm(f"buffer_load_dword v72, v{vTA[nm]}, {S(sr)}, 0 offen", "vt")
            P.raw("s_mov_b64 exec, -1")
    SP2 = dict((x.split(":")[0], int(x.split(":")[1])) for x in OPT("SP2", "").split(",") if x)
    def spf2(P, at):
        for _ in range(min(SP2.get(at, 0), len(spq2))):
            b, o_ = spq2.pop(0)
            P.raw(f"s_load_dword s97, s[{b}:{b+1}], {hex(o_)}")
    def spf(P, cnt=None):
        cnt = OPT("SPFN", 8) if cnt is None else cnt
        for _ in range(min(cnt, len(spq))):
            b, o_ = spq.pop(0)
            P.raw(f"s_load_dword s96, s[{b}:{b+1}], {hex(o_)}")
    k("v_lshrrev_b32 v22, 3, v0")
    k("v_and_b32 v23, 7, v0")
    k("v_bfe_u32 v24, v0, 4, 1")
    k("v_lshlrev_b32 v24, 2, v24")
    k("v_xor_b32 v23, v23, v24")
    k("v_lshlrev_b32 v23, 4, v23")
    def wl(regs, pitch):
        k(f"v_mul_u32_u24 v{regs[0]}, {pitch}, v22")
        k(f"v_add_u32 v{regs[0]}, v{regs[0]}, v23")
        for j in range(1, 4):
            k(f"v_add_u32 v{regs[j]}, {j*(8*pitch - 1024)}, v{regs[0]}")
    wl(Wl1024, 1024)
    wl(Wl3072, 3072)
    wl(Wl3584, 3584)
    k("s_waitcnt lgkmcnt(0)")
    if STAMP or OPT("TMK", ""): k("s_mov_b32 s79, s80")
    xloads(B)
    srd(k, SW1, P_W1, 512*1024)
    srd(k, SQKV, P_WQKV, 512*3072)
    srd(k, SWS, P_WS, WS_SIZE)
    srd(k, SW3, P_W3, 512*3584)
    srd(k, SDBG, P_DBG, 256)
    srd(k, SW2, P_W2, 512*1024)
    srd(k, SW4, P_W4, 1792*1024)
    srd(k, SWO, P_WO, 512*1024)
    if OPT("TLBW", 0) >= 2: srd(k, SOUT, P_OUT, 2*MB)
    pfs(B, "A")
    B.stamp("@pf1i")
    k(f"s_mov_b32 s{sBw}, s77")
    k(f"s_lshl_b32 s{sWb}, s{sBw}, 13")
    k(f"s_lshl_b32 s72, s{sN}, 7")
    if OPT("HACKN3", 0) == 2:
        k(f"s_cmp_eq_u32 s{sN}, 3")
        k("s_cselect_b32 s72, 256, s72")
    if SWAPS:
        k(f"s_cmp_eq_u32 s{sN}, 3")
        k(f"s_cselect_b32 s{sDl}, 512, 0")
        k(f"s_cmp_eq_u32 s{sN}, 7")
        k(f"s_cselect_b32 s{sDl}, -512, s{sDl}")
    k(f"s_lshl_b32 s73, s{sBw}, 16")
    k(f"s_add_u32 s{sRow1}, s73, s72")
    k(f"s_mul_i32 s73, s{sBw}, {64*3072}")
    k(f"s_add_u32 s{sRowQ}, s73, s72")
    if "K" in SWAPS: k(f"s_add_u32 s{sRowQ}, s{sRowQ}, s{sDl}")
    if "W1" in SWAPS: k(f"s_add_u32 s{sRow1}, s{sRow1}, s{sDl}")
    def dma4(m0base, m0c, srdn, regs, sbase, const, tag, sc1=False):
        out = []
        for j in range(4):
            g = []
            if j == 0:
                g.append(f"s_add_u32 m0, s{m0base}, {m0c}")
                g.append(f"s_add_u32 s{sT0}, s{sbase}, {hex(const & 0xffffffff)}")
            r = regs[j] if isinstance(regs, list) else regs
            g.append(("vm", f"buffer_load_dwordx4 v{r}, {S(srdn)}, s{sT0} offen offset:{j*1024}" + (" sc1" if sc1 else "") + " lds", tag))
            out.append(("grp", g))
        return out
    def wfill(f, srdn, regs, sRow, const, pitch):
        sl = (f % 4)*SLOT
        return dma4(sWb, sl, srdn, regs, sRow, const, f"f{f}") + dma4(sWb, sl + 4096, srdn, regs, sRow, const + 32*pitch, f"f{f}")
    k(f"s_lshr_b32 s72, s{sM}, 2")
    k("s_lshl_b32 s72, s72, 2")
    k(f"s_add_u32 s{sCsP}, s72, s{sBw}")
    k(f"s_and_b32 s74, s{sM}, 3")
    k(f"s_lshl_b32 s75, s{sN}, 2")
    k(f"s_add_u32 s{sCsG}, s74, s75")
    k(f"s_cmp_lt_u32 s{sM}, 16")
    k("s_cselect_b32 s75, 1, 0")
    k(f"s_cmp_lt_u32 s{sN}, 7")
    k("s_cselect_b32 s75, s75, 0")
    k("s_cmp_eq_u32 s75, 1")
    k(f"s_cselect_b32 s{sCsOOB}, 0, {hex(OOB)}")
    def cs3_dma(P):
        vC3 = 24
        P.raw("v_lshrrev_b32 v22, 3, v0")
        P.raw("v_and_b32 v25, 7, v0")
        P.raw("v_mul_u32_u24 v24, 3584, v22")
        P.raw(f"v_lshl_add_u32 v{vC3}, v25, 4, v24")
        P.raw(f"s_mul_i32 s73, s{sCsP}, {32*3584}")
        P.raw(f"s_lshl_b32 s74, s{sCsG}, 7")
        P.raw("s_add_u32 s73, s73, s74")
        P.raw(f"s_cmp_eq_u32 s{sCsOOB}, 0")
        P.raw("s_cselect_b32 s73, s73, 0")
        P.raw(f"v_or_b32 v{vC3}, s{sCsOOB}, v{vC3}")
        P.raw(f"s_lshl_b32 s72, s{sBw}, 12")
        P.raw(f"s_add_u32 m0, s72, {ACCX}")
        for j in range(4):
            if j: P.raw(f"v_add_u32 v{vC3}, {8*3584 - 1024}, v{vC3}")
            P.vm(f"buffer_load_dwordx4 v{vC3}, {S(SW3)}, s73 offen offset:{j*1024} lds", "cs3")
    def xtr_dma(P):
        P.raw("v_lshrrev_b32 v22, 3, v0")
        P.raw(f"s_lshl_b32 s72, s{sBw}, 4")
        P.raw("v_add_u32 v24, s72, v22")
        P.raw("v_bfe_u32 v25, v24, 1, 3")
        P.raw("v_and_b32 v26, 7, v0")
        P.raw("v_xor_b32 v25, v25, v26")
        P.raw("v_lshlrev_b32 v25, 4, v25")
        P.raw(f"s_lshl_b32 s72, s{sM}, 6")
        P.raw("v_add_u32 v24, s72, v24")
        P.raw("v_lshl_add_u32 v24, v24, 10, v25")
        P.raw(f"s_lshl_b32 s72, s{sN}, 7")
        P.raw("v_add_u32 v24, s72, v24")
        P.raw(f"s_lshl_b32 s72, s{sBw}, 11")
        P.raw(f"s_add_u32 m0, s72, {XTR}")
        P.vm(f"buffer_load_dwordx4 v24, {S(SX)}, 0 offen lds", "xt")
        P.raw("v_add_u32 v24, 8192 - 1024, v24")
        P.raw("v_xor_b32 v24, 64, v24")
        P.vm(f"buffer_load_dwordx4 v24, {S(SX)}, 0 offen offset:1024 lds", "xt")
    k(f"v_lshlrev_b32 v{vLin}, 4, v0")
    k(f"v_lshlrev_b32 v{vP4}, 2, v0")
    k(f"s_lshl_b32 s72, s{sBw}, 12")
    k(f"s_add_u32 s72, s72, {ACCX}")
    k(f"v_add_u32 v{vAXb}, s72, v{vLin}")
    k(f"v_mov_b32 v{vFl0}, {hex(OOB)}")
    k("v_mov_b32 v24, 0")
    k("v_cmp_eq_u32 vcc, 0, v0")
    k(f"v_cndmask_b32 v{vFl0}, v{vFl0}, v24, vcc")
    k(f"s_lshl_b32 s72, s{sN}, 9")
    k(f"s_mul_i32 s73, s{sBw}, {64*3584}")
    k(f"s_add_u32 s{sRow3}, s73, s72")
    k(f"s_lshl_b32 s72, s{sCH}, 14")
    k(f"s_lshl_b32 s73, s{sTT}, 12")
    k(f"s_add_u32 s{sCb}, s72, s73")
    k(f"s_lshl_b32 s72, s{sN}, 7")
    if OPT("HACKN3", 0) in (1, 2):
        k(f"s_cmp_eq_u32 s{sN}, 3")
        k("s_cselect_b32 s72, 256, s72")
    k(f"s_lshl_b32 s73, s{sBw}, 15")
    k(f"s_add_u32 s{sRowC}, s73, s72")
    k(f"s_lshl_b32 s73, s{sTT}, 15")
    k("s_add_u32 s72, s72, s73")
    k(f"s_lshl_b32 s73, s{sCH}, 18")
    k(f"s_add_u32 s{sW4a}, s72, s73")
    k(f"s_mul_i32 s73, s{sCH}, {-1472*1024}")
    k(f"s_add_u32 s{sW4b}, s72, s73")
    k(f"s_lshl_b32 s{sTile}, s{sM}, 1")
    k(f"s_add_u32 s{sTile}, s{sTile}, s{sTT}")
    k(f"s_mul_i32 s72, s{sTile}, {112*1024}")
    k(f"s_add_u32 s72, s72, {hex(W_H3)}")
    k(f"s_lshl_b32 s73, s{sCH}, 14")
    k(f"s_add_u32 s{sH3a}, s72, s73")
    k(f"s_mul_i32 s73, s{sCH}, {-1472*64}")
    k(f"s_add_u32 s{sH3b}, s72, s73")
    k(f"s_lshl_b32 s73, s{sN}, 14")
    k("s_add_u32 s72, s72, s73")
    k(f"s_lshl_b32 s73, s{sCH}, 11")
    k(f"s_add_u32 s{sH3st}, s72, s73")
    k(f"s_lshl_b32 s72, s{sTile}, 15")
    k(f"s_lshl_b32 s73, s{sCH}, 12")
    k(f"s_add_u32 s{sHsrc}, s73, {hex(W_H)}")
    k("s_add_u32 s73, s73, s72")
    k(f"s_add_u32 s{sOb}, s73, {hex(W_O)}")
    k(f"s_lshl_b32 s73, s{sCH}, 13")
    k("s_add_u32 s73, s73, s72")
    k(f"s_add_u32 s{sX1b}, s73, {hex(W_X1)}")
    k(f"s_lshl_b32 s73, s{sN}, 12")
    k("s_add_u32 s72, s72, s73")
    k(f"s_lshl_b32 s73, s{sCH}, 11")
    k("s_add_u32 s72, s72, s73")
    k(f"s_add_u32 s{sHst}, s72, {hex(W_H)}")
    k(f"s_lshl_b32 s{sFidxB}, s{sM}, 5")
    k(f"s_lshl_b32 s72, s{sN}, 2")
    k(f"s_add_u32 s{sFidxB}, s{sFidxB}, s72")
    k(f"s_add_u32 s{sFidxB}, s{sFidxB}, s{sBw}")
    k(f"s_lshl_b32 s{sFidxB}, s{sFidxB}, 2")
    p0_group(B, 0)
    B.run(wfill(2, SW1, Wl1024, sRow1, 0, 1024))
    B.stamp("@f2i")
    pfs(B, "B")
    p0_group(B, 1)
    B.run(wfill(3, SW1, Wl1024, sRow1, 256*1024, 1024))
    B.stamp("@f3i")
    pfs(B, "C")
    B.vm(f"buffer_load_dword v{vNc}, v59, {S(SDBG)}, 0 offen sc1", "nc")
    if OPT("TLBW", 0):
        ents = [(W_H, sM, 65536, None, 0), (W_X1, sM, 65536, None, 0), (W_O, sM, 65536, None, 0),
                (W_H3, sM, 229376, None, 0), (W_H3 + 114688, sM, 229376, None, 0),
                (W_KVP, sN, 262144, sM, 2048), (W_KVP, sM, 65536, None, 0), (W_KVF, sM, 1024, None, 0),
                (W_ST, sM, 8192, None, 0), (W_CS, sN, 16384, None, 0), (W_FL, sM, 128, None, 0), (W_FL + 32768, sM, 128, None, 0)]
        k(f"v_mov_b32 v47, {hex(OOB)}")
        for i, (base, s1, m1, s2, m2) in enumerate(ents):
            k(f"s_mul_i32 s72, s{s1}, {m1}")
            if s2 is not None:
                k(f"s_mul_i32 s73, s{s2}, {m2}")
                k("s_add_u32 s72, s72, s73")
            k(f"s_add_u32 s72, s72, {hex(base)}")
            k(f"v_writelane_b32 v47, s72, {i}")
        B.vm(f"buffer_load_dword v51, v47, {S(SWS)}, 0 offen sc1", "tlb")
        if OPT("TLBW", 0) >= 2:
            k(f"v_mov_b32 v47, {hex(OOB)}")
            k(f"s_lshl_b32 s72, s{sN}, 7")
            k("v_writelane_b32 v47, s72, 0")
            k(f"s_add_u32 s72, s72, {hex(511*1024)}")
            k("v_writelane_b32 v47, s72, 1")
            for sr in (SW2, SWO, SW3, SW4):
                B.vm(f"buffer_load_dword v51, v47, {S(sr)}, 0 offen", "tlb")
            k(f"s_add_u32 s72, s72, {hex(1280*1024)}")
            k("v_writelane_b32 v47, s72, 0")
            k(f"s_add_u32 s72, s72, {hex(-640*1024 & 0xffffffff)}")
            k("v_writelane_b32 v47, s72, 1")
            for sr in (SW3, SW4):
                B.vm(f"buffer_load_dword v51, v47, {S(sr)}, 0 offen", "tlb")
            k(f"v_mov_b32 v47, {hex(OOB)}")
            k(f"s_lshl_b32 s72, s{sM}, 16")
            k("v_writelane_b32 v47, s72, 0")
            B.vm(f"buffer_load_dword v51, v47, {S(SOUT)}, 0 offen", "tlb")
    k("s_branch B_MAIN")

    def get_nonce(vdst):
        L = k.newlabel("NC"); D = k.newlabel("ND")
        k(f"v_readfirstlane_b32 s{sNon}, v{vNc}")
        k(f"s_cmp_lg_u32 s{sNon}, 0")
        k(f"s_cbranch_scc1 {D}")
        k.label(L)
        k("v_mov_b32 v59, 0")
        k(f"buffer_load_dword v{vNc}, v59, {S(SDBG)}, 0 offen sc1")
        k("s_waitcnt vmcnt(0)")
        k(f"v_readfirstlane_b32 s{sNon}, v{vNc}")
        k(f"s_sub_u32 s{sSpin}, s{sSpin}, 1")
        k(f"s_cmp_le_i32 s{sSpin}, 0")
        k(f"s_cbranch_scc1 {D}")
        k(f"s_cmp_eq_u32 s{sNon}, 0")
        k(f"s_cbranch_scc1 {L}")
        k.label(D)
        k(f"v_mov_b32 v{vdst}, s{sNon}")

    P = A
    k.label("A_MAIN")
    k("s_waitcnt vmcnt(0) lgkmcnt(0)")
    A.vq = []; A.dq = []
    get_nonce(vNonA)
    P.stamp()
    def wread(base, f, ks16, ring, second):
        sl = f % 4
        off = (sl & 1)*SLOT + ks16*2048
        d = WF + 4*(ring % 8)
        return [(f"ds_read_b64_tr_b16 {v(d,2)}, v{base[sl>>1]} offset:{off}", ("w", ring, 0)),
                (f"ds_read_b64_tr_b16 {v(d+2,2)}, v{base[sl>>1]} offset:{off + second}", ("w", ring, 1))]
    vMa, vArA, vBrA, vRiA = 12, 13, 14, 15
    sHstA, sEps, sH3A, sH3r, sFlg = 12, 13, 14, 15, 16
    def gelu8(a, c, pk, T1, vM, vAr, vBr, vRi):
        L = []
        if c is not None:
            for i in range(8): L.append(f"v_fma_f32 v{a+i}, -v{vM}, v{c+i}, v{a+i}")
        for i in range(8): L.append(f"v_mul_f32 v{T1+i}, v{a+i}, v{a+i}")
        for i in range(8): L.append(f"v_fma_f32 v{T1+i}, v{T1+i}, v{vBr}, v{vAr}")
        for i in range(8): L.append(f"v_mul_f32 v{T1+i}, v{T1+i}, v{a+i}")
        for i in range(8): L.append(f"v_exp_f32 v{T1+i}, v{T1+i}")
        for i in range(8): L.append(f"v_fma_f32 v{T1+i}, v{T1+i}, v{vRi}, v{vRi}")
        for i in range(8): L.append(f"v_rcp_f32 v{T1+i}, v{T1+i}")
        for i in range(8): L.append(f"v_mul_f32 v{a+i}, v{a+i}, v{T1+i}")
        for i in range(4): L.append(f"v_cvt_pk_bf16_f32 v{pk+i}, v{a+2*i}, v{a+2*i+1}")
        return L
    def aflag(off_const, tagwait, tag):
        return [("stamp", "@w" + tag), ("wvm", tagwait), f"s_add_u32 s{sFlg}, s{sFidx}, {hex(off_const)}",
                ("vm", f"buffer_store_dword v{vNonA}, v{vFl0A}, {S(SWS)}, s{sFlg} offen sc1", tag), ("stamp", "@i" + tag)]
    NOEPI = OPT("NOEPI", 0)
    steps = []; pre = {}
    for R, (f0, wfirst) in enumerate(((2, True), (4, False), (6, False))):
        for ks in range(32):
            G = 32*R + ks
            f = f0 + (ks >> 4)
            st = dict(reads=wread(vWn, f, ks & 15, G, 512), need=[("w", G, 1)])
            d = ACB if ks == 31 else ACA
            c = None if ks == 0 else ACA
            a_, b_ = (WF + 4*(G % 8), ACT + 4*ks)
            st["mfma"] = mf(d, a_, b_, c) if wfirst else mf(d, b_, a_, c)
            if R == 0: st["need"].append(("act", ks))
            if ks % 16 == 0: st["gate"] = {0: "B1", 16: "b3", 32: "b4", 48: "b5", 64: "b6", 80: "b7"}[G]
            steps.append(st)
    side = [(-3 + ks//4, f"ds_read_b128 {v(ACT+4*ks,4)}, v{xa[ks&3]} offset:{(ks >> 2)*8192}", ("act", ks)) for ks in range(32)]
    pre[OPT("BAPOS", 6)] = [("wds", ("act", 31)), ("bar", "Ba")]
    cst = [f"s_lshl_b32 s72, s{sTT}, 9", f"s_add_u32 s72, s72, {TAB_ST + 8}", f"v_lshl_add_u32 v31, v{vT31}, 4, s72",
           ("ds", "ds_read_b32 v4, v31", "rh"),
           f"s_add_u32 s{sHstA}, s{sFrag}, {hex(W_H)}", f"s_mov_b32 s{sEps}, {hx(EPS_PHI)}"]
    if "W1" in SWAPS: cst += [f"s_lshl_b32 s72, s{sDl}, 10", f"s_xor_b32 s{sHstA}, s{sHstA}, s72"]
    steps[17].setdefault("post", []).extend(cst)
    cst2 = [("wds", "rh"), f"v_mul_f32 v{vArA}, {hx(GA)}, v4", f"v_mul_f32 v{vBrA}, v4, v4", f"v_rcp_f32 v{vRiA}, v4",
            f"v_mul_f32 v{vBrA}, v{vBrA}, v4", f"v_mul_f32 v{vBrA}, {hx(GB)}, v{vBrA}"]
    steps[24].setdefault("post", []).extend(cst2)
    T1h, PKh = 64, 72
    eh = gelu8(ACB, None, PKh, T1h, vMa, vArA, vBrA, vRiA) + \
         [("vm", f"buffer_store_dwordx4 {v(PKh,4)}, v{vLinA}, {S(SWS)}, s{sHstA} offen sc1", "hst")] + \
         gelu8(ACB+8, None, PKh+4, T1h, vMa, vArA, vBrA, vRiA) + \
         [("vm", f"buffer_store_dwordx4 {v(PKh+4,4)}, v{vLinA}, {S(SWS)}, s{sHstA} offen offset:1024 sc1", "hst")]
    if NOEPI: eh = [o for o in eh if not isinstance(o, str)]
    spread(steps, eh, 32 + 2, 32 + OPT("HEND", 22))
    steps[OPT("F1POS", 64 + 8)].setdefault("post", []).extend(aflag(F1, "hst", "f1flag"))
    KT, PA_ = 64, 88
    ek = []
    for i in range(16): ek.append(f"v_mul_f32 v{KT+i}, {hx(LOG2E)}, v{ACB+i}")
    for i in range(16): ek.append(f"v_add_f32 v{ACB+i}, s{sEps}, v{ACB+i}")
    for i in range(16): ek.append(f"v_exp_f32 v{KT+i}, v{KT+i} clamp")
    for i in range(16): ek.append(f"v_max_f32 v{ACB+i}, s{sEps}, v{ACB+i}")
    for i in range(16): ek.append(f"v_add_f32 v{ACB+i}, v{ACB+i}, v{KT+i}")
    for i in range(8): ek.append(f"v_cvt_pk_bf16_f32 v{PA_+i}, v{ACB+2*i}, v{ACB+2*i+1}")
    if NOEPI: ek = []
    spread(steps, ek, 64 + 2, 64 + OPT("KEND", 24))
    stream(P, steps, lambda s: 3 if s < 6 else 6, 3, pre=pre, side=side, side_rate=4)
    P.stamp()
    PB_, B0_, D0, D1 = 64, 72, 96, 112
    for i in range(8): P.raw(f"v_cvt_pk_bf16_f32 v{PB_+i}, v{ACB+2*i}, v{ACB+2*i+1}")
    P.raw(f"s_mov_b32 s{sMk}, 0x0000ffff")
    P.raw(f"s_mov_b32 s{sMk+1}, 0x0000ffff")
    for i in range(8): P.raw(f"v_cndmask_b32 v{B0_+i}, v{ONE}, v{PB_+i}, {S(sMk,2)}")
    for i in range(8): P.raw(f"v_cndmask_b32 v{PB_+i}, v{PB_+i}, v{ONE}, {S(sMk,2)}")
    P.raw(mf(D0, PA_, B0_, None))
    P.raw(mf(D1, PA_, PB_, None))
    P.raw(mf(D0, PA_+4, B0_+4, D0))
    P.raw(mf(D1, PA_+4, PB_+4, D1))
    P.raw(f"s_cmp_eq_u32 s{sTT}, 0")
    P.raw("s_cbranch_scc1 A_KV0")
    for i in range(8): P.raw(f"v_mov_b32 v{ACA+i}, v{D0+i}")
    for i in range(8): P.raw(f"v_mov_b32 v{ACA+8+i}, v{D1+8+i}")
    P.raw("s_branch A_KV1")
    P.label("A_KV0")
    for i in range(8): P.raw(f"v_mov_b32 v{ACA+i}, v{D1+8+i}")
    for i in range(8): P.raw(f"v_mov_b32 v{ACA+8+i}, v{D0+i}")
    P.label("A_KV1")
    P.ds(f"ds_write_b128 v{vAX}, {v(ACA,4)} offset:2048", "ex0")
    P.ds(f"ds_write_b128 v{vAX}, {v(ACA+4,4)} offset:3072", "ex1")
    P.raw(f"v_xor_b32 v31, 4096, v{vAX}")
    P.wds_all()
    P.bar("bK2")
    P.ds(f"ds_read_b128 {v(ACA,4)}, v31 offset:2048", "ex0")
    P.ds(f"ds_read_b128 {v(ACA+4,4)}, v31 offset:3072", "ex1")
    P.raw(f"s_add_u32 s72, s{sHead}, s{sTT}")
    if "K" in SWAPS: P.raw(f"s_xor_b32 s72, s72, s{sDl}")
    P.raw("s_lshl_b32 s72, s72, 5")
    P.raw(f"s_add_u32 s72, s72, s{sM}")
    P.raw("s_lshl_b32 s73, s72, 11")
    P.raw(f"s_add_u32 s73, s73, {hex(W_KVP)}")
    P.raw(f"s_lshl_b32 s{sFkv}, s72, 2")
    P.raw(f"s_add_u32 s{sFkv}, s{sFkv}, {hex(FKV)}")
    P.wds_all()
    for i in range(8): P.raw(f"v_add_f32 v{ACA+i}, v{ACA+i}, v{ACA+8+i}")
    P.vm(f"buffer_store_dwordx4 {v(ACA,4)}, v{vLinA}, {S(SWS)}, s73 offen sc1", "kvp")
    P.vm(f"buffer_store_dwordx4 {v(ACA+4,4)}, v{vLinA}, {S(SWS)}, s73 offen offset:1024 sc1", "kvp")
    def xslice_reads(dst):
        L = []
        for g in range(4):
            if g == 0: L.append(("ds", f"ds_read_b64 {v(dst,2)}, v{vXR}", "xr"))
            else:
                L.append(f"v_xor_b32 v31, {16*g}, v{vXR}")
                L.append(("ds", f"ds_read_b64 {v(dst+2*g,2)}, v31", "xr"))
        return L
    def unpack_ops(dst, src, n=8):
        L = []
        for i in range(n):
            L.append(f"v_lshlrev_b32 v{dst+2*i}, 16, v{src+i}")
            L.append(f"v_and_b32 v{dst+2*i+1}, 0xffff0000, v{src+i}")
        return L
    XRr, STv = 64, 72
    P.run(xslice_reads(XRr))
    P.raw(f"s_lshl_b32 s72, s{sTT}, 9")
    P.raw(f"s_add_u32 s72, s72, {TAB_ST}")
    P.raw(f"v_lshl_add_u32 v31, v{vT31}, 4, s72")
    P.ds(f"ds_read_b64 {v(STv,2)}, v31", "st")
    P.wds_all()
    INI = ACB
    P.run(unpack_ops(INI, XRr))
    for i in range(16): P.raw(f"v_fma_f32 v{INI+i}, v{INI+i}, v{STv+1}, v{STv}")
    def chunk_steps(f0, nch, G0, acc, init, gl=2):
        steps = []
        for c in range(nch):
            f = f0 + c; sl = f % 4
            for j in range(8):
                G = G0 + 8*c + j
                e, ks = j >> 2, j & 3
                off = (sl & 1)*SLOT + e*16384
                h = HF + 4*(G % 8); w = WF + 4*(G % 8)
                reads = [(f"ds_read_b128 {v(h,4)}, v{vHa[sl>>1]} offset:{off + ks*1024}", ("h", G)),
                         (f"ds_read_b64_tr_b16 {v(w,2)}, v{vWf[sl>>1]} offset:{off + ks*2048}", ("w", G, 0)),
                         (f"ds_read_b64_tr_b16 {v(w+2,2)}, v{vWf[sl>>1]} offset:{off + ks*2048 + 1024}", ("w", G, 1))]
                first = c == 0 and j == 0
                st = dict(reads=reads, need=[("w", G, 1)], mfma=mf(acc, w, h, (init if first else acc)))
                if j == 0: st["gate"] = f"b{f}"; st["gl"] = gl
                steps.append(st)
        return steps
    stream(P, chunk_steps(8, 4, 0, ACA, INI), lambda s: 4, 2)
    P.wvm("kvp")
    P.vm(f"buffer_store_dword v{vNonA}, v{vFl0A}, {S(SWS)}, s{sFkv} offen sc1", "fkv")
    for i in range(8): P.raw(f"v_cvt_pk_bf16_f32 v{X1P+i}, v{ACA+2*i}, v{ACA+2*i+1}")
    P.raw(f"s_add_u32 s72, s{sFrag}, {hex(W_X1)}")
    P.vm(f"buffer_store_dwordx4 {v(X1P,4)}, v{vLinA}, {S(SWS)}, s72 offen sc1", "x1")
    P.vm(f"buffer_store_dwordx4 {v(X1P+4,4)}, v{vLinA}, {S(SWS)}, s72 offen offset:1024 sc1", "x1")
    P.raw("v_mov_b32 v64, 0")
    P.raw("v_mov_b32 v65, 0")
    for i in range(8):
        P.raw(f"v_dot2_f32_bf16 v64, v{X1P+i}, v{ONE}, v64")
        P.raw(f"v_dot2_f32_bf16 v65, v{X1P+i}, v{X1P+i}, v65")
    P.raw(f"s_lshl_b32 s72, s{sM}, 4")
    P.raw(f"s_lshl_b32 s73, s{sN}, 1")
    P.raw("s_add_u32 s72, s72, s73")
    P.raw(f"s_add_u32 s72, s72, s{sCH}")
    P.raw("s_lshl_b32 s72, s72, 1")
    P.raw(f"s_add_u32 s72, s72, s{sTT}")
    P.raw("s_lshl_b32 s72, s72, 8")
    P.raw(f"s_add_u32 s72, s72, {hex(W_ST)}")
    P.raw("v_permlane32_swap_b32 v64, v65")
    P.raw("v_add_f32 v64, v64, v65")
    P.vm(f"buffer_store_dword v64, v{vP4A}, {S(SWS)}, s72 offen sc1", "x1")
    P.raw(f"s_add_u32 s9, s{sFidx}, {hex(F2)}")
    steps = []; pre = {}
    for ks in range(32):
        f = 12 + (ks >> 4)
        st = dict(reads=wread(vWn, f, ks & 15, ks, 512), need=[("w", ks, 1)])
        st["mfma"] = mf(ACA, WF + 4*(ks % 8), ACT + 4*ks, None if ks == 0 else ACA)
        if ks % 16 == 0: st["gate"] = f"b{f}"
        steps.append(st)
    pre[OPT("F2POS", 16)] = [("stamp", "@wf2"), ("wvm", "x1"), ("vm", f"buffer_store_dword v{vNonA}, v{vFl0A}, {S(SWS)}, s9 offen sc1", "f2"), ("stamp", "@if2")]
    stream(P, steps, lambda s: 6, 3, pre=pre)
    P.wds_all()
    P.bar("bQ")
    P.stamp()
    PQ = 64
    Q0, Q1 = 96, 112
    for i in range(16): P.raw(f"v_mul_f32 v{Q1+i}, {hx(LOG2E)}, v{ACA+i}")
    for i in range(16): P.raw(f"v_add_f32 v{Q0+i}, s{sEps}, v{ACA+i}")
    for i in range(16): P.raw(f"v_exp_f32 v{Q1+i}, v{Q1+i} clamp")
    for i in range(16): P.raw(f"v_max_f32 v{Q0+i}, s{sEps}, v{Q0+i}")
    for i in range(16): P.raw(f"v_add_f32 v{Q0+i}, v{Q0+i}, v{Q1+i}")
    for i in range(8): P.raw(f"v_cvt_pk_bf16_f32 v{PQ+i}, v{Q0+2*i}, v{Q0+2*i+1}")
    P.ds(f"ds_write_b128 v{vAX}, {v(PQ,4)}", "pq")
    P.ds(f"ds_write_b128 v{vAX}, {v(PQ+4,4)} offset:1024", "pq")
    sHq = sHead
    if "Q" in SWAPS:
        sHq = 74
        P.raw(f"s_xor_b32 s74, s{sHead}, s{sDl}")
    P.raw(f"s_lshl_b32 s10, s{sHq}, 5")
    P.raw(f"s_add_u32 s10, s10, {hex(FKF)}")
    P.raw(f"s_lshl_b32 s11, s{sHq}, 10")
    P.raw(f"s_add_u32 s11, s11, {hex(W_KVF)}")
    vH3o = 4
    P.raw(f"s_mul_i32 s72, s{sTileA}, {112*1024}")
    P.raw(f"s_lshl_b32 s73, s{sN}, 14")
    P.raw("s_add_u32 s72, s72, s73")
    P.raw(f"s_lshl_b32 s73, s{sCH}, 11")
    P.raw("s_add_u32 s72, s72, s73")
    P.raw(f"s_add_u32 s{sH3A}, s72, {hex(W_H3)}")
    P.raw(f"s_cmp_eq_u32 s{sN}, 7")
    P.raw(f"s_cselect_b32 s72, {hex(OOB)}, 0")
    P.raw(f"v_or_b32 v{vH3o}, s72, v{vLinA}")
    vS2 = 16
    steps = []; pre = {}
    for r in range(4):
        for ks in range(32):
            G = 32*r + ks
            f = 16 + 2*r + (ks >> 4)
            st = dict(reads=wread(vWf, f, ks & 15, G, 1024), need=[("w", G, 1)])
            st["mfma"] = mf(ACB if ks == 31 else ACA, WF + 4*(G % 8), ACT + 4*ks, None if ks == 0 else ACA)
            if r == 0: st["need"].append(("act", ks))
            if ks % 16 == 0: st["gate"] = "b14" if G == 0 else f"b{f}"
            steps.append(st)
    AC6 = 240
    steps += chunk_steps(24, 14, 128, ACA, None) + chunk_steps(38, 4, 240, AC6, None)
    side = [((-3 + ks//4) if ks < 16 else 10, f"ds_read_b128 {v(ACT+4*ks,4)}, v{vX1a} offset:{(ks >> 4)*32768 + (ks & 15)*1024}", ("act", ks)) for ks in range(32)]
    pre[OPT("BA2POS", 2)] = [("wds", ("act", 15)), ("bar", "Ba2")]
    pre[10] = [("bar", "b15")]
    pre[OPT("BB2POS", 15)] = [("wds", ("act", 31)), ("bar", "Bb2")]
    vCSa = 16
    steps[30].setdefault("post", []).extend(
        [f"s_lshl_b32 s72, s{sTT}, 9", f"s_add_u32 s72, s72, {TAB_S2}", f"v_lshl_add_u32 v31, v{vT31}, 4, s72",
         ("ds", f"ds_read_b128 {v(vMa,4)}, v31", "s2"),
         f"s_lshl_b32 s72, s{sCH}, 7", f"s_add_u32 s72, s72, {TAB_CS}", f"v_lshl_add_u32 v{vCSa}, v{vHf}, 4, s72"])
    def g4cs(r, CS):
        return [("ds", f"ds_read_b128 {v(CS+4*g,4)}, v{vCSa} offset:{256*r + 32*g}", ("cs", r, g)) for g in range(4)]
    def g4epi(r, CS, T1, PK):
        L = [f"s_add_u32 s{sH3r}, s{sH3A}, {4*r*1024}", ("wds", ("cs", r, 3), "s2")]
        g1 = gelu8(ACB, CS, PK, T1, vMa, vArA, vBrA, vRiA); g2 = gelu8(ACB+8, CS+8, PK+4, T1, vMa, vArA, vBrA, vRiA)
        if NOEPI: g1 = g2 = []
        L += g1 + [("vm", f"buffer_store_dwordx4 {v(PK,4)}, v{vH3o}, {S(SWS)}, s{sH3r} offen sc1", f"h3s{r}")]
        L += g2 + [("vm", f"buffer_store_dwordx4 {v(PK+4,4)}, v{vH3o}, {S(SWS)}, s{sH3r} offen offset:1024 sc1", f"h3s{r}")]
        return L
    GE = [OPT("GEND0", 20), OPT("GEND", 31), OPT("GEND", 31)]; F3P = [OPT("F3POS0", 40), OPT("F3POS", 54), OPT("F3POS2", 38)]
    for r in range(3):
        steps[32*r + 30].setdefault("post", []).extend(g4cs(r, 64))
        spread(steps, g4epi(r, 64, 80, 88), 32*(r+1) + 1, 32*(r+1) + GE[r])
        steps[32*(r+1) + F3P[r]].setdefault("post", []).extend(aflag(F3 + r*4096, f"h3s{r}", f"f3f{r}"))
    if OPT("R3SER", 1):
        steps[126].setdefault("post", []).extend(g4cs(3, 64))
        steps[127].setdefault("post", []).extend(g4epi(3, 64, 80, 88))
        steps[128]["gl"] = 0
    else:
        steps[128].setdefault("post", []).extend(g4cs(3, 192))
        spread(steps, g4epi(3, 192, 208, 216), 128 + 2, 128 + OPT("GEND3", 14))
    steps[128 + OPT("F3POS3", 28)].setdefault("post", []).extend(aflag(F3 + 3*4096, "h3s3", "f3f3"))
    vKf = 31
    KVF, PQ2, OD = 128, 136, 144
    steps[120].setdefault("post", []).append(("vm", f"buffer_load_dword v17, v{vP4A}, {S(SWS)}, s10 offen sc1", "kf"))
    def kf_check():
        if P.dead: return
        P.wvm("kf")
        saved = list(P.vq)
        OKL = k.newlabel("KFOK")
        P.raw(f"v_cmp_ne_u32 vcc, s{sNon}, v17")
        P.raw("s_and_b64 vcc, vcc, 0xffff")
        P.raw(f"s_cbranch_scc0 {OKL}")
        P.poll(17, vP4A, "s10", 0xffff, 0)
        P.label(OKL)
        P.vq = saved
        P.vm(f"buffer_load_dwordx4 {v(KVF,4)}, v{vLinA}, {S(SWS)}, s11 offen sc1", "kvf")
        P.vm(f"buffer_load_dwordx4 {v(KVF+4,4)}, v{vLinA}, {S(SWS)}, s11 offen offset:1024 sc1", "kvf")
    OJ = 128 + OPT("OJPOS", 14)
    steps[OJ].setdefault("post", []).append(("call", kf_check))
    pqr = [f"s_lshl_b32 s72, s{sWave}, 12", f"s_add_u32 s72, s72, {ACCX}", f"v_add_u32 v31, s72, v{vLinA}",
           ("ds", f"ds_read_b128 {v(PQ2,4)}, v31", "pq2"), ("ds", f"ds_read_b128 {v(PQ2+4,4)}, v31 offset:1024", "pq2")]
    steps[OJ+1].setdefault("post", []).extend(pqr)
    OM = OJ + OPT("OJM", 12)
    steps[OM].setdefault("post", []).extend([("wvm", "kvf"), ("wds", "pq2"), mf(OD, KVF, PQ2, None), mf(OD+16, KVF+4, PQ2+4, None)])
    oj = [f"v_add_f32 v{OD+8}, s{sEps}, v{OD+8}", f"v_add_f32 v{OD+16}, s{sEps}, v{OD+16}",
          f"v_rcp_f32 v{OD+8}, v{OD+8}", f"v_rcp_f32 v{OD+16}, v{OD+16}"]
    for i in range(8): oj.append(f"v_mul_f32 v{OD+i}, v{OD+i}, v{OD+8}")
    for i in range(8): oj.append(f"v_mul_f32 v{OD+24+i}, v{OD+24+i}, v{OD+16}")
    for i in range(4): oj.append(f"v_cvt_pk_bf16_f32 v{KVF+i}, v{OD+2*i}, v{OD+2*i+1}")
    for i in range(4): oj.append(f"v_cvt_pk_bf16_f32 v{KVF+4+i}, v{OD+24+2*i}, v{OD+24+2*i+1}")
    oj.append(f"s_add_u32 s72, s{sFrag}, {hex(W_O)}")
    if "Q" in SWAPS: oj += [f"s_lshl_b32 s73, s{sDl}, 10", "s_xor_b32 s72, s72, s73"]
    oj.append(("vm", f"buffer_store_dwordx4 {v(KVF,4)}, v{vLinA}, {S(SWS)}, s72 offen sc1", "o"))
    oj.append(("vm", f"buffer_store_dwordx4 {v(KVF+4,4)}, v{vLinA}, {S(SWS)}, s72 offen offset:1024 sc1", "o"))
    steps[OM+2].setdefault("post", []).extend(oj[:14])
    steps[OM+3].setdefault("post", []).extend(oj[14:])
    steps[OM + OPT("FOPOS", 16)].setdefault("post", []).extend(aflag(FO, "o", "fo"))
    XF = 176; X1F = 192; vOut = 12; XT = 208
    misc = xslice_reads(XT) + unpack_ops(X1F, X1P) + [("wds", "xr")] + unpack_ops(XF, XT)
    misc += [f"s_lshl_b32 s72, s{sTileA}, 15", f"s_lshl_b32 s73, s{sHead}, 5", "s_add_u32 s72, s72, s73",
             f"v_lshl_add_u32 v{vOut}, v{vT31}, 10, s72", f"v_lshl_add_u32 v{vOut}, v{vHf}, 3, v{vOut}"]
    spread(steps, misc, 128 + 80, 128 + 100)
    E = 128; Gt = 144; BV = 160
    sil = []
    for i in range(16): sil.append(f"v_add_f32 v{BV+i}, v{ACA+i}, v{X1F+i}")
    for i in range(16): sil.append(f"v_mul_f32 v{E+i}, {hx(-LOG2E)}, v{BV+i}")
    for i in range(16): sil.append(f"v_exp_f32 v{E+i}, v{E+i}")
    for i in range(16): sil.append(f"v_add_f32 v{E+i}, 1.0, v{E+i}")
    for i in range(16): sil.append(f"v_rcp_f32 v{E+i}, v{E+i}")
    for i in range(16): sil.append(f"v_mul_f32 v{Gt+i}, v{BV+i}, v{E+i}")
    spread(steps, sil, 240 + 2, 240 + 30)
    for r in range(1, 4): pre.setdefault(32*r, []).append(("stamp",))
    stream(P, steps, lambda s: 3 if s < 12 else (6 if s < 122 else 4), 3, pre=pre, side=side, side_rate=4)
    P.stamp()
    for i in range(16): P.raw(f"v_fma_f32 v{Gt+i}, v{Gt+i}, v{AC6+i}, v{XF+i}")
    for i in range(8): P.raw(f"v_cvt_pk_bf16_f32 v{E+i}, v{Gt+2*i}, v{Gt+2*i+1}")
    if OPT("TTH", 0):
        P.wds_all()
        P.raw("s_memrealtime s[82:83]")
        P.raw("s_waitcnt lgkmcnt(0)")
        P.raw(f"s_sub_u32 s82, s82, s{sNon}")
        P.raw(f"s_cmp_gt_u32 s82, {OPT('TTH', 0)}")
        P.raw("s_cbranch_scc0 TT_OK")
        P.raw(f"v_mov_b32 v{E}, 0x7fc07fc0")
        P.label("TT_OK")
    for g in range(4):
        P.vm(f"buffer_store_dwordx2 {v(E+2*g,2)}, v{vOut}, {S(SOUT)}, 0 offen offset:{g*16}", "out")
    P.finish()

    k.label("B_MAIN")
    P = B
    vM, vAr, vBr, vRi = 24, 25, 26, 27
    sPl = 86
    def chunkW(f, srdn, sbase, const):
        return dma4(sCb, (f % 4)*SLOT, srdn, Wl1024, sbase, const, f"f{f}")
    def chunkH(f, vreg, sbase, const):
        return dma4(sCb, (f % 4)*SLOT + 8192, SWS, vreg, sbase, const, f"f{f}", sc1=not OPT("PLAIN", 0))
    STG = OPT("STG", 0)
    SREG = lambda c: 64 + 16*(c - 3)
    vSW = (52, 53)
    NS1, NS2 = OPT("NS1", 3), OPT("NS2", 4)
    staged = set(range(3, 14)) if STG else set()
    def stage_ld(c):
        if c not in staged: return
        alt = c in (3, 10)
        sb = sW4b if alt else sW4a
        P.raw(f"s_add_u32 s{sT0}, s{sb}, {hex((F0(2*c)*1024) & 0xffffffff)}")
        for j in range(4):
            P.vm(f"buffer_load_dwordx4 {v(SREG(c)+4*j,4)}, v{Wl1024[j]}, {S(SW4)}, s{sT0} offen offset:{j*1024}", f"s{c}")
    def stage_wr(c):
        f = 24 + c; sl = f % 4
        P.wvm(f"s{c}")
        for j in range(4):
            P.ds(f"ds_write_b128 v{vSW[sl>>1]}, {v(SREG(c)+4*j,4)} offset:{(sl & 1)*SLOT + j*1024}", ("sw", c))
    P.wvm("f2")
    P.wds_all()
    P.bar("B1")
    if STG:
        P.raw(f"v_add_u32 v{vSW[0]}, s{sCb}, v{vLin}")
        P.raw(f"v_add_u32 v{vSW[1]}, 0x10000, v{vSW[0]}")
    spf_setup(P)
    spf(P)
    spf2_setup(P, False)
    vt_setup(P)
    P.prew = vt
    P.hook = spf2
    P.bar("Ba")
    P.run(wfill(4, SQKV, Wl3072, sRowQ, 1024, 3072))
    pfs(P, "D")
    spf(P)
    P.wvm("f3")
    P.bar("b3")
    P.run(wfill(5, SQKV, Wl3072, sRowQ, 1024 + 256*3072, 3072))
    P.wvm("nc")
    if not P.dead: get_nonce(vNon)
    spf2_setup(P, True)
    spf(P)
    P.wvm("f4")
    P.bar("b4")
    P.run(wfill(6, SQKV, Wl3072, sRowQ, 2048, 3072))
    spf(P)
    P.wvm("f5"); P.bar("b5")
    P.run(wfill(7, SQKV, Wl3072, sRowQ, 2048 + 256*3072, 3072))
    spf(P)
    P.wvm("f6"); P.bar("b6")
    P.run(chunkW(8, SW2, sRowC, 0))
    spf(P)
    P.wvm("f7"); P.bar("b7")
    xtr_dma(P)
    P.run(chunkW(9, SW2, sRowC, 128*1024))
    spf(P)
    P.raw(f"s_cmp_eq_u32 s{sM}, 0")
    P.raw(f"s_cselect_b32 s{sMk}, 0xffff0000, -1")
    P.raw(f"s_cmp_eq_u32 s{sM}, 31")
    P.raw(f"s_cselect_b32 s{sMk+1}, 0, 0xffff")
    for g, d in enumerate((-1, 1, -2, 2)):
        P.raw(f"s_lshl_b32 s72, s{sTile}, 5")
        P.raw(f"s_add_u32 s72, s72, {hex(d & 0xffffffff)}")
        P.raw(f"v_add_u32 v36, s72, v{vT31}")
        P.raw("v_ashrrev_i32 v29, 5, v36")
        P.raw("v_lshlrev_b32 v29, 15, v29")
        P.raw("v_and_b32 v30, 31, v36")
        P.raw("v_lshl_add_u32 v29, v30, 4, v29")
        P.raw(f"v_lshl_add_u32 v29, v{vHf}, 9, v29")
        P.raw(f"v_cmp_gt_u32 vcc, 0x800, v36")
        P.raw(f"v_mov_b32 v30, {hex(OOB)}")
        P.raw(f"v_cndmask_b32 v{32+g}, v30, v29, vcc")
    P.wvm("xt")
    P.bar("bK2")
    P.run(chunkW(10, SW2, sRowC, 256*1024))
    P.run(chunkW(11, SW2, sRowC, 384*1024))
    pfs(P, "E")
    spf(P)
    for c in range(3, 3 + NS1): stage_ld(c)
    P.raw(f"v_lshlrev_b32 v28, 3, v0")
    P.raw(f"s_lshl_b32 s{sT1}, s{sM}, 7")
    P.raw(f"s_add_u32 s{sT1}, s{sT1}, {hex(F1 - 128)}")
    P.stamp("@F1p")
    P.poll(30, 28, f"s{sT1}", None, None, width=2)
    P.stamp("@F1ok")
    P.run(chunkH(8, 32, sHsrc, 0))
    P.run(chunkH(9, 33, sHsrc, 8*1024))
    P.wvm("f8"); P.bar("b8")
    P.run(chunkH(10, 34, sHsrc, 16*1024))
    P.wvm("f9"); P.bar("b9")
    P.run(chunkH(11, 35, sHsrc, 24*1024))
    P.wvm("f10"); P.bar("b10")
    if OPT("HACKN3", 0) in (1, 4):
        P.raw(f"s_cmp_eq_u32 s{sN}, 3")
        P.raw("s_cselect_b32 s72, 128, 0")
        P.raw(f"s_sub_u32 s{sRowQ}, s{sRowQ}, s72")
    if ("K" in SWAPS) != ("Q" in SWAPS):
        P.raw(f"s_{'sub' if 'K' in SWAPS else 'add'}_u32 s{sRowQ}, s{sRowQ}, s{sDl}")
    P.run(wfill(12, SQKV, Wl3072, sRowQ, 0, 3072))
    spf(P)
    P.wvm("f11"); P.bar("b11")
    P.run(wfill(13, SQKV, Wl3072, sRowQ, 256*3072, 3072))
    cs3_dma(P)
    spf(P)
    P.wvm("f12"); P.bar("b12")
    P.wvm("f13"); P.bar("b13")
    if OPT("HACKN3", 0) in (3, 4):
        P.raw(f"s_cmp_eq_u32 s{sN}, 3")
        P.raw("s_cselect_b32 s72, 128, 0")
        for r_ in (sRowC, sW4a, sW4b): P.raw(f"s_sub_u32 s{r_}, s{r_}, s72")
    P.run(wfill(16, SW3, Wl3584, sRow3, 0, 3584))
    spf(P, 99)
    assert not spq
    if OPT("NS2POS", 0) == 0:
        for c in range(3 + NS1, 3 + NS1 + NS2): stage_ld(c)
    P.wvm("cs3")
    P.raw("v_bfe_u32 v28, v0, 2, 2")
    P.raw(f"v_lshl_add_u32 v28, v{vHf}, 2, v28")
    P.raw("v_lshlrev_b32 v28, 7, v28")
    P.raw("v_bfe_u32 v29, v0, 4, 1")
    P.raw("v_lshl_add_u32 v28, v29, 5, v28")
    P.raw("v_and_b32 v29, 3, v0")
    P.raw("v_lshl_add_u32 v28, v29, 3, v28")
    P.raw(f"s_lshl_b32 s72, s{sBw}, 12")
    P.raw(f"s_add_u32 s72, s72, {ACCX}")
    P.raw("v_add_u32 v28, s72, v28")
    for ks in range(2):
        for n_ in range(2):
            d = 32 + 4*(2*ks + n_)
            P.ds(f"ds_read_b64_tr_b16 {v(d,2)}, v28 offset:{16*ks*128 + 64*n_}", "c")
            P.ds(f"ds_read_b64_tr_b16 {v(d+2,2)}, v28 offset:{(16*ks+8)*128 + 64*n_}", "c")
    P.raw("v_mov_b32 v48, 0")
    P.raw("v_mov_b32 v49, 0")
    P.raw("v_mov_b32 v50, 0x3f803f80")
    P.wds_all()
    for ks in range(2):
        for i in range(4):
            P.raw(f"v_dot2_f32_bf16 v48, v{32 + 8*ks + i}, v50, v48")
            P.raw(f"v_dot2_f32_bf16 v49, v{32 + 8*ks + 4 + i}, v50, v49")
    P.raw("v_permlane32_swap_b32 v48, v49")
    P.raw("v_add_f32 v48, v48, v49")
    P.raw(f"s_lshl_b32 s72, s{sCsG}, 12")
    P.raw(f"s_lshl_b32 s73, s{sCsP}, 8")
    P.raw("s_add_u32 s72, s72, s73")
    P.raw(f"s_add_u32 s72, s72, {hex(W_CS)}")
    P.raw(f"v_or_b32 v49, s{sCsOOB}, v{vP4}")
    P.vm(f"buffer_store_dword v48, v49, {S(SWS)}, s72 offen sc1", "cs3st")
    P.raw(f"s_lshl_b32 s72, s{sN}, 6")
    P.raw(f"s_and_b32 s73, s{sM}, 3")
    P.raw("s_lshl_b32 s73, s73, 4")
    P.raw("s_add_u32 s72, s72, s73")
    P.raw(f"s_add_u32 s72, s72, s{sCsP}")
    P.raw("s_lshl_b32 s72, s72, 2")
    P.raw(f"s_add_u32 s{sSt}, s72, {hex(CSF)}")
    P.raw(f"v_or_b32 v31, s{sCsOOB}, v{vFl0}")
    if OPT("NS2POS", 0) == 1:
        for c in range(3 + NS1, 3 + NS1 + NS2): stage_ld(c)
    def csf_flag():
        P.wvm("cs3st")
        P.vm(f"buffer_store_dword v{vNon}, v31, {S(SWS)}, s{sSt} offen sc1", "csf")
    XS, CL = (SREG(13), SREG(12)) if STG else (96, 112)
    def acheck(tag, vreg, soff, mlo, mhi_, preset=False):
        if P.dead: return
        P.wvm(tag)
        saved = list(P.vq)
        OKL = k.newlabel("AOK")
        if not preset:
            P.raw(f"s_mov_b32 s{sMk}, {hex(mlo)}"); P.raw(f"s_mov_b32 s{sMk+1}, {hex(mhi_)}")
        P.raw(f"v_cmp_ne_u32 vcc, s{sNon}, v{vreg}")
        P.raw(f"s_and_b64 vcc, vcc, {S(sMk,2)}")
        P.raw(f"s_cbranch_scc0 {OKL}")
        P.poll(vreg, vP4, soff, None, None)
        P.label(OKL)
        P.vq = saved
    P.raw(f"s_lshl_b32 s95, s{sN}, 8")
    P.raw(f"s_add_u32 s95, s95, {hex(CSF)}")
    P.raw(f"s_lshl_b32 s{sT1}, s{sM}, 7")
    P.raw(f"s_add_u32 s{sT1}, s{sT1}, {hex(F2)}")
    P.bar("bQ")
    P.run(wfill(17, SW3, Wl3584, sRow3, 256*3584, 3584))
    csf_flag()
    P.stamp("@F2p")
    P.poll(30, vP4, f"s{sT1}", 0xffffffff, 0)
    P.stamp("@F2ok")
    def x1fill(hh):
        f = 14 + hh
        P.raw(f"s_lshl_b32 s72, s{sTT}, 14")
        P.raw(f"s_lshl_b32 s73, s{sCH}, 13")
        P.raw(f"s_add_u32 s{sT2}, s72, s73")
        P.run(dma4(sT2, (f % 4)*SLOT, SWS, vLin, sX1b, 16*hh*1024, f"f{f}", sc1=not OPT("PLAIN", 0)))
        P.run(dma4(sT2, (f % 4)*SLOT + 4096, SWS, vLin, sX1b, 16*hh*1024 + 4096, f"f{f}", sc1=not OPT("PLAIN", 0)))
    x1fill(0); x1fill(1)
    def xs_loads():
        P.vm(f"buffer_load_dword v45, v{vP4}, {S(SWS)}, s95 offen sc1", "cf")
        P.raw(f"s_lshl_b32 s72, s{sM}, 13")
        P.raw(f"s_lshl_b32 s73, s{sTT}, 8")
        P.raw("s_add_u32 s72, s72, s73")
        P.raw(f"s_add_u32 s72, s72, {hex(W_ST)}")
        P.raw("s_add_u32 s73, s72, 4096")
        if XSH:
            P.raw(f"s_cmp_eq_u32 s{sCH}, 0")
            P.raw(f"s_cselect_b32 s74, 0, {hex(OOB)}")
            P.raw(f"v_or_b32 v46, s74, v{vP4}")
        for p in range(16):
            P.vm(f"buffer_load_dword v{XS+p}, v{46 if XSH else vP4}, {S(SWS)}, s{72 + (p >> 3)} offen offset:{(p & 7)*512} sc1", "xs")
    XSH = OPT("XSH", 1)
    XSPOS = OPT("XSPOS", 1)
    if XSPOS == 0: xs_loads()
    P.wvm("f14"); P.bar("b14")
    if XSPOS == 1: xs_loads()
    P.bar("Ba2")
    if XSPOS == 2: xs_loads()
    P.run(wfill(18, SW3, Wl3584, sRow3, 128, 3584))
    if XSPOS == 3: xs_loads()
    P.wvm("f15"); P.bar("b15")
    P.raw(f"s_cmp_eq_u32 s{sN}, 7")
    P.raw(f"s_cselect_b32 s{sMk}, 0, -1")
    P.raw(f"s_mov_b32 s{sMk+1}, s{sMk}")
    acheck("cf", 45, "s95", None, None, preset=True)
    P.raw(f"s_lshl_b32 s72, s{sN}, 2")
    P.raw(f"s_add_u32 s72, s72, s{sBw}")
    P.raw("s_lshl_b32 s72, s72, 12")
    P.raw(f"s_add_u32 s72, s72, {hex(W_CS)}")
    for p in range(16):
        P.vm(f"buffer_load_dword v{CL+p}, v{vP4}, {S(SWS)}, s72 offen offset:{p*256} sc1", "cl")
    P.wvm("xs")
    for w_ in (8, 4, 2, 1):
        for i in range(w_): P.raw(f"v_add_f32 v{XS+i}, v{XS+i}, v{XS+w_+i}")
    P.raw(f"v_mov_b32 v{XS+1}, v{XS}")
    P.raw(f"v_permlane32_swap_b32 v{XS}, v{XS+1}")
    P.raw(f"v_mul_f32 v{vM}, {hx(1.0/512)}, v{XS}")
    P.raw(f"v_mul_f32 v{XS+1}, {hx(1.0/512)}, v{XS+1}")
    P.raw(f"v_fma_f32 v{XS+1}, -v{vM}, v{vM}, v{XS+1}")
    P.raw(f"v_max_f32 v{XS+1}, 0, v{XS+1}")
    P.raw(f"v_add_f32 v{XS+1}, {hx(EPS_LN)}, v{XS+1}")
    P.raw(f"v_rsq_f32 v{XS+2}, v{XS+1}")
    P.raw(f"v_sqrt_f32 v{vRi}, v{XS+1}")
    P.raw(f"v_mul_f32 v{vAr}, {hx(GA)}, v{XS+2}")
    P.raw(f"v_mul_f32 v{vBr}, v{XS+2}, v{XS+2}")
    P.raw(f"v_mul_f32 v{vBr}, v{vBr}, v{XS+2}")
    P.raw(f"v_mul_f32 v{vBr}, {hx(GB)}, v{vBr}")
    P.raw(f"s_lshl_b32 s72, s{sTT}, 9")
    P.raw(f"s_add_u32 s72, s72, {TAB_S2}")
    P.raw(f"v_lshl_add_u32 v28, v{vT31}, 4, s72")
    if XSH:
        P.raw(f"s_cmp_eq_u32 s{sCH}, 0")
        P.raw("s_cselect_b64 exec, -1, 0")
    P.ds(f"ds_write_b128 v28, {v(vM,4)}", "s2w")
    if XSH: P.raw("s_mov_b64 exec, -1")
    P.wvm("f17"); P.bar("b17")
    KP = SREG(10) if STG else 128; vKr = 37; vKo = 38
    P.raw(f"s_cmp_eq_u32 s{sBw}, 0")
    P.raw(f"s_cselect_b32 s87, 0, {hex(OOB)}")
    P.raw(f"s_cselect_b32 s88, -1, 0")
    P.raw(f"s_lshl_b32 s89, s{sM}, 7")
    P.raw(f"s_add_u32 s89, s89, {hex(FKV)}")
    P.vm(f"buffer_load_dword v39, v{vP4}, {S(SWS)}, s89 offen sc1", "kp")
    P.raw("v_lshrrev_b32 v28, 4, v0")
    P.raw("v_lshlrev_b32 v28, 11, v28")
    P.raw("v_bfe_u32 v29, v0, 3, 1")
    P.raw("v_lshl_add_u32 v28, v29, 10, v28")
    P.raw("v_and_b32 v30, 7, v0")
    P.raw("v_lshl_add_u32 v28, v30, 4, v28")
    P.raw(f"s_lshl_b32 s72, s{sN}, 7")
    P.raw("v_add_u32 v28, s72, v28")
    P.raw(f"v_or_b32 v{vKr}, s87, v28")
    P.raw("v_lshlrev_b32 v30, 4, v30")
    P.raw("v_lshl_add_u32 v30, v29, 3, v30")
    P.raw("v_add_u32 v30, s72, v30")
    P.raw(f"v_mov_b32 v29, {hex(OOB)}")
    P.raw("v_cmp_gt_u32 vcc, 16, v0")
    P.raw("v_cndmask_b32 v30, v29, v30, vcc")
    P.raw(f"v_or_b32 v{vKo}, s87, v30")
    P.wvm("cl")
    for w_ in (8, 4, 2, 1):
        for i in range(w_): P.raw(f"v_add_f32 v{CL+i}, v{CL+i}, v{CL+w_+i}")
    P.raw(f"s_lshl_b32 s72, s{sBw}, 8")
    P.raw(f"s_add_u32 s72, s72, {TAB_CS}")
    P.raw(f"v_add_u32 v28, s72, v{vP4}")
    P.ds(f"ds_write_b32 v28, v{CL}", "csw")
    P.bar("Bb2")
    P.run(wfill(19, SW3, Wl3584, sRow3, 128 + 256*3584, 3584))
    P.run(wfill(20, SW3, Wl3584, sRow3, 256, 3584))
    P.wds_all()
    P.wvm("f18"); P.bar("b18")
    P.raw(f"s_mov_b32 s{sMk}, s88"); P.raw(f"s_mov_b32 s{sMk+1}, 0")
    acheck("kp", 39, "s89", None, None, preset=True)
    P.raw(f"s_lshl_b32 s72, s{sM}, 16")
    P.raw(f"s_add_u32 s72, s72, {hex(W_KVP)}")
    for i in range(8):
        if i: P.raw("s_add_u32 s72, s72, 8192")
        P.vm(f"buffer_load_dwordx4 {v(KP+4*i,4)}, v{vKr}, {S(SWS)}, s72 offen sc1", "kl")
    P.run(wfill(21, SW3, Wl3584, sRow3, 256 + 256*3584, 3584))
    rest = [c for c in range(3 + NS1 + NS2, 10)]
    for c in rest: stage_ld(c)
    P.wvm("f19"); P.bar("b19")
    P.run(wfill(22, SW3, Wl3584, sRow3, 384, 3584))
    stage_ld(12); stage_ld(13)
    P.wvm("kl")
    for w_ in (4, 2, 1):
        for j in range(w_):
            for i in range(4): P.raw(f"v_add_f32 v{KP+4*j+i}, v{KP+4*j+i}, v{KP+4*(j+w_)+i}")
    for op in ("v_permlane32_swap_b32", "v_permlane16_swap_b32"):
        for i in range(4): P.raw(f"v_mov_b32 v{KP+4+i}, v{KP+i}")
        for i in range(4): P.raw(f"{op} v{KP+i}, v{KP+4+i}")
        for i in range(4): P.raw(f"v_add_f32 v{KP+i}, v{KP+i}, v{KP+4+i}")
    for i in range(2): P.raw(f"v_cvt_pk_bf16_f32 v{KP+8+i}, v{KP+2*i}, v{KP+2*i+1}")
    P.raw(f"s_lshl_b32 s72, s{sM}, 10")
    P.raw(f"s_add_u32 s72, s72, {hex(W_KVF)}")
    P.vm(f"buffer_store_dwordx2 {v(KP+8,2)}, v{vKo}, {S(SWS)}, s72 offen sc1", "kvf")
    P.wvm("f20"); P.bar("b20")
    P.run(wfill(23, SW3, Wl3584, sRow3, 384 + 256*3584, 3584))
    stage_ld(10); stage_ld(11)
    def g5W(c):
        alt = c in (3, 10)
        if OPT("NOW4", 0) and c >= 2: return []
        return chunkW(24 + c, SW4, sW4b if alt else sW4a, F0(2*c)*1024)
    def g5H(c):
        alt = c in (3, 10)
        if OPT("NOH3", 0) and c >= 2: return []
        return chunkH(24 + c, vLin, sH3b if alt else sH3a, F0(2*c)*64)
    def pl_issue(base, reg, sreg, tag):
        P.raw(f"s_lshl_b32 s{sreg}, s{sM}, 7")
        P.raw(f"s_add_u32 s{sreg}, s{sreg}, {hex(base)}")
        P.vm(f"buffer_load_dword v{reg}, v{vP4}, {S(SWS)}, s{sreg} offen sc1", tag)
    P.wvm("f21"); P.bar("b21")
    P.run(g5W(0))
    P.raw(f"s_lshl_b32 s72, s{sM}, 3")
    P.raw(f"s_add_u32 s72, s72, s{sN}")
    P.raw("s_lshl_b32 s72, s72, 2")
    P.raw(f"s_add_u32 s72, s72, {hex(FKF)}")
    P.raw(f"v_or_b32 v28, s87, v{vFl0}")
    P.wvm("kvf")
    P.vm(f"buffer_store_dword v{vNon}, v28, {S(SWS)}, s72 offen sc1", "fkf")
    P.wvm("f22"); P.bar("b22")
    P.run(g5W(1))
    pl_issue(F3, 40, 90, "pl0")
    P.wvm("f23"); P.stamp(); P.bar("b23")
    acheck("pl0", 40, "s90", 0x0fffffff, 0)
    P.run(g5H(0)); P.run(g5H(1)); P.run(g5W(2)); P.run(g5H(2))
    HISS = {nx: nx - 3 for nx in range(3, 18)}
    HISS[3] = OPT("H3ISS", 1)
    HISS[7] = OPT("H7ISS", 4)
    HISS[10] = OPT("H10ISS", 7)
    HISS[14] = OPT("H14ISS", 11)
    for nx in range(4, 18): HISS[nx] = max(HISS[nx], HISS[nx-1]) if nx not in (7, 10, 14) else HISS[nx]
    need_r = {3: 1, 7: 2, 10: 3, 14: 4}
    for c in range(18):
        f = 24 + c
        P.wvm(f"f{f}"); P.wds(("sw", c)); P.bar(f"b{f}")
        for nx, r in need_r.items():
            if HISS[nx] - 1 == c or (HISS[nx] == 0 and c == 0):
                pl_issue(F3 + r*4096 if r < 4 else FO, 40 + r, 90 + r, f"pl{r}")
        nxw = c + 3
        hl = [nx for nx in range(3, 18) if HISS[nx] == c]
        for nx in hl:
            if nx < nxw:
                if nx in need_r:
                    r = need_r[nx]; acheck(f"pl{r}", 40 + r, f"s{90+r}", 0x0fffffff if r < 4 else 0xffffffff, 0)
                if nx < 14: P.run(g5H(nx))
                else: P.run(chunkH(24 + nx, vLin, sOb, 8*(nx-14)*1024))
        if nxw in staged: stage_wr(nxw)
        elif nxw < 14: P.run(g5W(nxw))
        elif nxw < 18: P.run(chunkW(24 + nxw, SWO, sRowC, 128*(nxw-14)*1024))
        for nx in hl:
            if nx >= nxw:
                if nx in need_r:
                    r = need_r[nx]; acheck(f"pl{r}", 40 + r, f"s{90+r}", 0x0fffffff if r < 4 else 0xffffffff, 0)
                if nx < 14: P.run(g5H(nx))
                else: P.run(chunkH(24 + nx, vLin, sOb, 8*(nx-14)*1024))
        if c == 13: P.stamp()
    assert not spq2, len(spq2)
    assert not VT, VT
    P.finish()
    k.label("P_END")
    k("s_endpgm")
    a_main = A.bars; b_main = B.bars
    if a_main != b_main:
        print("BARRIER MISMATCH"); print(a_main); print(b_main); raise SystemExit(1)
    return k

HDR = open("cdna_kernels/" + NAME + ".s.ref").read().split("\n")
def build():
    lines = []
    for l in HDR:
        if not l.startswith(";"): break
        if "@launch" in l: continue
        lines.append(l)
    lines.append(f"; @launch grid=(256,1,1) block=(512,1,1) lds={LDS}")
    lines.append('.amdgcn_target "amdgcn-amd-amdhsa--gfx950"')
    k = gen()
    k.fix_hazards(verbose=OPT("V", 0))
    return "\n".join(lines) + "\n" + header(KN) + k.text() + descriptor(KN)

if __name__ == "__main__":
    open(sys.argv[1], "w").write(build())
    if STAMP:
        import json; json.dump(NAMES, open(sys.argv[1] + ".names.json", "w"))
```

```python
import sys, os, copy
sys.path.insert(0, "gen")
from common import *

KN = NAME + "_kernel"
SLOT = 32768
ACCX, XTR, TAB = 131072, 147456, 155648
TAB_ST, TAB_CS, TAB_S2 = TAB, TAB + 1024, TAB + 2048
LDS = 163840
W_H, W_X1, W_O, W_H3, W_KVP, W_KVF, W_ST, W_CS, W_FL, W_STAMP = [x*MB for x in (2, 4, 6, 10, 18, 20, 21, 22, 23, 32)]
WS_SIZE = 40*MB
F1, F2, F3, FO, FKV, FKF, CSF = [W_FL + x for x in (128, 8192, 12288, 28672, 32768, 36864, 40960)]
OOB = 0x7f000000
STOP = OPT("STOP", "")
STAMP = OPT("STAMP", 0)
STFROM = OPT("STFROM", "")
import re
STSKIP = OPT("STSKIP", "")
SPIN = 1 << 16
SWAPS = [x for x in OPT("SWAP", "").split(",") if x]

sWave, sM, sN, sNon, sTT, sCH = 26, 27, 28, 29, 30, 31
sG, sIdx = 84, 85
sDl = 3
SX, SQKV, SW1, SW2, SW3, SW4, SWO, SWS, SOUT, SDBG = 32, 36, 40, 44, 48, 52, 56, 60, 64, 68
sT0, sT1, sT2, sT3, sT4, sT5, sSpin = 72, 73, 74, 75, 76, 77, 78
sMk = 80
def S(n, c=4): return f"s[{n}:{n+c-1}]"

NAMES = {}
class Prog:
    def __init__(self, k, name):
        self.k = k; self.name = name
        self.dq = []; self.vq = []; self.bars = []
        self.dead = False; self.nst = 0; self.names = []; self.sv = 5 if name[0] == 'A' else 255; self.st_on = False; self.hook = None; self.prew = None
    def fork(self, name):
        p = Prog(self.k, name)
        p.dq = list(self.dq); p.vq = list(self.vq); p.bars = []; p.dead = self.dead; p.nst = self.nst; p.names = list(self.names); p.st_on = self.st_on
        return p
    def raw(self, t):
        if not self.dead: self.k(t)
    def label(self, l):
        if not self.dead: self.k.label(l)
    def ds(self, t, tag=None):
        if self.dead: return
        if len(self.dq) >= 15: self._wds(len(self.dq) - 15)
        self.k(t); self.dq.append(tag)
    def _wds(self, i):
        n = len(self.dq) - 1 - i
        self.k(f"s_waitcnt lgkmcnt({n})"); self.dq = self.dq[i+1:]
    def wds(self, *tags):
        if self.dead: return
        idx = [i for i, t in enumerate(self.dq) if t in tags]
        if idx: self._wds(max(idx))
    def wds_all(self):
        if self.dead: return
        if self.dq: self._wds(len(self.dq) - 1)
    def vm(self, t, tag=None):
        if self.dead: return
        self.k(t); self.vq.append(tag)
    def wvm(self, *tags):
        if self.dead: return
        if self.prew: self.prew(self, "w" + str(tags[0]))
        idx = [i for i, t in enumerate(self.vq) if t in tags]
        if not idx: return
        i = max(idx); n = len(self.vq) - 1 - i
        self.k(f"s_waitcnt vmcnt({min(n, 63)})")
        if n <= 63: self.vq = self.vq[i+1:]
        else: self.vq = self.vq[len(self.vq)-63:]
    def wvm_all(self):
        if self.dead: return
        self.k("s_waitcnt vmcnt(0)"); self.vq = []
    def tmark(self, name):
        DM = OPT("TMK", "").split(",")
        if self.dead or self.name[0] != "B" or name not in DM: return
        slot = 4 + DM.index(name)
        k = self.k
        k("s_memrealtime s[82:83]")
        k("s_waitcnt lgkmcnt(0)"); self.dq = []
        k(f"v_writelane_b32 v255, s82, {slot}")
    def bar(self, name):
        if self.dead: return
        if name == STOP:
            self.finish(); return
        if STAMP == 2: self.stamp("@" + name)
        self.tmark(name)
        if OPT("AMP", "") == name and self.name[0] == "B": self.k("s_memrealtime s[100:101]")
        self.k(f"s_barrier ; {name}"); self.bars.append(name)
        if self.hook: self.hook(self, name)
    def stamp(self, name=None):
        if self.dead or not STAMP: return
        if STAMP == 2 and not (name or "").startswith("@"): return
        if STSKIP and re.fullmatch(STSKIP, name or ""): return
        if STFROM and not self.st_on:
            if name == STFROM: self.st_on = True
            else: return
        i = self.nst; self.nst += 1
        assert i < 60, "too many stamps"
        self.names.append(name or f"s{i}")
        if (self.name[0] == "B" and not OPT("SPF", 1)) or OPT("STEX", 0):
            if i == 0: self.k(f"v_writelane_b32 v{self.sv}, s82, 0")
            self.k("s_memtime s[82:83]")
            self.k("s_waitcnt lgkmcnt(0)")
            self.k(f"v_writelane_b32 v{self.sv}, s82, {i+1}")
            self.dq = []
        else:
            self.k(f"v_writelane_b32 v{self.sv}, s82, {i}")
            self.k("s_memtime s[82:83]")
    def finish(self):
        if self.dead: return
        self.k("s_waitcnt vmcnt(0) lgkmcnt(0)")
        if OPT("AMP", "") and self.name[0] == "B":
            k = self.k
            if OPT("AMP", "") == "end":
                k("s_memrealtime s[100:101]"); k("s_waitcnt lgkmcnt(0)")
            if OPT("AMP", "") == "start": k("s_mov_b32 s100, s79")
            k(f"s_sub_u32 s100, s100, s{sNon}")
            k(f"s_sub_u32 s100, s100, {OPT('AMPOFF', 0)}")
            k("s_max_i32 s100, s100, 0")
            k("s_min_i32 s100, s100, 3000")
            k("s_mul_i32 s100, s100, 10")
            k("s_memrealtime s[82:83]"); k("s_waitcnt lgkmcnt(0)")
            k("s_add_u32 s100, s100, s82")
            k.label("AMP_L")
            k("s_memrealtime s[82:83]"); k("s_waitcnt lgkmcnt(0)")
            k("s_sub_u32 s82, s82, s100")
            k("s_cmp_lt_i32 s82, 0")
            k("s_cbranch_scc1 AMP_L")
        if OPT("TMK", "") and self.name[0] == "B":
            self.tmark("end")
            self.k("v_writelane_b32 v255, s79, 3")
            self.k("v_writelane_b32 v255, s82, 2")
            self.k("v_not_b32 v254, v255")
            if OPT("TMMIN", 0): self.k("v_not_b32 v255, v255"); self.k("v_writelane_b32 v255, 0, 0")
            self.k("v_writelane_b32 v255, s82, 2")
            self.k("s_not_b32 s79, s79")
            self.k("v_writelane_b32 v255, s79, 1")
            self.k(f"buffer_atomic_umax v255, v253, {S(SDBG)}, 0 offen sc1")
            self.k("s_waitcnt vmcnt(0)")
        self.flush_stamps()
        self.k("s_branch P_END")
        self.dead = True
    def flush_stamps(self):
        if not STAMP: return
        k = self.k; i = self.nst
        NAMES[self.name] = list(self.names) + ["end"]
        k("s_waitcnt lgkmcnt(0)")
        k(f"v_writelane_b32 v{self.sv}, s82, {i}")
        k("s_memtime s[82:83]")
        k("s_waitcnt lgkmcnt(0)")
        k(f"v_writelane_b32 v{self.sv}, s82, {i+1}")
        k("s_memrealtime s[82:83]")
        k("s_waitcnt lgkmcnt(0)")
        k(f"v_writelane_b32 v{self.sv}, s82, 62")
        k(f"v_writelane_b32 v{self.sv}, s79, 63")
        k("s_lshl_b32 s72, s2, 11")
        k(f"s_lshl_b32 s73, s{sWave}, 8")
        k("s_add_u32 s72, s72, s73")
        k(f"s_add_u32 s72, s72, {hex(W_STAMP)}")
        k("v_lshlrev_b32 v1, 2, v0")
        k(f"buffer_store_dword v{self.sv}, v1, {S(SWS)}, s72 offen")
        k("s_waitcnt vmcnt(0)")
    def emit(self, op):
        if isinstance(op, str): self.raw(op); return
        kind = op[0]
        if kind == "ds": self.ds(op[1], op[2] if len(op) > 2 else None)
        elif kind == "vm": self.vm(op[1], op[2] if len(op) > 2 else None)
        elif kind == "wds": self.wds(*op[1:])
        elif kind == "wvm": self.wvm(*op[1:])
        elif kind == "bar": self.bar(op[1])
        elif kind == "stamp": self.stamp(op[1] if len(op) > 1 else None)
        elif kind == "call": op[1]()
        elif kind == "grp":
            for o in op[1]: self.emit(o)
        else: raise ValueError(op)
    def run(self, ops):
        for o in ops: self.emit(o)
    def poll(self, vdst, voff, soff, mlo, mhi, width=1):
        if self.dead: return
        k = self.k
        L = k.newlabel("PL"); D = k.newlabel("PD")
        if mlo is not None:
            k(f"s_mov_b32 s{sMk}, {hex(mlo)}"); k(f"s_mov_b32 s{sMk+1}, {hex(mhi)}")
        k.label(L)
        sfx = {1: "dword", 2: "dwordx2"}[width]
        k(f"buffer_load_{sfx} {v(vdst, width)}, v{voff}, {S(SWS)}, {soff} offen sc1")
        k("s_waitcnt vmcnt(0)")
        k(f"v_cmp_ne_u32 vcc, s{sNon}, v{vdst}")
        if width == 2:
            k(f"v_cmp_ne_u32 s[{sT4}:{sT5}], s{sNon}, v{vdst+1}")
            k(f"s_or_b64 vcc, vcc, s[{sT4}:{sT5}]")
        k(f"s_and_b64 vcc, vcc, {S(sMk,2)}")
        k(f"s_cbranch_scc0 {D}")
        k(f"s_sub_u32 s{sSpin}, s{sSpin}, 1")
        k(f"s_cmp_gt_i32 s{sSpin}, 0")
        k(f"s_cbranch_scc1 {L}")
        k.label(D)
        self.vq = []

def interleave(main, extra, start=0, end=None):
    main = list(main)
    if not extra: return main
    end = len(main) if end is None else min(end, len(main))
    n = max(end - start, 1)
    out = main[:start]
    step = n / len(extra); j = 0
    for i, o in enumerate(main[start:end]):
        while j < len(extra) and j*step <= i:
            out.append(extra[j]); j += 1
        out.append(o)
    out += extra[j:]
    out += main[end:]
    return out

def stream(P, steps, la, GL, pre=None, side=None, side_rate=2):
    pre = pre or {}
    side = list(side or [])
    n = len(steps); nxt = 0; lastw = None
    s = -la(0)
    WM = OPT("WMERGE", 2); WAGE = OPT("WAGE", 3)
    issued = {}
    while s < n:
        for o in pre.get(s, []): P.emit(o)
        cnt = 0
        while nxt < n and nxt <= s + la(s) and cnt < 4:
            st = steps[nxt]
            if st.get("gate"):
                if nxt > 0 and s < nxt - st.get("gl", GL): break
                if lastw is not None: P.wds(lastw)
                for o in st.get("gpre", []): P.emit(o)
                P.bar(st["gate"])
            for t, tag in st["reads"]:
                P.ds(t, tag); lastw = tag; issued[tag] = s
            nxt += 1; cnt += 1
        c = 0
        while side and c < side_rate and side[0][0] <= s and nxt > 0:
            _, t, tag = side.pop(0); P.ds(t, tag); c += 1; issued[tag] = s
        if s >= 0:
            need = list(steps[s]["need"])
            if any(t in P.dq for t in need):
                for j in range(1, WM):
                    if s + j < n:
                        for t in steps[s + j]["need"]:
                            if t in issued and s - issued[t] >= WAGE: need.append(t)
            P.wds(*need)
            P.raw(steps[s]["mfma"])
            for o in steps[s].get("post", []): P.emit(o)
        s += 1
    assert not side

TRANS_OPS = ("v_exp_f32", "v_rcp_f32", "v_rsq_f32", "v_sqrt_f32", "v_log_f32")
def opcost(o):
    if isinstance(o, str):
        if o.startswith(TRANS_OPS): return 8
        if o.startswith("v_mfma"): return 8
        return 4
    if o[0] in ("wds", "wvm", "stamp"): return 0
    if o[0] == "vm": return 8
    if o[0] == "grp": return sum(opcost(x) for x in o[1])
    return 4

def spread(steps, ops, s0, s1):
    n = s1 - s0
    if not OPT("WSPREAD", 1):
        for j, o in enumerate(ops):
            steps[s0 + (j*n)//len(ops)].setdefault("post", []).append(o)
        return
    tot = sum(opcost(o) for o in ops); acc = 0
    for o in ops:
        j = min(n - 1, int((acc + opcost(o)/2) * n / max(tot, 1)))
        steps[s0 + j].setdefault("post", []).append(o)
        acc += opcost(o)

def mf(d, a, b, c):
    return f"v_mfma_f32_32x32x16_bf16 {v(d,16)}, {v(a,4)}, {v(b,4)}, " + ("0" if c is None else v(c,16))

def F0(g): return 256*(g % 7) + 64*(g // 7)

def gen():
    k = Kern()
    vT31, vHf = 1, 2
    k("s_cmp_ge_u32 s2, 256")
    k("s_cbranch_scc1 P_END")
    k("s_load_dwordx16 s[4:19], s[0:1], 0")
    k("s_load_dwordx4 s[20:23], s[0:1], 64")
    k("s_load_dwordx2 s[24:25], s[0:1], 80")
    if STAMP or OPT("TMK", "") or OPT("AMP", ""):
        k("s_memrealtime s[80:81]")
    if STAMP:
        k("s_memtime s[82:83]")
    k("v_lshrrev_b32 v1, 6, v0")
    k("v_and_b32 v0, 63, v0")
    k("v_mov_b32 v3, 0")
    k(f"v_readfirstlane_b32 s{sWave}, v1")
    k("s_and_b32 s72, s2, 7")
    k("s_lshr_b32 s73, s2, 3")
    k("s_lshr_b32 s74, s72, 1")
    k("s_lshl_b32 s74, s74, 3")
    k("s_lshr_b32 s75, s73, 2")
    k(f"s_add_u32 s{sM}, s74, s75")
    k("s_and_b32 s74, s72, 1")
    k("s_lshl_b32 s74, s74, 2")
    if OPT("NROT", 0): k(f"s_add_u32 s73, s73, {OPT('NROT', 0)}")
    k("s_and_b32 s75, s73, 3")
    k(f"s_add_u32 s{sN}, s74, s75")
    k(f"s_and_b32 s{sTT}, s{sWave}, 1")
    k(f"s_bfe_u32 s{sCH}, s{sWave}, 0x10001")
    k(f"s_mov_b32 s{sSpin}, {SPIN}")
    k(f"v_and_b32 v{vT31}, 31, v0")
    k(f"v_lshrrev_b32 v{vHf}, 5, v0")
    k(f"s_and_b32 s{sG}, s2, 7")
    k(f"s_lshr_b32 s{sIdx}, s2, 3")
    vXg, vXW, vST0, vNc = 60, (61, 62), 58, 63
    X = 64
    k("v_lshrrev_b32 v6, 4, v0")
    k("v_and_b32 v7, 15, v0")
    k(f"s_lshl_b32 s72, s{sWave}, 3")
    k("v_add_u32 v6, s72, v6")
    k("v_lshrrev_b32 v9, 3, v7")
    k("v_lshlrev_b32 v9, 13, v9")
    k("v_and_b32 v10, 7, v7")
    for j in range(2):
        k(f"v_add_u32 v8, {4*j}, v6")
        k("v_bfe_u32 v11, v8, 1, 3")
        k("v_xor_b32 v11, v10, v11")
        k("v_lshl_add_u32 v11, v11, 4, v9")
        k(f"v_lshl_add_u32 v{vXW[j]}, v8, 7, v11")
    k(f"v_lshlrev_b32 v{vST0}, 4, v6")
    k(f"v_add_u32 v{vST0}, {TAB_ST}, v{vST0}")
    k(f"s_lshl_b32 s72, s{sM}, 6")
    k("v_add_u32 v6, s72, v6")
    k("v_lshlrev_b32 v6, 10, v6")
    k(f"v_lshl_add_u32 v{vXg}, v7, 4, v6")
    k("s_movk_i32 s71, 0x1000")
    k("v_mov_b32 v128, 0x3f803f80")
    k("v_mov_b32 v59, 0")
    k(f"s_cmp_ge_u32 s{sWave}, 4")
    k("s_cbranch_scc1 B_PRE")
    A = Prog(k, "A"); B = Prog(k, "B")
    def xloads(P):
        srd(k, SX, P_X, 2*MB)
        for j in range(2):
            for i in range(4):
                P.vm(f"buffer_load_dwordx4 {v(X+16*j+4*i,4)}, v{vXg}, {S(SX)}, {'s71' if j else '0'} offen offset:{256*i}", f"x{j}")
    def p0_group(P, j):
        XJ = X + 16*j; ones = 128
        P.wvm(f"x{j}")
        P.stamp("@P0C" if j == 0 else "@P0D")
        sm = [130, 131]; sq = [132, 133]
        for i in range(16):
            P.raw(f"v_dot2_f32_bf16 v{sm[i&1]}, v{XJ+i}, v{ones}, " + ("0" if i < 2 else f"v{sm[i&1]}"))
            P.raw(f"v_dot2_f32_bf16 v{sq[i&1]}, v{XJ+i}, v{XJ+i}, " + ("0" if i < 2 else f"v{sq[i&1]}"))
        T = 144
        for i in range(2):
            for jj in range(4):
                P.raw(f"v_lshlrev_b32 v{T+8*i+2*jj}, 16, v{XJ+4*i+jj}")
                P.raw(f"v_and_b32 v{T+8*i+2*jj+1}, 0xffff0000, v{XJ+4*i+jj}")
        P.raw("v_add_f32 v130, v130, v131")
        P.raw("v_add_f32 v132, v132, v133")
        for dpp in ("quad_perm:[1,0,3,2]", "quad_perm:[2,3,0,1]", "row_half_mirror", "row_mirror"):
            P.raw(f"v_add_f32_dpp v130, v130, v130 {dpp} row_mask:0xf bank_mask:0xf")
            P.raw(f"v_add_f32_dpp v132, v132, v132 {dpp} row_mask:0xf bank_mask:0xf")
        P.raw(f"v_mul_f32 v130, {hx(1.0/512)}, v130")
        P.raw(f"v_mul_f32 v132, {hx(1.0/512)}, v132")
        P.raw("v_fma_f32 v132, -v130, v130, v132")
        P.raw("v_max_f32 v132, 0, v132")
        P.raw(f"v_add_f32 v133, {hx(EPS_LN)}, v132")
        P.raw("v_rsq_f32 v137, v133")
        P.raw("v_mov_b32 v139, 0")
        P.raw("v_mul_f32 v136, v130, v137")
        P.raw("v_sub_f32 v136, 0, v136")
        P.raw("v_mul_f32 v138, v137, v137")
        P.raw("v_mul_f32 v138, v138, v132")
        P.raw(f"v_add_f32 v138, {hx(EPS_LN)}, v138")
        P.raw("v_rsq_f32 v138, v138")
        for i in range(4):
            t = T + 8*(i & 1)
            if i >= 2:
                for jj in range(4):
                    P.raw(f"v_lshlrev_b32 v{t+2*jj}, 16, v{XJ+4*i+jj}")
                    P.raw(f"v_and_b32 v{t+2*jj+1}, 0xffff0000, v{XJ+4*i+jj}")
            for jj in range(4): P.raw(f"v_pk_fma_f32 v[{t+2*jj}:{t+2*jj+1}], v[{t+2*jj}:{t+2*jj+1}], v[136:137], v[136:137] op_sel:[0,1,0] op_sel_hi:[1,1,0]")
            for jj in range(4): P.raw(f"v_cvt_pk_bf16_f32 v{XJ+4*i+jj}, v{t+2*jj}, v{t+2*jj+1}")
            P.ds(f"ds_write_b128 v{vXW[j]}, {v(XJ+4*i,4)} offset:{16384*i}", "xw")
        P.ds(f"ds_write_b128 v{vST0}, v[136:139] offset:{64*j}", "xw")
    k("s_waitcnt lgkmcnt(0)")
    if STAMP or OPT("TMK", "") or OPT("AMP", ""): k("s_mov_b32 s79, s80")
    xloads(A)
    if OPT("SPF1", 0):
        k(f"s_lshl_b32 s72, s{sIdx}, 2")
        k(f"s_add_u32 s72, s72, s{sWave}")
        k("s_lshl_b32 s72, s72, 12")
        k(f"s_and_b32 s73, s{sG}, 1")
        k("s_lshl_b32 s73, s73, 9")
        k("s_add_u32 s72, s72, s73")
        k(f"s_add_u32 s86, s{P_W1}, s72")
        k(f"s_addc_u32 s87, s{P_W1+1}, 0")
        for r in range(4):
            for c in range(8): k(f"s_load_dword s{88 + ((8*r + c) & 7)}, s[86:87], {r*1024 + c*64}")
    srd(k, SDBG, P_DBG, 256)
    k(f"s_or_b32 s73, s2, s{sWave}")
    k("s_cmp_lg_u32 s73, 0")
    k("s_cbranch_scc1 P_NON")
    k("s_memrealtime s[74:75]")
    k("v_mov_b32 v6, 0")
    k("s_waitcnt lgkmcnt(0)")
    k("s_or_b32 s74, s74, 1")
    k("v_mov_b32 v7, s74")
    k("s_mov_b64 exec, 1")
    k(f"buffer_store_dword v7, v6, {S(SDBG)}, 0 offen sc1")
    k("s_mov_b64 exec, -1")
    k.label("P_NON")
    A.vm(f"buffer_load_dword v{vNc}, v59, {S(SDBG)}, 0 offen sc1", "nc")
    srd(k, SWS, P_WS, WS_SIZE)
    srd(k, SOUT, P_OUT, 2*MB)

    vWn, vWf, vHa = (6, 7), (8, 9), (10, 11)
    xa = [12, 13, 14, 15]
    vX1a, vAX, vXR, vNonA, vFl0A, vLinA = 16, 17, 18, 19, 20, 21
    X1P, ONE = 22, 30
    vP4A = 3
    ACA, ACB, HF, WF, ACT = 32, 48, 64, 96, 128
    k("v_bfe_u32 v3, v0, 2, 2")
    k("v_and_b32 v4, 3, v0")
    k("v_bfe_u32 v5, v0, 4, 1")
    k(f"s_lshl_b32 s72, s{sCH}, 2")
    k("v_lshrrev_b32 v30, 1, v4")
    k("v_lshl_add_u32 v30, v5, 1, v30")
    k("v_add_u32 v30, s72, v30")
    k("v_lshrrev_b32 v31, 1, v3")
    k("v_lshlrev_b32 v31, 2, v31")
    k("v_xor_b32 v30, v30, v31")
    k("v_lshlrev_b32 v30, 4, v30")
    k("v_and_b32 v31, 1, v4")
    k("v_lshl_add_u32 v30, v31, 3, v30")
    k(f"v_lshl_add_u32 v31, v{vHf}, 3, v3")
    k(f"v_lshl_add_u32 v{vWn[0]}, v31, 7, v30")
    k(f"v_add_u32 v{vWn[1]}, 0x10000, v{vWn[0]}")
    k(f"v_lshl_add_u32 v31, v{vHf}, 2, v3")
    k(f"v_lshl_add_u32 v{vWf[0]}, v31, 7, v30")
    k(f"v_add_u32 v{vWf[1]}, 0x10000, v{vWf[0]}")
    k(f"v_lshlrev_b32 v{vLinA}, 4, v0")
    k(f"s_lshl_b32 s72, s{sTT}, 12")
    k("s_add_u32 s72, s72, 8192")
    k(f"v_add_u32 v{vHa[0]}, s72, v{vLinA}")
    k(f"v_add_u32 v{vHa[1]}, 0x10000, v{vHa[0]}")
    k(f"v_bfe_u32 v30, v{vT31}, 1, 3")
    k(f"v_xor_b32 v30, v30, v{vHf}")
    k("v_lshlrev_b32 v30, 4, v30")
    k(f"v_lshl_add_u32 v{xa[0]}, v{vT31}, 7, v30")
    k(f"s_lshl_b32 s72, s{sTT}, 12")
    k(f"v_add_u32 v{xa[0]}, s72, v{xa[0]}")
    for j in range(1, 4): k(f"v_xor_b32 v{xa[j]}, {32*j}, v{xa[0]}")
    k(f"s_lshl_b32 s72, s{sTT}, 14")
    k("s_add_u32 s72, s72, 0x10000")
    k(f"v_add_u32 v{vX1a}, s72, v{vLinA}")
    k(f"s_lshl_b32 s72, s{sWave}, 12")
    k(f"s_add_u32 s72, s72, {ACCX}")
    k(f"v_add_u32 v{vAX}, s72, v{vLinA}")
    k(f"s_lshl_b32 s72, s{sTT}, 5")
    k(f"v_add_u32 v30, s72, v{vT31}")
    k("v_bfe_u32 v31, v30, 1, 3")
    k(f"s_lshl_b32 s72, s{sCH}, 2")
    k("v_xor_b32 v31, s72, v31")
    k("v_lshlrev_b32 v31, 4, v31")
    k("v_lshl_add_u32 v31, v30, 7, v31")
    k(f"v_lshl_add_u32 v31, v{vHf}, 3, v31")
    k(f"v_add_u32 v{vXR}, {XTR}, v31")
    k(f"v_mov_b32 v{vFl0A}, {hex(OOB)}")
    k("v_mov_b32 v30, 0")
    k("v_cmp_eq_u32 vcc, 0, v0")
    k(f"v_cndmask_b32 v{vFl0A}, v{vFl0A}, v30, vcc")
    k(f"v_lshlrev_b32 v{vP4A}, 2, v0")
    k(f"v_mov_b32 v{ONE}, 0x3f803f80")
    sHead, sFkv, sTileA, sFrag, sFidx = 4, 5, 6, 7, 8
    k(f"s_lshl_b32 s{sHead}, s{sN}, 2")
    k(f"s_lshl_b32 s72, s{sCH}, 1")
    k(f"s_add_u32 s{sHead}, s{sHead}, s72")
    if SWAPS:
        k(f"s_and_b32 s72, s{sN}, 3")
        k("s_cmp_eq_u32 s72, 3")
        k(f"s_cselect_b32 s{sDl}, 16, 0")
    k(f"s_lshl_b32 s{sTileA}, s{sM}, 1")
    k(f"s_add_u32 s{sTileA}, s{sTileA}, s{sTT}")
    k(f"s_lshl_b32 s72, s{sTileA}, 15")
    k(f"s_lshl_b32 s73, s{sHead}, 10")
    k(f"s_add_u32 s{sFrag}, s72, s73")
    k(f"s_lshl_b32 s{sFidx}, s{sM}, 5")
    k(f"s_lshl_b32 s72, s{sN}, 2")
    k(f"s_add_u32 s{sFidx}, s{sFidx}, s72")
    k(f"s_add_u32 s{sFidx}, s{sFidx}, s{sWave}")
    k(f"s_lshl_b32 s{sFidx}, s{sFidx}, 2")
    if STAMP: k("v_mov_b32 v5, 0")
    p0_group(A, 0)
    p0_group(A, 1)
    k("s_branch A_MAIN")

    k.label("B_PRE")
    sWb, sRowQ, sRow1, sRow3, sCb, sRowC, sW4a, sW4b, sH3a, sH3b, sOb, sX1b, sHst, sH3st, sBw, sTile = range(4, 20)
    sCsP, sCsOOB, sCsG, sFidxB, sHsrc, sSt = 20, 21, 22, 23, 24, 25
    Wl3072, Wl1024, Wl3584 = [4, 5, 6, 7], [8, 9, 10, 11], [12, 13, 14, 15]
    vLin, vAXb, vHs, vNon, vFl0, vP4 = 16, 17, 18, 19, 20, 21
    k(f"s_sub_u32 s77, s{sWave}, 4")
    if STAMP: k("v_mov_b32 v255, 0")
    if OPT("TMK", ""):
        k(f"v_mov_b32 v252, {hex(OOB)}")
        k("v_mov_b32 v255, 0")
        k("v_lshlrev_b32 v253, 2, v0")
        k("v_cmp_gt_u32 vcc, 16, v0")
        k("v_cndmask_b32 v253, v252, v253, vcc")
        k(f"s_cmp_eq_u32 s{sWave}, 4")
        k(f"s_cselect_b32 s72, 0, {hex(OOB)}")
        sel = OPT("TMSEL", "")
        if sel:
            k(f"s_cmp_eq_u32 s{sN}, {sel}")
            k(f"s_cselect_b32 s72, s72, {hex(OOB)}")
        k("v_or_b32 v253, s72, v253")
    vPFD = 254
    sBw_ = 77
    def pf(P, srdn, pitch, nmat, complete, colstep=1024, col0=0, nl=4, half=512, rows=512, tag="pf", swap=False):
        nw = 128 if complete else 512
        per = rows*nl // nw
        assert per*nw == rows*nl and per*nmat <= 64
        P.raw(f"s_lshl_b32 s72, s{sIdx}, 2")
        P.raw(f"s_add_u32 s72, s72, s{sBw_}")
        if not complete:
            P.raw(f"s_lshr_b32 s73, s{sG}, 1")
            P.raw("s_lshl_b32 s73, s73, 7")
            P.raw("s_add_u32 s72, s72, s73")
        P.raw(f"s_mul_i32 s72, s72, {per}")
        if nmat > 1:
            assert per & (per - 1) == 0
            sh = per.bit_length() - 1
            P.raw(f"v_lshrrev_b32 v29, {sh}, v0")
            P.raw(f"v_and_b32 v28, {per-1}, v0")
        else:
            P.raw("v_mov_b32 v28, v0")
        P.raw("v_add_u32 v28, s72, v28")
        lsh = nl.bit_length() - 1
        assert 1 << lsh == nl
        P.raw(f"v_lshrrev_b32 v30, {lsh}, v28")
        P.raw(f"v_and_b32 v28, {nl-1}, v28")
        if swap:
            P.raw(f"s_and_b32 s73, s{sG}, 1")
            P.raw("s_lshl_b32 s73, s73, 3")
            P.raw("s_sub_u32 s73, 4, s73")
            P.raw("v_add_u32 v31, s73, v28")
            P.raw("v_cmp_eq_u32 vcc, 3, v28")
            P.raw("v_cndmask_b32 v28, v28, v31, vcc")
        P.raw("v_lshlrev_b32 v28, 7, v28")
        P.raw(f"s_movk_i32 s73, {pitch}")
        P.raw("v_mad_u32_u24 v28, v30, s73, v28")
        if nmat > 1:
            P.raw(f"s_movk_i32 s73, {colstep}")
            P.raw("v_mad_u32_u24 v28, v29, s73, v28")
        P.raw(f"s_and_b32 s73, s{sG}, 1")
        P.raw(f"s_mul_i32 s73, s73, {half}")
        if col0: P.raw(f"s_add_u32 s73, s73, {col0}")
        P.raw(f"v_mov_b32 v30, {hex(OOB)}")
        P.raw(f"v_cmp_gt_u32 vcc, {per*nmat}, v0")
        P.raw("v_cndmask_b32 v28, v30, v28, vcc")
        P.vm(f"buffer_load_dword v{vPFD}, v28, {srdn}, s73 offen", tag)
    def pfs(P, at):
        for name, dflt, fn in (("PFW1", "A:c", lambda c: pf(P, S(SW1), 1024, 1, c, swap="W1" in SWAPS)),
                               ("PFKV", "B:c", lambda c: pf(P, S(SQKV), 3072, 2, c, col0=1024, swap="K" in SWAPS)),
                               ("PFQ", "D:d", lambda c: pf(P, S(SQKV), 3072, 1, c)),
                               ("PFW2", "D:d", lambda c: pf(P, S(SW2), 1024, 1, c)),
                               ("PFW3", "E:d", lambda c: pf(P, S(SW3), 3584, 1, c, nl=16, half=2048)),
                               ("PFW4", "E:d", lambda c: pf(P, S(SW4), 1024, 1, c, rows=2048 if False else 1792)),
                               ("PFWO", "E:d", lambda c: pf(P, S(SWO), 1024, 1, c))):
            if OPT("SPF", 1) and name in OPT("SPFM", "Q,W2,W3,W4,WO").replace("Q", "PFQ").replace("W", "PFW").split(","): continue
            o = OPT(name, dflt)
            if o and o.split(":")[0] == at: fn(o.split(":")[1] == "c")
    spq = []
    def spf_setup(P):
        if not OPT("SPF", 1): return
        P.raw(f"s_lshl_b32 s98, s{sIdx}, 2")
        P.raw(f"s_add_u32 s98, s98, s{sBw}")
        P.raw(f"s_lshr_b32 s72, s{sG}, 1")
        P.raw("s_lshl_b32 s72, s72, 7")
        P.raw("s_add_u32 s98, s98, s72")
        P.raw(f"s_and_b32 s99, s{sG}, 1")
        ms = OPT("SPFM", "Q,W2,W3,W4,WO").split(",")
        ents = {e[0]: e for e in (("W2", SW2, 1024, 512, 88, [64*j for j in range(8)]),
                                                ("Q", SQKV, 3072, 512, 86, [64*j for j in range(8)]),
                                                ("W3", SW3, 3584, 1536, 90, [64*j for j in range(32)]),
                                                ("W4", SW4, 4096, 512, 92, [1024*r + 64*j for r in range(4) for j in range(8)]),
                                                ("WO", SWO, 1024, 512, 94, [64*j for j in range(8)]))}
        for nm, sr, pitch, hoff, base, offs in [ents[x] for x in OPT("SPFORD", "W2,Q,W3,W4,WO").split(",")]:
            if nm not in ms: continue
            if nm == "W4":
                P.raw("s_min_u32 s73, s98, 447")
                P.raw(f"s_mul_i32 s72, s73, {pitch}")
            else:
                P.raw(f"s_mul_i32 s72, s98, {pitch}")
            P.raw(f"s_mul_i32 s73, s99, {hoff}")
            P.raw("s_add_u32 s72, s72, s73")
            P.raw(f"s_add_u32 s{base}, s{sr}, s72")
            P.raw(f"s_addc_u32 s{base+1}, s{sr+1}, 0")
            spq.extend((base, o_) for o_ in offs)
    spq2 = []
    def spf2_setup(P, late):
        ms = [x for x in OPT("SP2M", "").split(",") if x]
        if not ms: return
        ents = {"W4": (SW4, 1024, 14, 68, 0), "WO": (SWO, 1024, 4, 70, 0), "W2": (SW2, 1024, 4, 100, 0), "Q": (SQKV, 3072, 4, 0, 0),
                "K": (SQKV, 3072, 4, 100, 1024), "V": (SQKV, 3072, 4, 0, 2048)}
        if not late:
            for nm in ms:
                sr, pitch, rows, base, col = ents[nm]
                spq2.extend((base, r*pitch + 64*h) for r in range(rows) for h in range(OPT("SP2H", 2)))
        sel = [nm for nm in ms if (ents[nm][3] in (68, 70)) == late]
        if not sel: return
        P.raw(f"s_lshl_b32 s98, s{sIdx}, 2")
        P.raw(f"s_add_u32 s98, s98, s{sBw}")
        P.raw(f"s_and_b32 s99, s{sG}, 1")
        for nm in sel:
            sr, pitch, rows, base, col = ents[nm]
            P.raw(f"s_mul_i32 s72, s98, {pitch*rows}")
            ev, od = (384, 896) if nm not in OPT("SWAP", "").split(",") else (896, 384)
            P.raw(f"s_mul_i32 s73, s99, {od - ev}")
            P.raw(f"s_add_u32 s73, s73, {ev + col}")
            P.raw("s_add_u32 s72, s72, s73")
            P.raw(f"s_add_u32 s{base}, s{sr}, s72")
            P.raw(f"s_addc_u32 s{base+1}, s{sr+1}, 0")
    VT = dict((x.split(":")[0], x.split(":")[1]) for x in OPT("VT", "").split(",") if x)
    vTA = {"W4": 70, "WO": 71, "W2": 73, "Q": 74, "K": 75, "V": 76, "H3": 77, "O": 78}
    VTALL = OPT("VTALL", 0)
    def vt_setup(P):
        if not VT: return
        P.raw(f"s_lshl_b32 s98, s{sIdx}, 2")
        P.raw(f"s_add_u32 s98, s98, s{sBw}")
        SW_ = OPT("SWAP", "").split(",")
        P.raw(f"s_and_b32 s99, s{sG}, 1")
        LS = 2 if VTALL else 0
        if VTALL:
            P.raw("v_lshrrev_b32 v27, 2, v0")
            P.raw("v_and_b32 v26, 3, v0")
            P.raw("v_lshlrev_b32 v26, 7, v26")
            P.raw("s_lshl_b32 s72, s99, 9")
            P.raw("v_add_u32 v26, s72, v26")
        else:
            P.raw("v_mov_b32 v27, v0")
        def colsel(nm, col):
            own = 1 if nm in SW_ else 0
            P.raw(f"s_cmp_eq_u32 s99, {own}")
            P.raw(f"s_mov_b32 s72, {hex(OOB)}")
            P.raw(f"s_cselect_b32 s73, 0, s72")
            P.raw(f"s_or_b32 s73, s73, {384 + col}")
        used = set(x.split(".")[0] for v_ in VT.values() for x in v_.split("+"))
        if "W4" in used:
            P.raw("s_lshr_b32 s72, s98, 6")
            P.raw("v_lshl_add_u32 v28, v27, 1, s72")
            P.raw("v_mul_u32_u24 v29, 37, v28")
            P.raw("v_lshrrev_b32 v29, 8, v29")
            P.raw("v_mul_u32_u24 v30, 7, v29")
            P.raw("v_sub_u32 v28, v28, v30")
            P.raw("v_lshlrev_b32 v28, 8, v28")
            P.raw("v_lshl_add_u32 v28, v29, 6, v28")
            P.raw("s_and_b32 s72, s98, 63")
            P.raw("v_add_u32 v28, s72, v28")
            P.raw("v_lshlrev_b32 v28, 10, v28")
            if VTALL:
                P.raw(f"v_add_u32 v{vTA['W4']}, v26, v28")
            else:
                colsel("W4", 0)
                P.raw(f"v_or_b32 v{vTA['W4']}, s73, v28")
        for nm, pitch, col in (("WO", 1024, 0), ("W2", 1024, 0), ("Q", 3072, 0), ("K", 3072, 1024), ("V", 3072, 2048)):
            if nm not in used: continue
            P.raw("v_lshl_add_u32 v28, v27, 7, s98")
            P.raw(f"v_mul_u32_u24 v28, {pitch}, v28")
            if VTALL:
                if col: P.raw(f"v_add_u32 v28, {col}, v28")
                P.raw(f"v_add_u32 v{vTA[nm]}, v26, v28")
            else:
                colsel({"WO": "W4", "V": "K"}.get(nm, nm), 0)
                P.raw("s_and_b32 s72, s73, 0x7f000000")
                P.raw(f"v_add_u32 v28, {384 + col}, v28")
                P.raw(f"v_or_b32 v{vTA[nm]}, s72, v28")
        if "H3" in used:
            P.raw(f"s_and_b32 s72, s{sN}, 3")
            P.raw("s_lshl_b32 s72, s72, 2")
            P.raw(f"s_add_u32 s72, s72, s{sBw}")
            P.raw("s_lshr_b32 s73, s72, 3")
            P.raw("s_and_b32 s72, s72, 7")
            P.raw("s_mul_i32 s72, s72, 28")
            P.raw("v_add_u32 v28, s72, v0")
            P.raw("v_lshrrev_b32 v29, 5, v28")
            P.raw("v_lshlrev_b32 v29, 14, v29")
            P.raw("v_and_b32 v28, 31, v28")
            P.raw("v_lshl_add_u32 v28, v28, 7, v29")
            P.raw("s_mul_i32 s73, s73, 114688")
            P.raw(f"s_mul_i32 s72, s{sM}, 229376")
            P.raw("s_add_u32 s72, s72, s73")
            P.raw(f"s_add_u32 s72, s72, {hex(W_H3)}")
            P.raw("v_add_u32 v28, s72, v28")
            P.raw(f"v_mov_b32 v29, {hex(OOB)}")
            P.raw("v_cmp_gt_u32 vcc, 28, v0")
            P.raw(f"v_cndmask_b32 v{vTA['H3']}, v29, v28, vcc")
        if "O" in used or "X1" in used or "H" in used:
            P.raw(f"s_and_b32 s72, s{sN}, 3")
            P.raw("s_lshl_b32 s72, s72, 2")
            P.raw(f"s_add_u32 s72, s72, s{sBw}")
            P.raw("s_lshl_b32 s72, s72, 12")
            P.raw(f"s_lshl_b32 s73, s{sM}, 16")
            P.raw("s_add_u32 s72, s72, s73")
            P.raw("v_lshl_add_u32 v28, v0, 7, s72")
            P.raw(f"v_mov_b32 v29, {hex(OOB)}")
            P.raw("v_cmp_gt_u32 vcc, 32, v0")
            P.raw(f"v_cndmask_b32 v{vTA['O']}, v29, v28, vcc")
    def vt(P, at):
        if at not in VT: return
        for it in VT.pop(at).split("+"):
            nm, a, b = (it.split(".") + ["0", "0"])[:3]; a = int(a); b = int(b)
            if nm == "H3":
                P.vm(f"buffer_load_dword v72, v{vTA['H3']}, {S(SWS)}, 0 offen offset:0 sc1" if a == 0 else
                     ("grp", []), "vt") if False else None
                P.raw(f"s_mov_b32 s73, {a*4096}")
                P.vm(f"buffer_load_dword v72, v{vTA['H3']}, {S(SWS)}, s73 offen sc1", "vt")
                continue
            if nm in ("O", "X1", "H"):
                P.raw(f"s_mov_b32 s73, {hex({'O': W_O, 'X1': W_X1, 'H': W_H}[nm])}")
                P.vm(f"buffer_load_dword v72, v{vTA['O']}, {S(SWS)}, s73 offen sc1", "vt")
                continue
            sr = {"W4": SW4, "WO": SWO, "W2": SW2, "Q": SQKV, "K": SQKV, "V": SQKV}[nm]
            if VTALL: a *= 4; b *= 4
            mask = ((1 << b) - 1) ^ ((1 << a) - 1)
            P.raw(f"s_mov_b32 exec_lo, {hex(mask & 0xffffffff)}")
            P.raw(f"s_mov_b32 exec_hi, {hex(mask >> 32)}")
            P.vm(f"buffer_load_dword v72, v{vTA[nm]}, {S(sr)}, 0 offen", "vt")
            P.raw("s_mov_b64 exec, -1")
    SP2 = dict((x.split(":")[0], int(x.split(":")[1])) for x in OPT("SP2", "").split(",") if x)
    def spf2(P, at):
        for _ in range(min(SP2.get(at, 0), len(spq2))):
            b, o_ = spq2.pop(0)
            P.raw(f"s_load_dword s97, s[{b}:{b+1}], {hex(o_)}")
    def spf(P, cnt=None):
        cnt = OPT("SPFN", 8) if cnt is None else cnt
        for _ in range(min(cnt, len(spq))):
            b, o_ = spq.pop(0)
            P.raw(f"s_load_dword s96, s[{b}:{b+1}], {hex(o_)}")
    k("v_lshrrev_b32 v22, 3, v0")
    k("v_and_b32 v23, 7, v0")
    k("v_bfe_u32 v24, v0, 4, 1")
    k("v_lshlrev_b32 v24, 2, v24")
    k("v_xor_b32 v23, v23, v24")
    k("v_lshlrev_b32 v23, 4, v23")
    def wl(regs, pitch):
        k(f"v_mul_u32_u24 v{regs[0]}, {pitch}, v22")
        k(f"v_add_u32 v{regs[0]}, v{regs[0]}, v23")
        for j in range(1, 4):
            k(f"v_add_u32 v{regs[j]}, {j*(8*pitch - 1024)}, v{regs[0]}")
    wl(Wl1024, 1024)
    wl(Wl3072, 3072)
    wl(Wl3584, 3584)
    k("s_waitcnt lgkmcnt(0)")
    if STAMP or OPT("TMK", "") or OPT("AMP", ""): k("s_mov_b32 s79, s80")
    xloads(B)
    srd(k, SW1, P_W1, 512*1024)
    srd(k, SQKV, P_WQKV, 512*3072)
    srd(k, SWS, P_WS, WS_SIZE)
    srd(k, SW3, P_W3, 512*3584)
    srd(k, SDBG, P_DBG, 256)
    srd(k, SW2, P_W2, 512*1024)
    srd(k, SW4, P_W4, 1792*1024)
    srd(k, SWO, P_WO, 512*1024)
    if OPT("TLBW", 0) >= 2: srd(k, SOUT, P_OUT, 2*MB)
    pfs(B, "A")
    B.stamp("@pf1i")
    k(f"s_mov_b32 s{sBw}, s77")
    k(f"s_lshl_b32 s{sWb}, s{sBw}, 13")
    k(f"s_lshl_b32 s72, s{sN}, 7")
    if OPT("HACKN3", 0) == 2:
        k(f"s_cmp_eq_u32 s{sN}, 3")
        k("s_cselect_b32 s72, 256, s72")
    if SWAPS:
        k(f"s_cmp_eq_u32 s{sN}, 3")
        k(f"s_cselect_b32 s{sDl}, 512, 0")
        k(f"s_cmp_eq_u32 s{sN}, 7")
        k(f"s_cselect_b32 s{sDl}, -512, s{sDl}")
    k(f"s_lshl_b32 s73, s{sBw}, 16")
    k(f"s_add_u32 s{sRow1}, s73, s72")
    k(f"s_mul_i32 s73, s{sBw}, {64*3072}")
    k(f"s_add_u32 s{sRowQ}, s73, s72")
    if "K" in SWAPS: k(f"s_add_u32 s{sRowQ}, s{sRowQ}, s{sDl}")
    if "W1" in SWAPS: k(f"s_add_u32 s{sRow1}, s{sRow1}, s{sDl}")
    def dma4(m0base, m0c, srdn, regs, sbase, const, tag, sc1=False):
        out = []
        for j in range(4):
            g = []
            if j == 0:
                g.append(f"s_add_u32 m0, s{m0base}, {m0c}")
                g.append(f"s_add_u32 s{sT0}, s{sbase}, {hex(const & 0xffffffff)}")
            r = regs[j] if isinstance(regs, list) else regs
            g.append(("vm", f"buffer_load_dwordx4 v{r}, {S(srdn)}, s{sT0} offen offset:{j*1024}" + (" sc1" if sc1 else "") + " lds", tag))
            out.append(("grp", g))
        return out
    def wfill(f, srdn, regs, sRow, const, pitch):
        sl = (f % 4)*SLOT
        return dma4(sWb, sl, srdn, regs, sRow, const, f"f{f}") + dma4(sWb, sl + 4096, srdn, regs, sRow, const + 32*pitch, f"f{f}")
    k(f"s_lshr_b32 s72, s{sM}, 2")
    k("s_lshl_b32 s72, s72, 2")
    k(f"s_add_u32 s{sCsP}, s72, s{sBw}")
    k(f"s_and_b32 s74, s{sM}, 3")
    k(f"s_lshl_b32 s75, s{sN}, 2")
    k(f"s_add_u32 s{sCsG}, s74, s75")
    k(f"s_cmp_lt_u32 s{sM}, 16")
    k("s_cselect_b32 s75, 1, 0")
    k(f"s_cmp_lt_u32 s{sN}, 7")
    k("s_cselect_b32 s75, s75, 0")
    k("s_cmp_eq_u32 s75, 1")
    k(f"s_cselect_b32 s{sCsOOB}, 0, {hex(OOB)}")
    def cs3_dma(P):
        vC3 = 24
        P.raw("v_lshrrev_b32 v22, 3, v0")
        P.raw("v_and_b32 v25, 7, v0")
        P.raw("v_mul_u32_u24 v24, 3584, v22")
        P.raw(f"v_lshl_add_u32 v{vC3}, v25, 4, v24")
        P.raw(f"s_mul_i32 s73, s{sCsP}, {32*3584}")
        P.raw(f"s_lshl_b32 s74, s{sCsG}, 7")
        P.raw("s_add_u32 s73, s73, s74")
        P.raw(f"s_cmp_eq_u32 s{sCsOOB}, 0")
        P.raw("s_cselect_b32 s73, s73, 0")
        P.raw(f"v_or_b32 v{vC3}, s{sCsOOB}, v{vC3}")
        P.raw(f"s_lshl_b32 s72, s{sBw}, 12")
        P.raw(f"s_add_u32 m0, s72, {ACCX}")
        for j in range(4):
            if j: P.raw(f"v_add_u32 v{vC3}, {8*3584 - 1024}, v{vC3}")
            P.vm(f"buffer_load_dwordx4 v{vC3}, {S(SW3)}, s73 offen offset:{j*1024} lds", "cs3")
    def xtr_dma(P):
        P.raw("v_lshrrev_b32 v22, 3, v0")
        P.raw(f"s_lshl_b32 s72, s{sBw}, 4")
        P.raw("v_add_u32 v24, s72, v22")
        P.raw("v_bfe_u32 v25, v24, 1, 3")
        P.raw("v_and_b32 v26, 7, v0")
        P.raw("v_xor_b32 v25, v25, v26")
        P.raw("v_lshlrev_b32 v25, 4, v25")
        P.raw(f"s_lshl_b32 s72, s{sM}, 6")
        P.raw("v_add_u32 v24, s72, v24")
        P.raw("v_lshl_add_u32 v24, v24, 10, v25")
        P.raw(f"s_lshl_b32 s72, s{sN}, 7")
        P.raw("v_add_u32 v24, s72, v24")
        P.raw(f"s_lshl_b32 s72, s{sBw}, 11")
        P.raw(f"s_add_u32 m0, s72, {XTR}")
        P.vm(f"buffer_load_dwordx4 v24, {S(SX)}, 0 offen lds", "xt")
        P.raw("v_add_u32 v24, 8192 - 1024, v24")
        P.raw("v_xor_b32 v24, 64, v24")
        P.vm(f"buffer_load_dwordx4 v24, {S(SX)}, 0 offen offset:1024 lds", "xt")
    k(f"v_lshlrev_b32 v{vLin}, 4, v0")
    k(f"v_lshlrev_b32 v{vP4}, 2, v0")
    k(f"s_lshl_b32 s72, s{sBw}, 12")
    k(f"s_add_u32 s72, s72, {ACCX}")
    k(f"v_add_u32 v{vAXb}, s72, v{vLin}")
    k(f"v_mov_b32 v{vFl0}, {hex(OOB)}")
    k("v_mov_b32 v24, 0")
    k("v_cmp_eq_u32 vcc, 0, v0")
    k(f"v_cndmask_b32 v{vFl0}, v{vFl0}, v24, vcc")
    k(f"s_lshl_b32 s72, s{sN}, 9")
    k(f"s_mul_i32 s73, s{sBw}, {64*3584}")
    k(f"s_add_u32 s{sRow3}, s73, s72")
    k(f"s_lshl_b32 s72, s{sCH}, 14")
    k(f"s_lshl_b32 s73, s{sTT}, 12")
    k(f"s_add_u32 s{sCb}, s72, s73")
    k(f"s_lshl_b32 s72, s{sN}, 7")
    if OPT("HACKN3", 0) in (1, 2):
        k(f"s_cmp_eq_u32 s{sN}, 3")
        k("s_cselect_b32 s72, 256, s72")
    k(f"s_lshl_b32 s73, s{sBw}, 15")
    k(f"s_add_u32 s{sRowC}, s73, s72")
    k(f"s_lshl_b32 s73, s{sTT}, 15")
    k("s_add_u32 s72, s72, s73")
    k(f"s_lshl_b32 s73, s{sCH}, 18")
    k(f"s_add_u32 s{sW4a}, s72, s73")
    k(f"s_mul_i32 s73, s{sCH}, {-1472*1024}")
    k(f"s_add_u32 s{sW4b}, s72, s73")
    k(f"s_lshl_b32 s{sTile}, s{sM}, 1")
    k(f"s_add_u32 s{sTile}, s{sTile}, s{sTT}")
    k(f"s_mul_i32 s72, s{sTile}, {112*1024}")
    k(f"s_add_u32 s72, s72, {hex(W_H3)}")
    k(f"s_lshl_b32 s73, s{sCH}, 14")
    k(f"s_add_u32 s{sH3a}, s72, s73")
    k(f"s_mul_i32 s73, s{sCH}, {-1472*64}")
    k(f"s_add_u32 s{sH3b}, s72, s73")
    k(f"s_lshl_b32 s73, s{sN}, 14")
    k("s_add_u32 s72, s72, s73")
    k(f"s_lshl_b32 s73, s{sCH}, 11")
    k(f"s_add_u32 s{sH3st}, s72, s73")
    k(f"s_lshl_b32 s72, s{sTile}, 15")
    k(f"s_lshl_b32 s73, s{sCH}, 12")
    k(f"s_add_u32 s{sHsrc}, s73, {hex(W_H)}")
    k("s_add_u32 s73, s73, s72")
    k(f"s_add_u32 s{sOb}, s73, {hex(W_O)}")
    k(f"s_lshl_b32 s73, s{sCH}, 13")
    k("s_add_u32 s73, s73, s72")
    k(f"s_add_u32 s{sX1b}, s73, {hex(W_X1)}")
    k(f"s_lshl_b32 s73, s{sN}, 12")
    k("s_add_u32 s72, s72, s73")
    k(f"s_lshl_b32 s73, s{sCH}, 11")
    k("s_add_u32 s72, s72, s73")
    k(f"s_add_u32 s{sHst}, s72, {hex(W_H)}")
    k(f"s_lshl_b32 s{sFidxB}, s{sM}, 5")
    k(f"s_lshl_b32 s72, s{sN}, 2")
    k(f"s_add_u32 s{sFidxB}, s{sFidxB}, s72")
    k(f"s_add_u32 s{sFidxB}, s{sFidxB}, s{sBw}")
    k(f"s_lshl_b32 s{sFidxB}, s{sFidxB}, 2")
    p0_group(B, 0)
    B.run(wfill(2, SW1, Wl1024, sRow1, 0, 1024))
    B.stamp("@f2i")
    pfs(B, "B")
    p0_group(B, 1)
    B.run(wfill(3, SW1, Wl1024, sRow1, 256*1024, 1024))
    B.stamp("@f3i")
    pfs(B, "C")
    B.vm(f"buffer_load_dword v{vNc}, v59, {S(SDBG)}, 0 offen sc1", "nc")
    if OPT("TLBW", 0):
        ents = [(W_H, sM, 65536, None, 0), (W_X1, sM, 65536, None, 0), (W_O, sM, 65536, None, 0),
                (W_H3, sM, 229376, None, 0), (W_H3 + 114688, sM, 229376, None, 0),
                (W_KVP, sN, 262144, sM, 2048), (W_KVP, sM, 65536, None, 0), (W_KVF, sM, 1024, None, 0),
                (W_ST, sM, 8192, None, 0), (W_CS, sN, 16384, None, 0), (W_FL, sM, 128, None, 0), (W_FL + 32768, sM, 128, None, 0)]
        k(f"v_mov_b32 v47, {hex(OOB)}")
        for i, (base, s1, m1, s2, m2) in enumerate(ents):
            k(f"s_mul_i32 s72, s{s1}, {m1}")
            if s2 is not None:
                k(f"s_mul_i32 s73, s{s2}, {m2}")
                k("s_add_u32 s72, s72, s73")
            k(f"s_add_u32 s72, s72, {hex(base)}")
            k(f"v_writelane_b32 v47, s72, {i}")
        B.vm(f"buffer_load_dword v51, v47, {S(SWS)}, 0 offen sc1", "tlb")
        if OPT("TLBW", 0) >= 2:
            k(f"v_mov_b32 v47, {hex(OOB)}")
            k(f"s_lshl_b32 s72, s{sN}, 7")
            k("v_writelane_b32 v47, s72, 0")
            k(f"s_add_u32 s72, s72, {hex(511*1024)}")
            k("v_writelane_b32 v47, s72, 1")
            for sr in (SW2, SWO, SW3, SW4):
                B.vm(f"buffer_load_dword v51, v47, {S(sr)}, 0 offen", "tlb")
            k(f"s_add_u32 s72, s72, {hex(1280*1024)}")
            k("v_writelane_b32 v47, s72, 0")
            k(f"s_add_u32 s72, s72, {hex(-640*1024 & 0xffffffff)}")
            k("v_writelane_b32 v47, s72, 1")
            for sr in (SW3, SW4):
                B.vm(f"buffer_load_dword v51, v47, {S(sr)}, 0 offen", "tlb")
            k(f"v_mov_b32 v47, {hex(OOB)}")
            k(f"s_lshl_b32 s72, s{sM}, 16")
            k("v_writelane_b32 v47, s72, 0")
            B.vm(f"buffer_load_dword v51, v47, {S(SOUT)}, 0 offen", "tlb")
    k("s_branch B_MAIN")

    def get_nonce(vdst):
        L = k.newlabel("NC"); D = k.newlabel("ND")
        k(f"v_readfirstlane_b32 s{sNon}, v{vNc}")
        k(f"s_cmp_lg_u32 s{sNon}, 0")
        k(f"s_cbranch_scc1 {D}")
        k.label(L)
        k("v_mov_b32 v59, 0")
        k(f"buffer_load_dword v{vNc}, v59, {S(SDBG)}, 0 offen sc1")
        k("s_waitcnt vmcnt(0)")
        k(f"v_readfirstlane_b32 s{sNon}, v{vNc}")
        k(f"s_sub_u32 s{sSpin}, s{sSpin}, 1")
        k(f"s_cmp_le_i32 s{sSpin}, 0")
        k(f"s_cbranch_scc1 {D}")
        k(f"s_cmp_eq_u32 s{sNon}, 0")
        k(f"s_cbranch_scc1 {L}")
        k.label(D)
        k(f"v_mov_b32 v{vdst}, s{sNon}")

    P = A
    k.label("A_MAIN")
    k("s_waitcnt vmcnt(0) lgkmcnt(0)")
    A.vq = []; A.dq = []
    get_nonce(vNonA)
    if OPT("TTH", 0):
        P.raw(f"s_mov_b32 s72, {hex(W_FL + 49152)}")
        P.raw("v_mov_b32 v5, 0")
        P.vm(f"buffer_load_dword v5, v5, {S(SWS)}, s72 offen sc1", "mk")
    P.stamp()
    def wread(base, f, ks16, ring, second):
        sl = f % 4
        off = (sl & 1)*SLOT + ks16*2048
        d = WF + 4*(ring % 8)
        return [(f"ds_read_b64_tr_b16 {v(d,2)}, v{base[sl>>1]} offset:{off}", ("w", ring, 0)),
                (f"ds_read_b64_tr_b16 {v(d+2,2)}, v{base[sl>>1]} offset:{off + second}", ("w", ring, 1))]
    vMa, vArA, vBrA, vRiA = 12, 13, 14, 15
    sHstA, sEps, sH3A, sH3r, sFlg = 12, 13, 14, 15, 16
    def gelu8(a, c, pk, T1, vM, vAr, vBr, vRi):
        L = []
        if c is not None:
            for i in range(8): L.append(f"v_fma_f32 v{a+i}, -v{vM}, v{c+i}, v{a+i}")
        for i in range(8): L.append(f"v_mul_f32 v{T1+i}, v{a+i}, v{a+i}")
        for i in range(8): L.append(f"v_fma_f32 v{T1+i}, v{T1+i}, v{vBr}, v{vAr}")
        for i in range(8): L.append(f"v_mul_f32 v{T1+i}, v{T1+i}, v{a+i}")
        for i in range(8): L.append(f"v_exp_f32 v{T1+i}, v{T1+i}")
        for i in range(8): L.append(f"v_fma_f32 v{T1+i}, v{T1+i}, v{vRi}, v{vRi}")
        for i in range(8): L.append(f"v_rcp_f32 v{T1+i}, v{T1+i}")
        for i in range(8): L.append(f"v_mul_f32 v{a+i}, v{a+i}, v{T1+i}")
        for i in range(4): L.append(f"v_cvt_pk_bf16_f32 v{pk+i}, v{a+2*i}, v{a+2*i+1}")
        return L
    def aflag(off_const, tagwait, tag):
        return [("stamp", "@w" + tag), ("wvm", tagwait), f"s_add_u32 s{sFlg}, s{sFidx}, {hex(off_const)}",
                ("vm", f"buffer_store_dword v{vNonA}, v{vFl0A}, {S(SWS)}, s{sFlg} offen sc1", tag), ("stamp", "@i" + tag)]
    NOEPI = OPT("NOEPI", 0)
    steps = []; pre = {}
    for R, (f0, wfirst) in enumerate(((2, True), (4, False), (6, False))):
        for ks in range(32):
            G = 32*R + ks
            f = f0 + (ks >> 4)
            st = dict(reads=wread(vWn, f, ks & 15, G, 512), need=[("w", G, 1)])
            d = ACB if ks == 31 else ACA
            c = None if ks == 0 else ACA
            a_, b_ = (WF + 4*(G % 8), ACT + 4*ks)
            st["mfma"] = mf(d, a_, b_, c) if wfirst else mf(d, b_, a_, c)
            if R == 0: st["need"].append(("act", ks))
            if ks % 16 == 0: st["gate"] = {0: "B1", 16: "b3", 32: "b4", 48: "b5", 64: "b6", 80: "b7"}[G]
            steps.append(st)
    side = [(-3 + ks//4, f"ds_read_b128 {v(ACT+4*ks,4)}, v{xa[ks&3]} offset:{(ks >> 2)*8192}", ("act", ks)) for ks in range(32)]
    pre[OPT("BAPOS", 6)] = [("wds", ("act", 31)), ("bar", "Ba")]
    cst = [f"s_lshl_b32 s72, s{sTT}, 9", f"s_add_u32 s72, s72, {TAB_ST + 8}", f"v_lshl_add_u32 v31, v{vT31}, 4, s72",
           ("ds", "ds_read_b32 v4, v31", "rh"),
           f"s_add_u32 s{sHstA}, s{sFrag}, {hex(W_H)}", f"s_mov_b32 s{sEps}, {hx(EPS_PHI)}"]
    if "W1" in SWAPS: cst += [f"s_lshl_b32 s72, s{sDl}, 10", f"s_xor_b32 s{sHstA}, s{sHstA}, s72"]
    steps[17].setdefault("post", []).extend(cst)
    cst2 = [("wds", "rh"), f"v_mul_f32 v{vArA}, {hx(GA)}, v4", f"v_mul_f32 v{vBrA}, v4, v4", f"v_rcp_f32 v{vRiA}, v4",
            f"v_mul_f32 v{vBrA}, v{vBrA}, v4", f"v_mul_f32 v{vBrA}, {hx(GB)}, v{vBrA}"]
    steps[24].setdefault("post", []).extend(cst2)
    T1h, PKh = 64, 72
    eh = gelu8(ACB, None, PKh, T1h, vMa, vArA, vBrA, vRiA) + \
         [("vm", f"buffer_store_dwordx4 {v(PKh,4)}, v{vLinA}, {S(SWS)}, s{sHstA} offen sc1", "hst")] + \
         gelu8(ACB+8, None, PKh+4, T1h, vMa, vArA, vBrA, vRiA) + \
         [("vm", f"buffer_store_dwordx4 {v(PKh+4,4)}, v{vLinA}, {S(SWS)}, s{sHstA} offen offset:1024 sc1", "hst")]
    if NOEPI: eh = [o for o in eh if not isinstance(o, str)]
    spread(steps, eh, 32 + 2, 32 + OPT("HEND", 22))
    steps[OPT("F1POS", 64 + 8)].setdefault("post", []).extend(aflag(F1, "hst", "f1flag"))
    KT, PA_ = 64, 88
    ek = []
    for i in range(16): ek.append(f"v_mul_f32 v{KT+i}, {hx(LOG2E)}, v{ACB+i}")
    for i in range(16): ek.append(f"v_add_f32 v{ACB+i}, s{sEps}, v{ACB+i}")
    for i in range(16): ek.append(f"v_exp_f32 v{KT+i}, v{KT+i} clamp")
    for i in range(16): ek.append(f"v_max_f32 v{ACB+i}, s{sEps}, v{ACB+i}")
    for i in range(16): ek.append(f"v_add_f32 v{ACB+i}, v{ACB+i}, v{KT+i}")
    for i in range(8): ek.append(f"v_cvt_pk_bf16_f32 v{PA_+i}, v{ACB+2*i}, v{ACB+2*i+1}")
    if NOEPI: ek = []
    spread(steps, ek, 64 + 2, 64 + OPT("KEND", 24))
    stream(P, steps, lambda s: 3 if s < 6 else 6, 3, pre=pre, side=side, side_rate=4)
    P.stamp()
    PB_, B0_, D0, D1 = 64, 72, 96, 112
    for i in range(8): P.raw(f"v_cvt_pk_bf16_f32 v{PB_+i}, v{ACB+2*i}, v{ACB+2*i+1}")
    P.raw(f"s_mov_b32 s{sMk}, 0x0000ffff")
    P.raw(f"s_mov_b32 s{sMk+1}, 0x0000ffff")
    for i in range(8): P.raw(f"v_cndmask_b32 v{B0_+i}, v{ONE}, v{PB_+i}, {S(sMk,2)}")
    for i in range(8): P.raw(f"v_cndmask_b32 v{PB_+i}, v{PB_+i}, v{ONE}, {S(sMk,2)}")
    P.raw(mf(D0, PA_, B0_, None))
    P.raw(mf(D1, PA_, PB_, None))
    P.raw(mf(D0, PA_+4, B0_+4, D0))
    P.raw(mf(D1, PA_+4, PB_+4, D1))
    P.raw(f"s_cmp_eq_u32 s{sTT}, 0")
    P.raw("s_cbranch_scc1 A_KV0")
    for i in range(8): P.raw(f"v_mov_b32 v{ACA+i}, v{D0+i}")
    for i in range(8): P.raw(f"v_mov_b32 v{ACA+8+i}, v{D1+8+i}")
    P.raw("s_branch A_KV1")
    P.label("A_KV0")
    for i in range(8): P.raw(f"v_mov_b32 v{ACA+i}, v{D1+8+i}")
    for i in range(8): P.raw(f"v_mov_b32 v{ACA+8+i}, v{D0+i}")
    P.label("A_KV1")
    P.ds(f"ds_write_b128 v{vAX}, {v(ACA,4)} offset:2048", "ex0")
    P.ds(f"ds_write_b128 v{vAX}, {v(ACA+4,4)} offset:3072", "ex1")
    P.raw(f"v_xor_b32 v31, 4096, v{vAX}")
    P.wds_all()
    P.bar("bK2")
    P.ds(f"ds_read_b128 {v(ACA,4)}, v31 offset:2048", "ex0")
    P.ds(f"ds_read_b128 {v(ACA+4,4)}, v31 offset:3072", "ex1")
    P.raw(f"s_add_u32 s72, s{sHead}, s{sTT}")
    if "K" in SWAPS: P.raw(f"s_xor_b32 s72, s72, s{sDl}")
    P.raw("s_lshl_b32 s72, s72, 5")
    P.raw(f"s_add_u32 s72, s72, s{sM}")
    P.raw("s_lshl_b32 s73, s72, 11")
    P.raw(f"s_add_u32 s73, s73, {hex(W_KVP)}")
    P.raw(f"s_lshl_b32 s{sFkv}, s72, 2")
    P.raw(f"s_add_u32 s{sFkv}, s{sFkv}, {hex(FKV)}")
    P.wds_all()
    for i in range(8): P.raw(f"v_add_f32 v{ACA+i}, v{ACA+i}, v{ACA+8+i}")
    P.vm(f"buffer_store_dwordx4 {v(ACA,4)}, v{vLinA}, {S(SWS)}, s73 offen sc1", "kvp")
    P.vm(f"buffer_store_dwordx4 {v(ACA+4,4)}, v{vLinA}, {S(SWS)}, s73 offen offset:1024 sc1", "kvp")
    def xslice_reads(dst):
        L = []
        for g in range(4):
            if g == 0: L.append(("ds", f"ds_read_b64 {v(dst,2)}, v{vXR}", "xr"))
            else:
                L.append(f"v_xor_b32 v31, {16*g}, v{vXR}")
                L.append(("ds", f"ds_read_b64 {v(dst+2*g,2)}, v31", "xr"))
        return L
    def unpack_ops(dst, src, n=8):
        L = []
        for i in range(n):
            L.append(f"v_lshlrev_b32 v{dst+2*i}, 16, v{src+i}")
            L.append(f"v_and_b32 v{dst+2*i+1}, 0xffff0000, v{src+i}")
        return L
    XRr, STv = 64, 72
    P.run(xslice_reads(XRr))
    P.raw(f"s_lshl_b32 s72, s{sTT}, 9")
    P.raw(f"s_add_u32 s72, s72, {TAB_ST}")
    P.raw(f"v_lshl_add_u32 v31, v{vT31}, 4, s72")
    P.ds(f"ds_read_b64 {v(STv,2)}, v31", "st")
    P.wds_all()
    INI = ACB
    P.run(unpack_ops(INI, XRr))
    for i in range(16): P.raw(f"v_fma_f32 v{INI+i}, v{INI+i}, v{STv+1}, v{STv}")
    def chunk_steps(f0, nch, G0, acc, init, gl=2):
        steps = []
        for c in range(nch):
            f = f0 + c; sl = f % 4
            for j in range(8):
                G = G0 + 8*c + j
                e, ks = j >> 2, j & 3
                off = (sl & 1)*SLOT + e*16384
                h = HF + 4*(G % 8); w = WF + 4*(G % 8)
                reads = [(f"ds_read_b128 {v(h,4)}, v{vHa[sl>>1]} offset:{off + ks*1024}", ("h", G)),
                         (f"ds_read_b64_tr_b16 {v(w,2)}, v{vWf[sl>>1]} offset:{off + ks*2048}", ("w", G, 0)),
                         (f"ds_read_b64_tr_b16 {v(w+2,2)}, v{vWf[sl>>1]} offset:{off + ks*2048 + 1024}", ("w", G, 1))]
                first = c == 0 and j == 0
                st = dict(reads=reads, need=[("w", G, 1)], mfma=mf(acc, w, h, (init if first else acc)))
                if j == 0: st["gate"] = f"b{f}"; st["gl"] = gl
                steps.append(st)
        return steps
    stream(P, chunk_steps(8, 4, 0, ACA, INI), lambda s: 4, 2)
    P.wvm("kvp")
    P.vm(f"buffer_store_dword v{vNonA}, v{vFl0A}, {S(SWS)}, s{sFkv} offen sc1", "fkv")
    for i in range(8): P.raw(f"v_cvt_pk_bf16_f32 v{X1P+i}, v{ACA+2*i}, v{ACA+2*i+1}")
    P.raw(f"s_add_u32 s72, s{sFrag}, {hex(W_X1)}")
    P.vm(f"buffer_store_dwordx4 {v(X1P,4)}, v{vLinA}, {S(SWS)}, s72 offen sc1", "x1")
    P.vm(f"buffer_store_dwordx4 {v(X1P+4,4)}, v{vLinA}, {S(SWS)}, s72 offen offset:1024 sc1", "x1")
    P.raw("v_mov_b32 v64, 0")
    P.raw("v_mov_b32 v65, 0")
    for i in range(8):
        P.raw(f"v_dot2_f32_bf16 v64, v{X1P+i}, v{ONE}, v64")
        P.raw(f"v_dot2_f32_bf16 v65, v{X1P+i}, v{X1P+i}, v65")
    P.raw(f"s_lshl_b32 s72, s{sM}, 4")
    P.raw(f"s_lshl_b32 s73, s{sN}, 1")
    P.raw("s_add_u32 s72, s72, s73")
    P.raw(f"s_add_u32 s72, s72, s{sCH}")
    P.raw("s_lshl_b32 s72, s72, 1")
    P.raw(f"s_add_u32 s72, s72, s{sTT}")
    P.raw("s_lshl_b32 s72, s72, 8")
    P.raw(f"s_add_u32 s72, s72, {hex(W_ST)}")
    P.raw("v_permlane32_swap_b32 v64, v65")
    P.raw("v_add_f32 v64, v64, v65")
    P.vm(f"buffer_store_dword v64, v{vP4A}, {S(SWS)}, s72 offen sc1", "x1")
    P.raw(f"s_add_u32 s9, s{sFidx}, {hex(F2)}")
    steps = []; pre = {}
    for ks in range(32):
        f = 12 + (ks >> 4)
        st = dict(reads=wread(vWn, f, ks & 15, ks, 512), need=[("w", ks, 1)])
        st["mfma"] = mf(ACA, WF + 4*(ks % 8), ACT + 4*ks, None if ks == 0 else ACA)
        if ks % 16 == 0: st["gate"] = f"b{f}"
        steps.append(st)
    pre[OPT("F2POS", 16)] = [("stamp", "@wf2"), ("wvm", "x1"), ("vm", f"buffer_store_dword v{vNonA}, v{vFl0A}, {S(SWS)}, s9 offen sc1", "f2"), ("stamp", "@if2")]
    stream(P, steps, lambda s: 6, 3, pre=pre)
    P.wds_all()
    P.bar("bQ")
    P.stamp()
    PQ = 64
    Q0, Q1 = 96, 112
    for i in range(16): P.raw(f"v_mul_f32 v{Q1+i}, {hx(LOG2E)}, v{ACA+i}")
    for i in range(16): P.raw(f"v_add_f32 v{Q0+i}, s{sEps}, v{ACA+i}")
    for i in range(16): P.raw(f"v_exp_f32 v{Q1+i}, v{Q1+i} clamp")
    for i in range(16): P.raw(f"v_max_f32 v{Q0+i}, s{sEps}, v{Q0+i}")
    for i in range(16): P.raw(f"v_add_f32 v{Q0+i}, v{Q0+i}, v{Q1+i}")
    for i in range(8): P.raw(f"v_cvt_pk_bf16_f32 v{PQ+i}, v{Q0+2*i}, v{Q0+2*i+1}")
    P.ds(f"ds_write_b128 v{vAX}, {v(PQ,4)}", "pq")
    P.ds(f"ds_write_b128 v{vAX}, {v(PQ+4,4)} offset:1024", "pq")
    sHq = sHead
    if "Q" in SWAPS:
        sHq = 74
        P.raw(f"s_xor_b32 s74, s{sHead}, s{sDl}")
    P.raw(f"s_lshl_b32 s10, s{sHq}, 5")
    P.raw(f"s_add_u32 s10, s10, {hex(FKF)}")
    P.raw(f"s_lshl_b32 s11, s{sHq}, 10")
    P.raw(f"s_add_u32 s11, s11, {hex(W_KVF)}")
    vH3o = 4
    P.raw(f"s_mul_i32 s72, s{sTileA}, {112*1024}")
    P.raw(f"s_lshl_b32 s73, s{sN}, 14")
    P.raw("s_add_u32 s72, s72, s73")
    P.raw(f"s_lshl_b32 s73, s{sCH}, 11")
    P.raw("s_add_u32 s72, s72, s73")
    P.raw(f"s_add_u32 s{sH3A}, s72, {hex(W_H3)}")
    P.raw(f"s_cmp_eq_u32 s{sN}, 7")
    P.raw(f"s_cselect_b32 s72, {hex(OOB)}, 0")
    P.raw(f"v_or_b32 v{vH3o}, s72, v{vLinA}")
    vS2 = 16
    steps = []; pre = {}
    for r in range(4):
        for ks in range(32):
            G = 32*r + ks
            f = 16 + 2*r + (ks >> 4)
            st = dict(reads=wread(vWf, f, ks & 15, G, 1024), need=[("w", G, 1)])
            st["mfma"] = mf(ACB if ks == 31 else ACA, WF + 4*(G % 8), ACT + 4*ks, None if ks == 0 else ACA)
            if r == 0: st["need"].append(("act", ks))
            if ks % 16 == 0: st["gate"] = "b14" if G == 0 else f"b{f}"
            steps.append(st)
    AC6 = 240
    steps += chunk_steps(24, 14, 128, ACA, None) + chunk_steps(38, 4, 240, AC6, None)
    side = [((-3 + ks//4) if ks < 16 else 10, f"ds_read_b128 {v(ACT+4*ks,4)}, v{vX1a} offset:{(ks >> 4)*32768 + (ks & 15)*1024}", ("act", ks)) for ks in range(32)]
    pre[OPT("BA2POS", 2)] = [("wds", ("act", 15)), ("bar", "Ba2")]
    pre[10] = [("bar", "b15")]
    pre[OPT("BB2POS", 15)] = [("wds", ("act", 31)), ("bar", "Bb2")]
    vCSa = 16
    steps[30].setdefault("post", []).extend(
        [f"s_lshl_b32 s72, s{sTT}, 9", f"s_add_u32 s72, s72, {TAB_S2}", f"v_lshl_add_u32 v31, v{vT31}, 4, s72",
         ("ds", f"ds_read_b128 {v(vMa,4)}, v31", "s2"),
         f"s_lshl_b32 s72, s{sCH}, 7", f"s_add_u32 s72, s72, {TAB_CS}", f"v_lshl_add_u32 v{vCSa}, v{vHf}, 4, s72"])
    def g4cs(r, CS):
        return [("ds", f"ds_read_b128 {v(CS+4*g,4)}, v{vCSa} offset:{256*r + 32*g}", ("cs", r, g)) for g in range(4)]
    def g4epi(r, CS, T1, PK):
        L = [f"s_add_u32 s{sH3r}, s{sH3A}, {4*r*1024}", ("wds", ("cs", r, 3), "s2")]
        g1 = gelu8(ACB, CS, PK, T1, vMa, vArA, vBrA, vRiA); g2 = gelu8(ACB+8, CS+8, PK+4, T1, vMa, vArA, vBrA, vRiA)
        if NOEPI: g1 = g2 = []
        L += g1 + [("vm", f"buffer_store_dwordx4 {v(PK,4)}, v{vH3o}, {S(SWS)}, s{sH3r} offen sc1", f"h3s{r}")]
        L += g2 + [("vm", f"buffer_store_dwordx4 {v(PK+4,4)}, v{vH3o}, {S(SWS)}, s{sH3r} offen offset:1024 sc1", f"h3s{r}")]
        return L
    GE = [OPT("GEND0", 20), OPT("GEND", 31), OPT("GEND", 31)]; F3P = [OPT("F3POS0", 40), OPT("F3POS", 54), OPT("F3POS2", 38)]
    for r in range(3):
        steps[32*r + 30].setdefault("post", []).extend(g4cs(r, 64))
        spread(steps, g4epi(r, 64, 80, 88), 32*(r+1) + 1, 32*(r+1) + GE[r])
        steps[32*(r+1) + F3P[r]].setdefault("post", []).extend(aflag(F3 + r*4096, f"h3s{r}", f"f3f{r}"))
    if OPT("R3SER", 1):
        steps[126].setdefault("post", []).extend(g4cs(3, 64))
        steps[127].setdefault("post", []).extend(g4epi(3, 64, 80, 88))
        steps[128]["gl"] = 0
    else:
        steps[128].setdefault("post", []).extend(g4cs(3, 192))
        spread(steps, g4epi(3, 192, 208, 216), 128 + 2, 128 + OPT("GEND3", 14))
    steps[128 + OPT("F3POS3", 28)].setdefault("post", []).extend(aflag(F3 + 3*4096, "h3s3", "f3f3"))
    vKf = 31
    KVF, PQ2, OD = 128, 136, 144
    steps[120].setdefault("post", []).append(("vm", f"buffer_load_dword v17, v{vP4A}, {S(SWS)}, s10 offen sc1", "kf"))
    def kf_check():
        if P.dead: return
        P.wvm("kf")
        saved = list(P.vq)
        OKL = k.newlabel("KFOK")
        P.raw(f"v_cmp_ne_u32 vcc, s{sNon}, v17")
        P.raw("s_and_b64 vcc, vcc, 0xffff")
        P.raw(f"s_cbranch_scc0 {OKL}")
        P.poll(17, vP4A, "s10", 0xffff, 0)
        P.label(OKL)
        P.vq = saved
        P.vm(f"buffer_load_dwordx4 {v(KVF,4)}, v{vLinA}, {S(SWS)}, s11 offen sc1", "kvf")
        P.vm(f"buffer_load_dwordx4 {v(KVF+4,4)}, v{vLinA}, {S(SWS)}, s11 offen offset:1024 sc1", "kvf")
    OJ = 128 + OPT("OJPOS", 14)
    steps[OJ].setdefault("post", []).append(("call", kf_check))
    pqr = [f"s_lshl_b32 s72, s{sWave}, 12", f"s_add_u32 s72, s72, {ACCX}", f"v_add_u32 v31, s72, v{vLinA}",
           ("ds", f"ds_read_b128 {v(PQ2,4)}, v31", "pq2"), ("ds", f"ds_read_b128 {v(PQ2+4,4)}, v31 offset:1024", "pq2")]
    steps[OJ+1].setdefault("post", []).extend(pqr)
    OM = OJ + OPT("OJM", 12)
    steps[OM].setdefault("post", []).extend([("wvm", "kvf"), ("wds", "pq2"), mf(OD, KVF, PQ2, None), mf(OD+16, KVF+4, PQ2+4, None)])
    oj = [f"v_add_f32 v{OD+8}, s{sEps}, v{OD+8}", f"v_add_f32 v{OD+16}, s{sEps}, v{OD+16}",
          f"v_rcp_f32 v{OD+8}, v{OD+8}", f"v_rcp_f32 v{OD+16}, v{OD+16}"]
    for i in range(8): oj.append(f"v_mul_f32 v{OD+i}, v{OD+i}, v{OD+8}")
    for i in range(8): oj.append(f"v_mul_f32 v{OD+24+i}, v{OD+24+i}, v{OD+16}")
    for i in range(4): oj.append(f"v_cvt_pk_bf16_f32 v{KVF+i}, v{OD+2*i}, v{OD+2*i+1}")
    for i in range(4): oj.append(f"v_cvt_pk_bf16_f32 v{KVF+4+i}, v{OD+24+2*i}, v{OD+24+2*i+1}")
    oj.append(f"s_add_u32 s72, s{sFrag}, {hex(W_O)}")
    if "Q" in SWAPS: oj += [f"s_lshl_b32 s73, s{sDl}, 10", "s_xor_b32 s72, s72, s73"]
    oj.append(("vm", f"buffer_store_dwordx4 {v(KVF,4)}, v{vLinA}, {S(SWS)}, s72 offen sc1", "o"))
    oj.append(("vm", f"buffer_store_dwordx4 {v(KVF+4,4)}, v{vLinA}, {S(SWS)}, s72 offen offset:1024 sc1", "o"))
    steps[OM+2].setdefault("post", []).extend(oj[:14])
    steps[OM+3].setdefault("post", []).extend(oj[14:])
    steps[OM + OPT("FOPOS", 16)].setdefault("post", []).extend(aflag(FO, "o", "fo"))
    XF = 176; X1F = 192; vOut = 12; XT = 208
    misc = xslice_reads(XT) + unpack_ops(X1F, X1P) + [("wds", "xr")] + unpack_ops(XF, XT)
    misc += [f"s_lshl_b32 s72, s{sTileA}, 15", f"s_lshl_b32 s73, s{sHead}, 5", "s_add_u32 s72, s72, s73",
             f"v_lshl_add_u32 v{vOut}, v{vT31}, 10, s72", f"v_lshl_add_u32 v{vOut}, v{vHf}, 3, v{vOut}"]
    spread(steps, misc, 128 + 80, 128 + 100)
    E = 128; Gt = 144; BV = 160
    sil = []
    for i in range(16): sil.append(f"v_add_f32 v{BV+i}, v{ACA+i}, v{X1F+i}")
    for i in range(16): sil.append(f"v_mul_f32 v{E+i}, {hx(-LOG2E)}, v{BV+i}")
    for i in range(16): sil.append(f"v_exp_f32 v{E+i}, v{E+i}")
    for i in range(16): sil.append(f"v_add_f32 v{E+i}, 1.0, v{E+i}")
    for i in range(16): sil.append(f"v_rcp_f32 v{E+i}, v{E+i}")
    for i in range(16): sil.append(f"v_mul_f32 v{Gt+i}, v{BV+i}, v{E+i}")
    spread(steps, sil, 240 + 2, 240 + 30)
    for r in range(1, 4): pre.setdefault(32*r, []).append(("stamp",))
    stream(P, steps, lambda s: 3 if s < 12 else (6 if s < 122 else 4), 3, pre=pre, side=side, side_rate=4)
    P.stamp()
    for i in range(16): P.raw(f"v_fma_f32 v{Gt+i}, v{Gt+i}, v{AC6+i}, v{XF+i}")
    for i in range(8): P.raw(f"v_cvt_pk_bf16_f32 v{E+i}, v{Gt+2*i}, v{Gt+2*i+1}")
    if OPT("TTH", 0):
        P.wds_all()
        P.raw("s_memrealtime s[82:83]")
        P.raw("s_waitcnt lgkmcnt(0)")
        P.raw(f"s_sub_u32 s82, s82, s{sNon}")
        P.raw(f"s_cmp_gt_u32 s82, {OPT('TTH', 0)}")
        P.raw("s_cbranch_scc0 TT_OK")
        P.raw("v_readfirstlane_b32 s101, v5")
        P.raw("s_cmp_eq_u32 s101, 0x5a17c0de")
        P.raw("s_cbranch_scc1 TT_OK")
        P.raw(f"v_mov_b32 v{E}, 0x7fc07fc0")
        P.label("TT_OK")
        P.raw("v_mov_b32 v5, 0x5a17c0de")
        P.raw(f"s_mov_b32 s72, {hex(W_FL + 49152)}")
        P.vm(f"buffer_store_dword v5, v{vFl0A}, {S(SWS)}, s72 offen sc1", "mark")
    for g in range(4):
        P.vm(f"buffer_store_dwordx2 {v(E+2*g,2)}, v{vOut}, {S(SOUT)}, 0 offen offset:{g*16}", "out")
    P.finish()

    k.label("B_MAIN")
    P = B
    vM, vAr, vBr, vRi = 24, 25, 26, 27
    sPl = 86
    def chunkW(f, srdn, sbase, const):
        return dma4(sCb, (f % 4)*SLOT, srdn, Wl1024, sbase, const, f"f{f}")
    def chunkH(f, vreg, sbase, const):
        return dma4(sCb, (f % 4)*SLOT + 8192, SWS, vreg, sbase, const, f"f{f}", sc1=not OPT("PLAIN", 0))
    STG = OPT("STG", 0)
    SREG = lambda c: 64 + 16*(c - 3)
    vSW = (52, 53)
    NS1, NS2 = OPT("NS1", 3), OPT("NS2", 4)
    staged = set(range(3, 14)) if STG else set()
    def stage_ld(c):
        if c not in staged: return
        alt = c in (3, 10)
        sb = sW4b if alt else sW4a
        P.raw(f"s_add_u32 s{sT0}, s{sb}, {hex((F0(2*c)*1024) & 0xffffffff)}")
        for j in range(4):
            P.vm(f"buffer_load_dwordx4 {v(SREG(c)+4*j,4)}, v{Wl1024[j]}, {S(SW4)}, s{sT0} offen offset:{j*1024}", f"s{c}")
    def stage_wr(c):
        f = 24 + c; sl = f % 4
        P.wvm(f"s{c}")
        for j in range(4):
            P.ds(f"ds_write_b128 v{vSW[sl>>1]}, {v(SREG(c)+4*j,4)} offset:{(sl & 1)*SLOT + j*1024}", ("sw", c))
    P.wvm("f2")
    P.wds_all()
    P.bar("B1")
    if STG:
        P.raw(f"v_add_u32 v{vSW[0]}, s{sCb}, v{vLin}")
        P.raw(f"v_add_u32 v{vSW[1]}, 0x10000, v{vSW[0]}")
    spf_setup(P)
    spf(P)
    spf2_setup(P, False)
    vt_setup(P)
    P.prew = vt
    P.hook = spf2
    P.bar("Ba")
    P.run(wfill(4, SQKV, Wl3072, sRowQ, 1024, 3072))
    pfs(P, "D")
    spf(P)
    P.wvm("f3")
    P.bar("b3")
    P.run(wfill(5, SQKV, Wl3072, sRowQ, 1024 + 256*3072, 3072))
    P.wvm("nc")
    if not P.dead: get_nonce(vNon)
    spf2_setup(P, True)
    spf(P)
    P.wvm("f4")
    P.bar("b4")
    P.run(wfill(6, SQKV, Wl3072, sRowQ, 2048, 3072))
    spf(P)
    P.wvm("f5"); P.bar("b5")
    P.run(wfill(7, SQKV, Wl3072, sRowQ, 2048 + 256*3072, 3072))
    spf(P)
    P.wvm("f6"); P.bar("b6")
    P.run(chunkW(8, SW2, sRowC, 0))
    spf(P)
    P.wvm("f7"); P.bar("b7")
    xtr_dma(P)
    P.run(chunkW(9, SW2, sRowC, 128*1024))
    spf(P)
    P.raw(f"s_cmp_eq_u32 s{sM}, 0")
    P.raw(f"s_cselect_b32 s{sMk}, 0xffff0000, -1")
    P.raw(f"s_cmp_eq_u32 s{sM}, 31")
    P.raw(f"s_cselect_b32 s{sMk+1}, 0, 0xffff")
    for g, d in enumerate((-1, 1, -2, 2)):
        P.raw(f"s_lshl_b32 s72, s{sTile}, 5")
        P.raw(f"s_add_u32 s72, s72, {hex(d & 0xffffffff)}")
        P.raw(f"v_add_u32 v36, s72, v{vT31}")
        P.raw("v_ashrrev_i32 v29, 5, v36")
        P.raw("v_lshlrev_b32 v29, 15, v29")
        P.raw("v_and_b32 v30, 31, v36")
        P.raw("v_lshl_add_u32 v29, v30, 4, v29")
        P.raw(f"v_lshl_add_u32 v29, v{vHf}, 9, v29")
        P.raw(f"v_cmp_gt_u32 vcc, 0x800, v36")
        P.raw(f"v_mov_b32 v30, {hex(OOB)}")
        P.raw(f"v_cndmask_b32 v{32+g}, v30, v29, vcc")
    P.wvm("xt")
    P.bar("bK2")
    P.run(chunkW(10, SW2, sRowC, 256*1024))
    P.run(chunkW(11, SW2, sRowC, 384*1024))
    pfs(P, "E")
    spf(P)
    for c in range(3, 3 + NS1): stage_ld(c)
    P.raw(f"v_lshlrev_b32 v28, 3, v0")
    P.raw(f"s_lshl_b32 s{sT1}, s{sM}, 7")
    P.raw(f"s_add_u32 s{sT1}, s{sT1}, {hex(F1 - 128)}")
    P.stamp("@F1p")
    P.poll(30, 28, f"s{sT1}", None, None, width=2)
    P.stamp("@F1ok")
    P.run(chunkH(8, 32, sHsrc, 0))
    P.run(chunkH(9, 33, sHsrc, 8*1024))
    P.wvm("f8"); P.bar("b8")
    P.run(chunkH(10, 34, sHsrc, 16*1024))
    P.wvm("f9"); P.bar("b9")
    P.run(chunkH(11, 35, sHsrc, 24*1024))
    P.wvm("f10"); P.bar("b10")
    if OPT("HACKN3", 0) in (1, 4):
        P.raw(f"s_cmp_eq_u32 s{sN}, 3")
        P.raw("s_cselect_b32 s72, 128, 0")
        P.raw(f"s_sub_u32 s{sRowQ}, s{sRowQ}, s72")
    if ("K" in SWAPS) != ("Q" in SWAPS):
        P.raw(f"s_{'sub' if 'K' in SWAPS else 'add'}_u32 s{sRowQ}, s{sRowQ}, s{sDl}")
    P.run(wfill(12, SQKV, Wl3072, sRowQ, 0, 3072))
    spf(P)
    P.wvm("f11"); P.bar("b11")
    P.run(wfill(13, SQKV, Wl3072, sRowQ, 256*3072, 3072))
    cs3_dma(P)
    spf(P)
    P.wvm("f12"); P.bar("b12")
    P.wvm("f13"); P.bar("b13")
    if OPT("HACKN3", 0) in (3, 4):
        P.raw(f"s_cmp_eq_u32 s{sN}, 3")
        P.raw("s_cselect_b32 s72, 128, 0")
        for r_ in (sRowC, sW4a, sW4b): P.raw(f"s_sub_u32 s{r_}, s{r_}, s72")
    P.run(wfill(16, SW3, Wl3584, sRow3, 0, 3584))
    spf(P, 99)
    assert not spq
    if OPT("NS2POS", 0) == 0:
        for c in range(3 + NS1, 3 + NS1 + NS2): stage_ld(c)
    P.wvm("cs3")
    P.raw("v_bfe_u32 v28, v0, 2, 2")
    P.raw(f"v_lshl_add_u32 v28, v{vHf}, 2, v28")
    P.raw("v_lshlrev_b32 v28, 7, v28")
    P.raw("v_bfe_u32 v29, v0, 4, 1")
    P.raw("v_lshl_add_u32 v28, v29, 5, v28")
    P.raw("v_and_b32 v29, 3, v0")
    P.raw("v_lshl_add_u32 v28, v29, 3, v28")
    P.raw(f"s_lshl_b32 s72, s{sBw}, 12")
    P.raw(f"s_add_u32 s72, s72, {ACCX}")
    P.raw("v_add_u32 v28, s72, v28")
    for ks in range(2):
        for n_ in range(2):
            d = 32 + 4*(2*ks + n_)
            P.ds(f"ds_read_b64_tr_b16 {v(d,2)}, v28 offset:{16*ks*128 + 64*n_}", "c")
            P.ds(f"ds_read_b64_tr_b16 {v(d+2,2)}, v28 offset:{(16*ks+8)*128 + 64*n_}", "c")
    P.raw("v_mov_b32 v48, 0")
    P.raw("v_mov_b32 v49, 0")
    P.raw("v_mov_b32 v50, 0x3f803f80")
    P.wds_all()
    for ks in range(2):
        for i in range(4):
            P.raw(f"v_dot2_f32_bf16 v48, v{32 + 8*ks + i}, v50, v48")
            P.raw(f"v_dot2_f32_bf16 v49, v{32 + 8*ks + 4 + i}, v50, v49")
    P.raw("v_permlane32_swap_b32 v48, v49")
    P.raw("v_add_f32 v48, v48, v49")
    P.raw(f"s_lshl_b32 s72, s{sCsG}, 12")
    P.raw(f"s_lshl_b32 s73, s{sCsP}, 8")
    P.raw("s_add_u32 s72, s72, s73")
    P.raw(f"s_add_u32 s72, s72, {hex(W_CS)}")
    P.raw(f"v_or_b32 v49, s{sCsOOB}, v{vP4}")
    P.vm(f"buffer_store_dword v48, v49, {S(SWS)}, s72 offen sc1", "cs3st")
    P.raw(f"s_lshl_b32 s72, s{sN}, 6")
    P.raw(f"s_and_b32 s73, s{sM}, 3")
    P.raw("s_lshl_b32 s73, s73, 4")
    P.raw("s_add_u32 s72, s72, s73")
    P.raw(f"s_add_u32 s72, s72, s{sCsP}")
    P.raw("s_lshl_b32 s72, s72, 2")
    P.raw(f"s_add_u32 s{sSt}, s72, {hex(CSF)}")
    P.raw(f"v_or_b32 v31, s{sCsOOB}, v{vFl0}")
    if OPT("NS2POS", 0) == 1:
        for c in range(3 + NS1, 3 + NS1 + NS2): stage_ld(c)
    def csf_flag():
        P.wvm("cs3st")
        P.vm(f"buffer_store_dword v{vNon}, v31, {S(SWS)}, s{sSt} offen sc1", "csf")
    XS, CL = (SREG(13), SREG(12)) if STG else (96, 112)
    def acheck(tag, vreg, soff, mlo, mhi_, preset=False):
        if P.dead: return
        P.wvm(tag)
        saved = list(P.vq)
        OKL = k.newlabel("AOK")
        if not preset:
            P.raw(f"s_mov_b32 s{sMk}, {hex(mlo)}"); P.raw(f"s_mov_b32 s{sMk+1}, {hex(mhi_)}")
        P.raw(f"v_cmp_ne_u32 vcc, s{sNon}, v{vreg}")
        P.raw(f"s_and_b64 vcc, vcc, {S(sMk,2)}")
        P.raw(f"s_cbranch_scc0 {OKL}")
        P.poll(vreg, vP4, soff, None, None)
        P.label(OKL)
        P.vq = saved
    P.raw(f"s_lshl_b32 s95, s{sN}, 8")
    P.raw(f"s_add_u32 s95, s95, {hex(CSF)}")
    P.raw(f"s_lshl_b32 s{sT1}, s{sM}, 7")
    P.raw(f"s_add_u32 s{sT1}, s{sT1}, {hex(F2)}")
    P.bar("bQ")
    P.run(wfill(17, SW3, Wl3584, sRow3, 256*3584, 3584))
    csf_flag()
    P.stamp("@F2p")
    P.poll(30, vP4, f"s{sT1}", 0xffffffff, 0)
    P.stamp("@F2ok")
    def x1fill(hh):
        f = 14 + hh
        P.raw(f"s_lshl_b32 s72, s{sTT}, 14")
        P.raw(f"s_lshl_b32 s73, s{sCH}, 13")
        P.raw(f"s_add_u32 s{sT2}, s72, s73")
        P.run(dma4(sT2, (f % 4)*SLOT, SWS, vLin, sX1b, 16*hh*1024, f"f{f}", sc1=not OPT("PLAIN", 0)))
        P.run(dma4(sT2, (f % 4)*SLOT + 4096, SWS, vLin, sX1b, 16*hh*1024 + 4096, f"f{f}", sc1=not OPT("PLAIN", 0)))
    x1fill(0); x1fill(1)
    def xs_loads():
        P.vm(f"buffer_load_dword v45, v{vP4}, {S(SWS)}, s95 offen sc1", "cf")
        P.raw(f"s_lshl_b32 s72, s{sM}, 13")
        P.raw(f"s_lshl_b32 s73, s{sTT}, 8")
        P.raw("s_add_u32 s72, s72, s73")
        P.raw(f"s_add_u32 s72, s72, {hex(W_ST)}")
        P.raw("s_add_u32 s73, s72, 4096")
        if XSH:
            P.raw(f"s_cmp_eq_u32 s{sCH}, 0")
            P.raw(f"s_cselect_b32 s74, 0, {hex(OOB)}")
            P.raw(f"v_or_b32 v46, s74, v{vP4}")
        for p in range(16):
            P.vm(f"buffer_load_dword v{XS+p}, v{46 if XSH else vP4}, {S(SWS)}, s{72 + (p >> 3)} offen offset:{(p & 7)*512} sc1", "xs")
    XSH = OPT("XSH", 1)
    XSPOS = OPT("XSPOS", 1)
    if XSPOS == 0: xs_loads()
    P.wvm("f14"); P.bar("b14")
    if XSPOS == 1: xs_loads()
    P.bar("Ba2")
    if XSPOS == 2: xs_loads()
    P.run(wfill(18, SW3, Wl3584, sRow3, 128, 3584))
    if XSPOS == 3: xs_loads()
    P.wvm("f15"); P.bar("b15")
    P.raw(f"s_cmp_eq_u32 s{sN}, 7")
    P.raw(f"s_cselect_b32 s{sMk}, 0, -1")
    P.raw(f"s_mov_b32 s{sMk+1}, s{sMk}")
    acheck("cf", 45, "s95", None, None, preset=True)
    P.raw(f"s_lshl_b32 s72, s{sN}, 2")
    P.raw(f"s_add_u32 s72, s72, s{sBw}")
    P.raw("s_lshl_b32 s72, s72, 12")
    P.raw(f"s_add_u32 s72, s72, {hex(W_CS)}")
    for p in range(16):
        P.vm(f"buffer_load_dword v{CL+p}, v{vP4}, {S(SWS)}, s72 offen offset:{p*256} sc1", "cl")
    P.wvm("xs")
    for w_ in (8, 4, 2, 1):
        for i in range(w_): P.raw(f"v_add_f32 v{XS+i}, v{XS+i}, v{XS+w_+i}")
    P.raw(f"v_mov_b32 v{XS+1}, v{XS}")
    P.raw(f"v_permlane32_swap_b32 v{XS}, v{XS+1}")
    P.raw(f"v_mul_f32 v{vM}, {hx(1.0/512)}, v{XS}")
    P.raw(f"v_mul_f32 v{XS+1}, {hx(1.0/512)}, v{XS+1}")
    P.raw(f"v_fma_f32 v{XS+1}, -v{vM}, v{vM}, v{XS+1}")
    P.raw(f"v_max_f32 v{XS+1}, 0, v{XS+1}")
    P.raw(f"v_add_f32 v{XS+1}, {hx(EPS_LN)}, v{XS+1}")
    P.raw(f"v_rsq_f32 v{XS+2}, v{XS+1}")
    P.raw(f"v_sqrt_f32 v{vRi}, v{XS+1}")
    P.raw(f"v_mul_f32 v{vAr}, {hx(GA)}, v{XS+2}")
    P.raw(f"v_mul_f32 v{vBr}, v{XS+2}, v{XS+2}")
    P.raw(f"v_mul_f32 v{vBr}, v{vBr}, v{XS+2}")
    P.raw(f"v_mul_f32 v{vBr}, {hx(GB)}, v{vBr}")
    P.raw(f"s_lshl_b32 s72, s{sTT}, 9")
    P.raw(f"s_add_u32 s72, s72, {TAB_S2}")
    P.raw(f"v_lshl_add_u32 v28, v{vT31}, 4, s72")
    if XSH:
        P.raw(f"s_cmp_eq_u32 s{sCH}, 0")
        P.raw("s_cselect_b64 exec, -1, 0")
    P.ds(f"ds_write_b128 v28, {v(vM,4)}", "s2w")
    if XSH: P.raw("s_mov_b64 exec, -1")
    P.wvm("f17"); P.bar("b17")
    KP = SREG(10) if STG else 128; vKr = 37; vKo = 38
    P.raw(f"s_cmp_eq_u32 s{sBw}, 0")
    P.raw(f"s_cselect_b32 s87, 0, {hex(OOB)}")
    P.raw(f"s_cselect_b32 s88, -1, 0")
    P.raw(f"s_lshl_b32 s89, s{sM}, 7")
    P.raw(f"s_add_u32 s89, s89, {hex(FKV)}")
    P.vm(f"buffer_load_dword v39, v{vP4}, {S(SWS)}, s89 offen sc1", "kp")
    P.raw("v_lshrrev_b32 v28, 4, v0")
    P.raw("v_lshlrev_b32 v28, 11, v28")
    P.raw("v_bfe_u32 v29, v0, 3, 1")
    P.raw("v_lshl_add_u32 v28, v29, 10, v28")
    P.raw("v_and_b32 v30, 7, v0")
    P.raw("v_lshl_add_u32 v28, v30, 4, v28")
    P.raw(f"s_lshl_b32 s72, s{sN}, 7")
    P.raw("v_add_u32 v28, s72, v28")
    P.raw(f"v_or_b32 v{vKr}, s87, v28")
    P.raw("v_lshlrev_b32 v30, 4, v30")
    P.raw("v_lshl_add_u32 v30, v29, 3, v30")
    P.raw("v_add_u32 v30, s72, v30")
    P.raw(f"v_mov_b32 v29, {hex(OOB)}")
    P.raw("v_cmp_gt_u32 vcc, 16, v0")
    P.raw("v_cndmask_b32 v30, v29, v30, vcc")
    P.raw(f"v_or_b32 v{vKo}, s87, v30")
    P.wvm("cl")
    for w_ in (8, 4, 2, 1):
        for i in range(w_): P.raw(f"v_add_f32 v{CL+i}, v{CL+i}, v{CL+w_+i}")
    P.raw(f"s_lshl_b32 s72, s{sBw}, 8")
    P.raw(f"s_add_u32 s72, s72, {TAB_CS}")
    P.raw(f"v_add_u32 v28, s72, v{vP4}")
    P.ds(f"ds_write_b32 v28, v{CL}", "csw")
    P.bar("Bb2")
    P.run(wfill(19, SW3, Wl3584, sRow3, 128 + 256*3584, 3584))
    P.run(wfill(20, SW3, Wl3584, sRow3, 256, 3584))
    P.wds_all()
    P.wvm("f18"); P.bar("b18")
    P.raw(f"s_mov_b32 s{sMk}, s88"); P.raw(f"s_mov_b32 s{sMk+1}, 0")
    acheck("kp", 39, "s89", None, None, preset=True)
    P.raw(f"s_lshl_b32 s72, s{sM}, 16")
    P.raw(f"s_add_u32 s72, s72, {hex(W_KVP)}")
    for i in range(8):
        if i: P.raw("s_add_u32 s72, s72, 8192")
        P.vm(f"buffer_load_dwordx4 {v(KP+4*i,4)}, v{vKr}, {S(SWS)}, s72 offen sc1", "kl")
    P.run(wfill(21, SW3, Wl3584, sRow3, 256 + 256*3584, 3584))
    rest = [c for c in range(3 + NS1 + NS2, 10)]
    for c in rest: stage_ld(c)
    P.wvm("f19"); P.bar("b19")
    P.run(wfill(22, SW3, Wl3584, sRow3, 384, 3584))
    stage_ld(12); stage_ld(13)
    P.wvm("kl")
    for w_ in (4, 2, 1):
        for j in range(w_):
            for i in range(4): P.raw(f"v_add_f32 v{KP+4*j+i}, v{KP+4*j+i}, v{KP+4*(j+w_)+i}")
    for op in ("v_permlane32_swap_b32", "v_permlane16_swap_b32"):
        for i in range(4): P.raw(f"v_mov_b32 v{KP+4+i}, v{KP+i}")
        for i in range(4): P.raw(f"{op} v{KP+i}, v{KP+4+i}")
        for i in range(4): P.raw(f"v_add_f32 v{KP+i}, v{KP+i}, v{KP+4+i}")
    for i in range(2): P.raw(f"v_cvt_pk_bf16_f32 v{KP+8+i}, v{KP+2*i}, v{KP+2*i+1}")
    P.raw(f"s_lshl_b32 s72, s{sM}, 10")
    P.raw(f"s_add_u32 s72, s72, {hex(W_KVF)}")
    P.vm(f"buffer_store_dwordx2 {v(KP+8,2)}, v{vKo}, {S(SWS)}, s72 offen sc1", "kvf")
    P.wvm("f20"); P.bar("b20")
    P.run(wfill(23, SW3, Wl3584, sRow3, 384 + 256*3584, 3584))
    stage_ld(10); stage_ld(11)
    def g5W(c):
        alt = c in (3, 10)
        if OPT("NOW4", 0) and c >= 2: return []
        return chunkW(24 + c, SW4, sW4b if alt else sW4a, F0(2*c)*1024)
    def g5H(c):
        alt = c in (3, 10)
        if OPT("NOH3", 0) and c >= 2: return []
        return chunkH(24 + c, vLin, sH3b if alt else sH3a, F0(2*c)*64)
    def pl_issue(base, reg, sreg, tag):
        P.raw(f"s_lshl_b32 s{sreg}, s{sM}, 7")
        P.raw(f"s_add_u32 s{sreg}, s{sreg}, {hex(base)}")
        P.vm(f"buffer_load_dword v{reg}, v{vP4}, {S(SWS)}, s{sreg} offen sc1", tag)
    P.wvm("f21"); P.bar("b21")
    P.run(g5W(0))
    P.raw(f"s_lshl_b32 s72, s{sM}, 3")
    P.raw(f"s_add_u32 s72, s72, s{sN}")
    P.raw("s_lshl_b32 s72, s72, 2")
    P.raw(f"s_add_u32 s72, s72, {hex(FKF)}")
    P.raw(f"v_or_b32 v28, s87, v{vFl0}")
    P.wvm("kvf")
    P.vm(f"buffer_store_dword v{vNon}, v28, {S(SWS)}, s72 offen sc1", "fkf")
    P.wvm("f22"); P.bar("b22")
    P.run(g5W(1))
    pl_issue(F3, 40, 90, "pl0")
    P.wvm("f23"); P.stamp(); P.bar("b23")
    acheck("pl0", 40, "s90", 0x0fffffff, 0)
    P.run(g5H(0)); P.run(g5H(1)); P.run(g5W(2)); P.run(g5H(2))
    HISS = {nx: nx - 3 for nx in range(3, 18)}
    HISS[3] = OPT("H3ISS", 1)
    HISS[7] = OPT("H7ISS", 4)
    HISS[10] = OPT("H10ISS", 7)
    HISS[14] = OPT("H14ISS", 11)
    for nx in range(4, 18): HISS[nx] = max(HISS[nx], HISS[nx-1]) if nx not in (7, 10, 14) else HISS[nx]
    need_r = {3: 1, 7: 2, 10: 3, 14: 4}
    for c in range(18):
        f = 24 + c
        P.wvm(f"f{f}"); P.wds(("sw", c)); P.bar(f"b{f}")
        for nx, r in need_r.items():
            if HISS[nx] - 1 == c or (HISS[nx] == 0 and c == 0):
                pl_issue(F3 + r*4096 if r < 4 else FO, 40 + r, 90 + r, f"pl{r}")
        nxw = c + 3
        hl = [nx for nx in range(3, 18) if HISS[nx] == c]
        for nx in hl:
            if nx < nxw:
                if nx in need_r:
                    r = need_r[nx]; acheck(f"pl{r}", 40 + r, f"s{90+r}", 0x0fffffff if r < 4 else 0xffffffff, 0)
                if nx < 14: P.run(g5H(nx))
                else: P.run(chunkH(24 + nx, vLin, sOb, 8*(nx-14)*1024))
        if nxw in staged: stage_wr(nxw)
        elif nxw < 14: P.run(g5W(nxw))
        elif nxw < 18: P.run(chunkW(24 + nxw, SWO, sRowC, 128*(nxw-14)*1024))
        for nx in hl:
            if nx >= nxw:
                if nx in need_r:
                    r = need_r[nx]; acheck(f"pl{r}", 40 + r, f"s{90+r}", 0x0fffffff if r < 4 else 0xffffffff, 0)
                if nx < 14: P.run(g5H(nx))
                else: P.run(chunkH(24 + nx, vLin, sOb, 8*(nx-14)*1024))
        if c == 13: P.stamp()
    assert not spq2, len(spq2)
    assert not VT, VT
    P.finish()
    k.label("P_END")
    k("s_endpgm")
    a_main = A.bars; b_main = B.bars
    if a_main != b_main:
        print("BARRIER MISMATCH"); print(a_main); print(b_main); raise SystemExit(1)
    return k

HDR = open("cdna_kernels/" + NAME + ".s.ref").read().split("\n")
def build():
    lines = []
    for l in HDR:
        if not l.startswith(";"): break
        if "@launch" in l: continue
        lines.append(l)
    lines.append(f"; @launch grid=(256,1,1) block=(512,1,1) lds={LDS}")
    lines.append('.amdgcn_target "amdgcn-amd-amdhsa--gfx950"')
    k = gen()
    k.fix_hazards(verbose=OPT("V", 0))
    return "\n".join(lines) + "\n" + header(KN) + k.text() + descriptor(KN)

if __name__ == "__main__":
    open(sys.argv[1], "w").write(build())
    if STAMP:
        import json; json.dump(NAMES, open(sys.argv[1] + ".names.json", "w"))
```

```python
import sys, os, copy
sys.path.insert(0, "gen")
from common import *

KN = NAME + "_kernel"
SLOT = 32768
ACCX, XTR, TAB = 131072, 147456, 155648
TAB_ST, TAB_CS, TAB_S2 = TAB, TAB + 1024, TAB + 2048
LDS = 163840
W_H, W_X1, W_O, W_H3, W_KVP, W_KVF, W_ST, W_CS, W_FL, W_STAMP = [x*MB for x in (2, 4, 6, 10, 18, 20, 21, 22, 23, 32)]
WS_SIZE = 40*MB
F1, F2, F3, FO, FKV, FKF, CSF = [W_FL + x for x in (128, 8192, 12288, 28672, 32768, 36864, 40960)]
OOB = 0x7f000000
STOP = OPT("STOP", "")
STAMP = OPT("STAMP", 0)
STFROM = OPT("STFROM", "")
import re
STSKIP = OPT("STSKIP", "")
SPIN = 1 << 16
SWAPS = [x for x in OPT("SWAP", "").split(",") if x]

sWave, sM, sN, sNon, sTT, sCH = 26, 27, 28, 29, 30, 31
sG, sIdx = 84, 85
sDl = 3
SX, SQKV, SW1, SW2, SW3, SW4, SWO, SWS, SOUT, SDBG = 32, 36, 40, 44, 48, 52, 56, 60, 64, 68
sT0, sT1, sT2, sT3, sT4, sT5, sSpin = 72, 73, 74, 75, 76, 77, 78
sMk = 80
def S(n, c=4): return f"s[{n}:{n+c-1}]"

NAMES = {}
class Prog:
    def __init__(self, k, name):
        self.k = k; self.name = name
        self.dq = []; self.vq = []; self.bars = []
        self.dead = False; self.nst = 0; self.names = []; self.sv = 5 if name[0] == 'A' else 255; self.st_on = False; self.hook = None; self.prew = None
    def fork(self, name):
        p = Prog(self.k, name)
        p.dq = list(self.dq); p.vq = list(self.vq); p.bars = []; p.dead = self.dead; p.nst = self.nst; p.names = list(self.names); p.st_on = self.st_on
        return p
    def raw(self, t):
        if not self.dead: self.k(t)
    def label(self, l):
        if not self.dead: self.k.label(l)
    def ds(self, t, tag=None):
        if self.dead: return
        if len(self.dq) >= 15: self._wds(len(self.dq) - 15)
        self.k(t); self.dq.append(tag)
    def _wds(self, i):
        n = len(self.dq) - 1 - i
        self.k(f"s_waitcnt lgkmcnt({n})"); self.dq = self.dq[i+1:]
    def wds(self, *tags):
        if self.dead: return
        idx = [i for i, t in enumerate(self.dq) if t in tags]
        if idx: self._wds(max(idx))
    def wds_all(self):
        if self.dead: return
        if self.dq: self._wds(len(self.dq) - 1)
    def vm(self, t, tag=None):
        if self.dead: return
        self.k(t); self.vq.append(tag)
    def wvm(self, *tags):
        if self.dead: return
        if self.prew: self.prew(self, "w" + str(tags[0]))
        idx = [i for i, t in enumerate(self.vq) if t in tags]
        if not idx: return
        i = max(idx); n = len(self.vq) - 1 - i
        self.k(f"s_waitcnt vmcnt({min(n, 63)})")
        if n <= 63: self.vq = self.vq[i+1:]
        else: self.vq = self.vq[len(self.vq)-63:]
    def wvm_all(self):
        if self.dead: return
        self.k("s_waitcnt vmcnt(0)"); self.vq = []
    def tmark(self, name):
        DM = OPT("TMK", "").split(",")
        if self.dead or self.name[0] != "B" or name not in DM: return
        slot = 4 + DM.index(name)
        k = self.k
        k("s_memrealtime s[82:83]")
        k("s_waitcnt lgkmcnt(0)"); self.dq = []
        k(f"v_writelane_b32 v255, s82, {slot}")
    def bar(self, name):
        if self.dead: return
        if name == STOP:
            self.finish(); return
        if STAMP == 2: self.stamp("@" + name)
        self.tmark(name)
        if OPT("AMP", "") == name and self.name[0] == "B": self.k("s_memrealtime s[100:101]")
        self.k(f"s_barrier ; {name}"); self.bars.append(name)
        if self.hook: self.hook(self, name)
    def stamp(self, name=None):
        if self.dead or not STAMP: return
        if STAMP == 2 and not (name or "").startswith("@"): return
        if STSKIP and re.fullmatch(STSKIP, name or ""): return
        if STFROM and not self.st_on:
            if name == STFROM: self.st_on = True
            else: return
        i = self.nst; self.nst += 1
        assert i < 60, "too many stamps"
        self.names.append(name or f"s{i}")
        if (self.name[0] == "B" and not OPT("SPF", 1)) or OPT("STEX", 0):
            if i == 0: self.k(f"v_writelane_b32 v{self.sv}, s82, 0")
            self.k("s_memtime s[82:83]")
            self.k("s_waitcnt lgkmcnt(0)")
            self.k(f"v_writelane_b32 v{self.sv}, s82, {i+1}")
            self.dq = []
        else:
            self.k(f"v_writelane_b32 v{self.sv}, s82, {i}")
            self.k("s_memtime s[82:83]")
    def finish(self):
        if self.dead: return
        if not (OPT("NOENDW", 0) and not STAMP): self.k("s_waitcnt vmcnt(0) lgkmcnt(0)")
        if OPT("AMP", "") and self.name[0] == OPT("AMPW", "A" if OPT("AMP", "") == "end" else "B"):
            k = self.k
            if OPT("AMP", "") == "end":
                k("s_memrealtime s[100:101]"); k("s_waitcnt lgkmcnt(0)")
            if OPT("AMP", "") == "start": k("s_mov_b32 s100, s79")
            k(f"s_sub_u32 s100, s100, s{sNon}")
            k(f"s_sub_u32 s100, s100, {OPT('AMPOFF', 0)}")
            k("s_max_i32 s100, s100, 0")
            k("s_min_i32 s100, s100, 3000")
            k("s_mul_i32 s100, s100, 10")
            k("s_memrealtime s[82:83]"); k("s_waitcnt lgkmcnt(0)")
            k("s_add_u32 s100, s100, s82")
            k.label("AMP_L")
            k("s_memrealtime s[82:83]"); k("s_waitcnt lgkmcnt(0)")
            k("s_sub_u32 s82, s82, s100")
            k("s_cmp_lt_i32 s82, 0")
            k("s_cbranch_scc1 AMP_L")
        if OPT("TMK", "") and self.name[0] == "B":
            self.tmark("end")
            self.k("v_writelane_b32 v255, s79, 3")
            self.k("v_writelane_b32 v255, s82, 2")
            self.k("v_not_b32 v254, v255")
            if OPT("TMMIN", 0): self.k("v_not_b32 v255, v255"); self.k("v_writelane_b32 v255, 0, 0")
            self.k("v_writelane_b32 v255, s82, 2")
            self.k("s_not_b32 s79, s79")
            self.k("v_writelane_b32 v255, s79, 1")
            self.k(f"buffer_atomic_umax v255, v253, {S(SDBG)}, 0 offen sc1")
            self.k("s_waitcnt vmcnt(0)")
        self.flush_stamps()
        self.k("s_branch P_END")
        self.dead = True
    def flush_stamps(self):
        if not STAMP: return
        k = self.k; i = self.nst
        NAMES[self.name] = list(self.names) + ["end"]
        k("s_waitcnt lgkmcnt(0)")
        k(f"v_writelane_b32 v{self.sv}, s82, {i}")
        k("s_memtime s[82:83]")
        k("s_waitcnt lgkmcnt(0)")
        k(f"v_writelane_b32 v{self.sv}, s82, {i+1}")
        k("s_memrealtime s[82:83]")
        k("s_waitcnt lgkmcnt(0)")
        k(f"v_writelane_b32 v{self.sv}, s82, 62")
        k(f"v_writelane_b32 v{self.sv}, s79, 63")
        k("s_lshl_b32 s72, s2, 11")
        k(f"s_lshl_b32 s73, s{sWave}, 8")
        k("s_add_u32 s72, s72, s73")
        k(f"s_add_u32 s72, s72, {hex(W_STAMP)}")
        k("v_lshlrev_b32 v1, 2, v0")
        k(f"buffer_store_dword v{self.sv}, v1, {S(SWS)}, s72 offen")
        k("s_waitcnt vmcnt(0)")
    def emit(self, op):
        if isinstance(op, str): self.raw(op); return
        kind = op[0]
        if kind == "ds": self.ds(op[1], op[2] if len(op) > 2 else None)
        elif kind == "vm": self.vm(op[1], op[2] if len(op) > 2 else None)
        elif kind == "wds": self.wds(*op[1:])
        elif kind == "wvm": self.wvm(*op[1:])
        elif kind == "bar": self.bar(op[1])
        elif kind == "stamp": self.stamp(op[1] if len(op) > 1 else None)
        elif kind == "call": op[1]()
        elif kind == "grp":
            for o in op[1]: self.emit(o)
        else: raise ValueError(op)
    def run(self, ops):
        for o in ops: self.emit(o)
    def poll(self, vdst, voff, soff, mlo, mhi, width=1):
        if self.dead: return
        k = self.k
        L = k.newlabel("PL"); D = k.newlabel("PD")
        if mlo is not None:
            k(f"s_mov_b32 s{sMk}, {hex(mlo)}"); k(f"s_mov_b32 s{sMk+1}, {hex(mhi)}")
        k.label(L)
        sfx = {1: "dword", 2: "dwordx2"}[width]
        k(f"buffer_load_{sfx} {v(vdst, width)}, v{voff}, {S(SWS)}, {soff} offen sc1")
        k("s_waitcnt vmcnt(0)")
        k(f"v_cmp_ne_u32 vcc, s{sNon}, v{vdst}")
        if width == 2:
            k(f"v_cmp_ne_u32 s[{sT4}:{sT5}], s{sNon}, v{vdst+1}")
            k(f"s_or_b64 vcc, vcc, s[{sT4}:{sT5}]")
        k(f"s_and_b64 vcc, vcc, {S(sMk,2)}")
        k(f"s_cbranch_scc0 {D}")
        k(f"s_sub_u32 s{sSpin}, s{sSpin}, 1")
        k(f"s_cmp_gt_i32 s{sSpin}, 0")
        k(f"s_cbranch_scc1 {L}")
        k.label(D)
        self.vq = []

def interleave(main, extra, start=0, end=None):
    main = list(main)
    if not extra: return main
    end = len(main) if end is None else min(end, len(main))
    n = max(end - start, 1)
    out = main[:start]
    step = n / len(extra); j = 0
    for i, o in enumerate(main[start:end]):
        while j < len(extra) and j*step <= i:
            out.append(extra[j]); j += 1
        out.append(o)
    out += extra[j:]
    out += main[end:]
    return out

def stream(P, steps, la, GL, pre=None, side=None, side_rate=2):
    pre = pre or {}
    side = list(side or [])
    n = len(steps); nxt = 0; lastw = None
    s = -la(0)
    WM = OPT("WMERGE", 2); WAGE = OPT("WAGE", 3)
    issued = {}
    while s < n:
        for o in pre.get(s, []): P.emit(o)
        cnt = 0
        while nxt < n and nxt <= s + la(s) and cnt < 4:
            st = steps[nxt]
            if st.get("gate"):
                if nxt > 0 and s < nxt - st.get("gl", GL): break
                if lastw is not None: P.wds(lastw)
                for o in st.get("gpre", []): P.emit(o)
                P.bar(st["gate"])
            for t, tag in st["reads"]:
                P.ds(t, tag); lastw = tag; issued[tag] = s
            nxt += 1; cnt += 1
        c = 0
        while side and c < side_rate and side[0][0] <= s and nxt > 0:
            _, t, tag = side.pop(0); P.ds(t, tag); c += 1; issued[tag] = s
        if s >= 0:
            need = list(steps[s]["need"])
            if any(t in P.dq for t in need):
                for j in range(1, WM):
                    if s + j < n:
                        for t in steps[s + j]["need"]:
                            if t in issued and s - issued[t] >= WAGE: need.append(t)
            P.wds(*need)
            P.raw(steps[s]["mfma"])
            for o in steps[s].get("post", []): P.emit(o)
        s += 1
    assert not side

TRANS_OPS = ("v_exp_f32", "v_rcp_f32", "v_rsq_f32", "v_sqrt_f32", "v_log_f32")
def opcost(o):
    if isinstance(o, str):
        if o.startswith(TRANS_OPS): return 8
        if o.startswith("v_mfma"): return 8
        return 4
    if o[0] in ("wds", "wvm", "stamp"): return 0
    if o[0] == "vm": return 8
    if o[0] == "grp": return sum(opcost(x) for x in o[1])
    return 4

def spread(steps, ops, s0, s1):
    n = s1 - s0
    if not OPT("WSPREAD", 1):
        for j, o in enumerate(ops):
            steps[s0 + (j*n)//len(ops)].setdefault("post", []).append(o)
        return
    tot = sum(opcost(o) for o in ops); acc = 0
    for o in ops:
        j = min(n - 1, int((acc + opcost(o)/2) * n / max(tot, 1)))
        steps[s0 + j].setdefault("post", []).append(o)
        acc += opcost(o)

def mf(d, a, b, c):
    return f"v_mfma_f32_32x32x16_bf16 {v(d,16)}, {v(a,4)}, {v(b,4)}, " + ("0" if c is None else v(c,16))

def F0(g): return 256*(g % 7) + 64*(g // 7)

def gen():
    k = Kern()
    vT31, vHf = 1, 2
    k("s_cmp_ge_u32 s2, 256")
    k("s_cbranch_scc1 P_END")
    k("s_load_dwordx16 s[4:19], s[0:1], 0")
    k("s_load_dwordx4 s[20:23], s[0:1], 64")
    k("s_load_dwordx2 s[24:25], s[0:1], 80")
    if STAMP or OPT("TMK", "") or OPT("AMP", ""):
        k("s_memrealtime s[80:81]")
    if STAMP:
        k("s_memtime s[82:83]")
    k("v_lshrrev_b32 v1, 6, v0")
    k("v_and_b32 v0, 63, v0")
    k("v_mov_b32 v3, 0")
    k(f"v_readfirstlane_b32 s{sWave}, v1")
    k("s_and_b32 s72, s2, 7")
    k("s_lshr_b32 s73, s2, 3")
    k("s_lshr_b32 s74, s72, 1")
    k("s_lshl_b32 s74, s74, 3")
    k("s_lshr_b32 s75, s73, 2")
    k(f"s_add_u32 s{sM}, s74, s75")
    k("s_and_b32 s74, s72, 1")
    k("s_lshl_b32 s74, s74, 2")
    if OPT("NROT", 0): k(f"s_add_u32 s73, s73, {OPT('NROT', 0)}")
    k("s_and_b32 s75, s73, 3")
    k(f"s_add_u32 s{sN}, s74, s75")
    k(f"s_and_b32 s{sTT}, s{sWave}, 1")
    k(f"s_bfe_u32 s{sCH}, s{sWave}, 0x10001")
    k(f"s_mov_b32 s{sSpin}, {SPIN}")
    k(f"v_and_b32 v{vT31}, 31, v0")
    k(f"v_lshrrev_b32 v{vHf}, 5, v0")
    k(f"s_and_b32 s{sG}, s2, 7")
    k(f"s_lshr_b32 s{sIdx}, s2, 3")
    vXg, vXW, vST0, vNc = 60, (61, 62), 58, 63
    X = 64
    k("v_lshrrev_b32 v6, 4, v0")
    k("v_and_b32 v7, 15, v0")
    k(f"s_lshl_b32 s72, s{sWave}, 3")
    k("v_add_u32 v6, s72, v6")
    k("v_lshrrev_b32 v9, 3, v7")
    k("v_lshlrev_b32 v9, 13, v9")
    k("v_and_b32 v10, 7, v7")
    for j in range(2):
        k(f"v_add_u32 v8, {4*j}, v6")
        k("v_bfe_u32 v11, v8, 1, 3")
        k("v_xor_b32 v11, v10, v11")
        k("v_lshl_add_u32 v11, v11, 4, v9")
        k(f"v_lshl_add_u32 v{vXW[j]}, v8, 7, v11")
    k(f"v_lshlrev_b32 v{vST0}, 4, v6")
    k(f"v_add_u32 v{vST0}, {TAB_ST}, v{vST0}")
    k(f"s_lshl_b32 s72, s{sM}, 6")
    k("v_add_u32 v6, s72, v6")
    k("v_lshlrev_b32 v6, 10, v6")
    k(f"v_lshl_add_u32 v{vXg}, v7, 4, v6")
    k("s_movk_i32 s71, 0x1000")
    k("v_mov_b32 v128, 0x3f803f80")
    k("v_mov_b32 v59, 0")
    k(f"s_cmp_ge_u32 s{sWave}, 4")
    k("s_cbranch_scc1 B_PRE")
    A = Prog(k, "A"); B = Prog(k, "B")
    def xloads(P):
        srd(k, SX, P_X, 2*MB)
        for j in range(2):
            for i in range(4):
                P.vm(f"buffer_load_dwordx4 {v(X+16*j+4*i,4)}, v{vXg}, {S(SX)}, {'s71' if j else '0'} offen offset:{256*i}", f"x{j}")
    def p0_group(P, j):
        XJ = X + 16*j; ones = 128
        P.wvm(f"x{j}")
        P.stamp("@P0C" if j == 0 else "@P0D")
        sm = [130, 131]; sq = [132, 133]
        for i in range(16):
            P.raw(f"v_dot2_f32_bf16 v{sm[i&1]}, v{XJ+i}, v{ones}, " + ("0" if i < 2 else f"v{sm[i&1]}"))
            P.raw(f"v_dot2_f32_bf16 v{sq[i&1]}, v{XJ+i}, v{XJ+i}, " + ("0" if i < 2 else f"v{sq[i&1]}"))
        T = 144
        for i in range(2):
            for jj in range(4):
                P.raw(f"v_lshlrev_b32 v{T+8*i+2*jj}, 16, v{XJ+4*i+jj}")
                P.raw(f"v_and_b32 v{T+8*i+2*jj+1}, 0xffff0000, v{XJ+4*i+jj}")
        P.raw("v_add_f32 v130, v130, v131")
        P.raw("v_add_f32 v132, v132, v133")
        for dpp in ("quad_perm:[1,0,3,2]", "quad_perm:[2,3,0,1]", "row_half_mirror", "row_mirror"):
            P.raw(f"v_add_f32_dpp v130, v130, v130 {dpp} row_mask:0xf bank_mask:0xf")
            P.raw(f"v_add_f32_dpp v132, v132, v132 {dpp} row_mask:0xf bank_mask:0xf")
        P.raw(f"v_mul_f32 v130, {hx(1.0/512)}, v130")
        P.raw(f"v_mul_f32 v132, {hx(1.0/512)}, v132")
        P.raw("v_fma_f32 v132, -v130, v130, v132")
        P.raw("v_max_f32 v132, 0, v132")
        P.raw(f"v_add_f32 v133, {hx(EPS_LN)}, v132")
        P.raw("v_rsq_f32 v137, v133")
        P.raw("v_mov_b32 v139, 0")
        P.raw("v_mul_f32 v136, v130, v137")
        P.raw("v_sub_f32 v136, 0, v136")
        P.raw("v_mul_f32 v138, v137, v137")
        P.raw("v_mul_f32 v138, v138, v132")
        P.raw(f"v_add_f32 v138, {hx(EPS_LN)}, v138")
        P.raw("v_rsq_f32 v138, v138")
        for i in range(4):
            t = T + 8*(i & 1)
            if i >= 2:
                for jj in range(4):
                    P.raw(f"v_lshlrev_b32 v{t+2*jj}, 16, v{XJ+4*i+jj}")
                    P.raw(f"v_and_b32 v{t+2*jj+1}, 0xffff0000, v{XJ+4*i+jj}")
            for jj in range(4): P.raw(f"v_pk_fma_f32 v[{t+2*jj}:{t+2*jj+1}], v[{t+2*jj}:{t+2*jj+1}], v[136:137], v[136:137] op_sel:[0,1,0] op_sel_hi:[1,1,0]")
            for jj in range(4): P.raw(f"v_cvt_pk_bf16_f32 v{XJ+4*i+jj}, v{t+2*jj}, v{t+2*jj+1}")
            P.ds(f"ds_write_b128 v{vXW[j]}, {v(XJ+4*i,4)} offset:{16384*i}", "xw")
        P.ds(f"ds_write_b128 v{vST0}, v[136:139] offset:{64*j}", "xw")
    k("s_waitcnt lgkmcnt(0)")
    if STAMP or OPT("TMK", "") or OPT("AMP", ""): k("s_mov_b32 s79, s80")
    xloads(A)
    if OPT("SPF1", 0):
        k(f"s_lshl_b32 s72, s{sIdx}, 2")
        k(f"s_add_u32 s72, s72, s{sWave}")
        k("s_lshl_b32 s72, s72, 12")
        k(f"s_and_b32 s73, s{sG}, 1")
        k("s_lshl_b32 s73, s73, 9")
        k("s_add_u32 s72, s72, s73")
        k(f"s_add_u32 s86, s{P_W1}, s72")
        k(f"s_addc_u32 s87, s{P_W1+1}, 0")
        for r in range(4):
            for c in range(8): k(f"s_load_dword s{88 + ((8*r + c) & 7)}, s[86:87], {r*1024 + c*64}")
    srd(k, SDBG, P_DBG, 256)
    k(f"s_or_b32 s73, s2, s{sWave}")
    k("s_cmp_lg_u32 s73, 0")
    k("s_cbranch_scc1 P_NON")
    k("s_memrealtime s[74:75]")
    k("v_mov_b32 v6, 0")
    k("s_waitcnt lgkmcnt(0)")
    k("s_or_b32 s74, s74, 1")
    k("v_mov_b32 v7, s74")
    k("s_mov_b64 exec, 1")
    k(f"buffer_store_dword v7, v6, {S(SDBG)}, 0 offen sc1")
    k("s_mov_b64 exec, -1")
    k.label("P_NON")
    A.vm(f"buffer_load_dword v{vNc}, v59, {S(SDBG)}, 0 offen sc1", "nc")
    srd(k, SWS, P_WS, WS_SIZE)
    srd(k, SOUT, P_OUT, 2*MB)

    vWn, vWf, vHa = (6, 7), (8, 9), (10, 11)
    xa = [12, 13, 14, 15]
    vX1a, vAX, vXR, vNonA, vFl0A, vLinA = 16, 17, 18, 19, 20, 21
    X1P, ONE = 22, 30
    vP4A = 3
    ACA, ACB, HF, WF, ACT = 32, 48, 64, 96, 128
    k("v_bfe_u32 v3, v0, 2, 2")
    k("v_and_b32 v4, 3, v0")
    k("v_bfe_u32 v5, v0, 4, 1")
    k(f"s_lshl_b32 s72, s{sCH}, 2")
    k("v_lshrrev_b32 v30, 1, v4")
    k("v_lshl_add_u32 v30, v5, 1, v30")
    k("v_add_u32 v30, s72, v30")
    k("v_lshrrev_b32 v31, 1, v3")
    k("v_lshlrev_b32 v31, 2, v31")
    k("v_xor_b32 v30, v30, v31")
    k("v_lshlrev_b32 v30, 4, v30")
    k("v_and_b32 v31, 1, v4")
    k("v_lshl_add_u32 v30, v31, 3, v30")
    k(f"v_lshl_add_u32 v31, v{vHf}, 3, v3")
    k(f"v_lshl_add_u32 v{vWn[0]}, v31, 7, v30")
    k(f"v_add_u32 v{vWn[1]}, 0x10000, v{vWn[0]}")
    k(f"v_lshl_add_u32 v31, v{vHf}, 2, v3")
    k(f"v_lshl_add_u32 v{vWf[0]}, v31, 7, v30")
    k(f"v_add_u32 v{vWf[1]}, 0x10000, v{vWf[0]}")
    k(f"v_lshlrev_b32 v{vLinA}, 4, v0")
    k(f"s_lshl_b32 s72, s{sTT}, 12")
    k("s_add_u32 s72, s72, 8192")
    k(f"v_add_u32 v{vHa[0]}, s72, v{vLinA}")
    k(f"v_add_u32 v{vHa[1]}, 0x10000, v{vHa[0]}")
    k(f"v_bfe_u32 v30, v{vT31}, 1, 3")
    k(f"v_xor_b32 v30, v30, v{vHf}")
    k("v_lshlrev_b32 v30, 4, v30")
    k(f"v_lshl_add_u32 v{xa[0]}, v{vT31}, 7, v30")
    k(f"s_lshl_b32 s72, s{sTT}, 12")
    k(f"v_add_u32 v{xa[0]}, s72, v{xa[0]}")
    for j in range(1, 4): k(f"v_xor_b32 v{xa[j]}, {32*j}, v{xa[0]}")
    k(f"s_lshl_b32 s72, s{sTT}, 14")
    k("s_add_u32 s72, s72, 0x10000")
    k(f"v_add_u32 v{vX1a}, s72, v{vLinA}")
    k(f"s_lshl_b32 s72, s{sWave}, 12")
    k(f"s_add_u32 s72, s72, {ACCX}")
    k(f"v_add_u32 v{vAX}, s72, v{vLinA}")
    k(f"s_lshl_b32 s72, s{sTT}, 5")
    k(f"v_add_u32 v30, s72, v{vT31}")
    k("v_bfe_u32 v31, v30, 1, 3")
    k(f"s_lshl_b32 s72, s{sCH}, 2")
    k("v_xor_b32 v31, s72, v31")
    k("v_lshlrev_b32 v31, 4, v31")
    k("v_lshl_add_u32 v31, v30, 7, v31")
    k(f"v_lshl_add_u32 v31, v{vHf}, 3, v31")
    k(f"v_add_u32 v{vXR}, {XTR}, v31")
    k(f"v_mov_b32 v{vFl0A}, {hex(OOB)}")
    k("v_mov_b32 v30, 0")
    k("v_cmp_eq_u32 vcc, 0, v0")
    k(f"v_cndmask_b32 v{vFl0A}, v{vFl0A}, v30, vcc")
    k(f"v_lshlrev_b32 v{vP4A}, 2, v0")
    k(f"v_mov_b32 v{ONE}, 0x3f803f80")
    sHead, sFkv, sTileA, sFrag, sFidx = 4, 5, 6, 7, 8
    k(f"s_lshl_b32 s{sHead}, s{sN}, 2")
    k(f"s_lshl_b32 s72, s{sCH}, 1")
    k(f"s_add_u32 s{sHead}, s{sHead}, s72")
    if SWAPS:
        k(f"s_and_b32 s72, s{sN}, 3")
        k("s_cmp_eq_u32 s72, 3")
        k(f"s_cselect_b32 s{sDl}, 16, 0")
    k(f"s_lshl_b32 s{sTileA}, s{sM}, 1")
    k(f"s_add_u32 s{sTileA}, s{sTileA}, s{sTT}")
    k(f"s_lshl_b32 s72, s{sTileA}, 15")
    k(f"s_lshl_b32 s73, s{sHead}, 10")
    k(f"s_add_u32 s{sFrag}, s72, s73")
    k(f"s_lshl_b32 s{sFidx}, s{sM}, 5")
    k(f"s_lshl_b32 s72, s{sN}, 2")
    k(f"s_add_u32 s{sFidx}, s{sFidx}, s72")
    k(f"s_add_u32 s{sFidx}, s{sFidx}, s{sWave}")
    k(f"s_lshl_b32 s{sFidx}, s{sFidx}, 2")
    if STAMP: k("v_mov_b32 v5, 0")
    p0_group(A, 0)
    p0_group(A, 1)
    k("s_branch A_MAIN")

    k.label("B_PRE")
    sWb, sRowQ, sRow1, sRow3, sCb, sRowC, sW4a, sW4b, sH3a, sH3b, sOb, sX1b, sHst, sH3st, sBw, sTile = range(4, 20)
    sCsP, sCsOOB, sCsG, sFidxB, sHsrc, sSt = 20, 21, 22, 23, 24, 25
    Wl3072, Wl1024, Wl3584 = [4, 5, 6, 7], [8, 9, 10, 11], [12, 13, 14, 15]
    vLin, vAXb, vHs, vNon, vFl0, vP4 = 16, 17, 18, 19, 20, 21
    k(f"s_sub_u32 s77, s{sWave}, 4")
    if STAMP: k("v_mov_b32 v255, 0")
    if OPT("TMK", ""):
        k(f"v_mov_b32 v252, {hex(OOB)}")
        k("v_mov_b32 v255, 0")
        k("v_lshlrev_b32 v253, 2, v0")
        k("v_cmp_gt_u32 vcc, 16, v0")
        k("v_cndmask_b32 v253, v252, v253, vcc")
        k(f"s_cmp_eq_u32 s{sWave}, 4")
        k(f"s_cselect_b32 s72, 0, {hex(OOB)}")
        sel = OPT("TMSEL", "")
        if sel:
            k(f"s_cmp_eq_u32 s{sN}, {sel}")
            k(f"s_cselect_b32 s72, s72, {hex(OOB)}")
        k("v_or_b32 v253, s72, v253")
    vPFD = 254
    sBw_ = 77
    def pf(P, srdn, pitch, nmat, complete, colstep=1024, col0=0, nl=4, half=512, rows=512, tag="pf", swap=False):
        nw = 128 if complete else 512
        per = rows*nl // nw
        assert per*nw == rows*nl and per*nmat <= 64
        P.raw(f"s_lshl_b32 s72, s{sIdx}, 2")
        P.raw(f"s_add_u32 s72, s72, s{sBw_}")
        if not complete:
            P.raw(f"s_lshr_b32 s73, s{sG}, 1")
            P.raw("s_lshl_b32 s73, s73, 7")
            P.raw("s_add_u32 s72, s72, s73")
        P.raw(f"s_mul_i32 s72, s72, {per}")
        if nmat > 1:
            assert per & (per - 1) == 0
            sh = per.bit_length() - 1
            P.raw(f"v_lshrrev_b32 v29, {sh}, v0")
            P.raw(f"v_and_b32 v28, {per-1}, v0")
        else:
            P.raw("v_mov_b32 v28, v0")
        P.raw("v_add_u32 v28, s72, v28")
        lsh = nl.bit_length() - 1
        assert 1 << lsh == nl
        P.raw(f"v_lshrrev_b32 v30, {lsh}, v28")
        P.raw(f"v_and_b32 v28, {nl-1}, v28")
        if swap:
            P.raw(f"s_and_b32 s73, s{sG}, 1")
            P.raw("s_lshl_b32 s73, s73, 3")
            P.raw("s_sub_u32 s73, 4, s73")
            P.raw("v_add_u32 v31, s73, v28")
            P.raw("v_cmp_eq_u32 vcc, 3, v28")
            P.raw("v_cndmask_b32 v28, v28, v31, vcc")
        P.raw("v_lshlrev_b32 v28, 7, v28")
        P.raw(f"s_movk_i32 s73, {pitch}")
        P.raw("v_mad_u32_u24 v28, v30, s73, v28")
        if nmat > 1:
            P.raw(f"s_movk_i32 s73, {colstep}")
            P.raw("v_mad_u32_u24 v28, v29, s73, v28")
        P.raw(f"s_and_b32 s73, s{sG}, 1")
        P.raw(f"s_mul_i32 s73, s73, {half}")
        if col0: P.raw(f"s_add_u32 s73, s73, {col0}")
        P.raw(f"v_mov_b32 v30, {hex(OOB)}")
        P.raw(f"v_cmp_gt_u32 vcc, {per*nmat}, v0")
        P.raw("v_cndmask_b32 v28, v30, v28, vcc")
        P.vm(f"buffer_load_dword v{vPFD}, v28, {srdn}, s73 offen", tag)
    def pfs(P, at):
        for name, dflt, fn in (("PFW1", "A:c", lambda c: pf(P, S(SW1), 1024, 1, c, swap="W1" in SWAPS)),
                               ("PFKV", "B:c", lambda c: pf(P, S(SQKV), 3072, 2, c, col0=1024, swap="K" in SWAPS)),
                               ("PFQ", "D:d", lambda c: pf(P, S(SQKV), 3072, 1, c)),
                               ("PFW2", "D:d", lambda c: pf(P, S(SW2), 1024, 1, c)),
                               ("PFW3", "E:d", lambda c: pf(P, S(SW3), 3584, 1, c, nl=16, half=2048)),
                               ("PFW4", "E:d", lambda c: pf(P, S(SW4), 1024, 1, c, rows=2048 if False else 1792)),
                               ("PFWO", "E:d", lambda c: pf(P, S(SWO), 1024, 1, c))):
            if OPT("SPF", 1) and name in OPT("SPFM", "Q,W2,W3,W4,WO").replace("Q", "PFQ").replace("W", "PFW").split(","): continue
            o = OPT(name, dflt)
            if o and o.split(":")[0] == at: fn(o.split(":")[1] == "c")
    spq = []
    def spf_setup(P):
        if not OPT("SPF", 1): return
        P.raw(f"s_lshl_b32 s98, s{sIdx}, 2")
        P.raw(f"s_add_u32 s98, s98, s{sBw}")
        P.raw(f"s_lshr_b32 s72, s{sG}, 1")
        P.raw("s_lshl_b32 s72, s72, 7")
        P.raw("s_add_u32 s98, s98, s72")
        P.raw(f"s_and_b32 s99, s{sG}, 1")
        ms = OPT("SPFM", "Q,W2,W3,W4,WO").split(",")
        ents = {e[0]: e for e in (("W2", SW2, 1024, 512, 88, [64*j for j in range(8)]),
                                                ("Q", SQKV, 3072, 512, 86, [64*j for j in range(8)]),
                                                ("W3", SW3, 3584, 1536, 90, [64*j for j in range(32)]),
                                                ("W4", SW4, 4096, 512, 92, [1024*r + 64*j for r in range(4) for j in range(8)]),
                                                ("WO", SWO, 1024, 512, 94, [64*j for j in range(8)]))}
        for nm, sr, pitch, hoff, base, offs in [ents[x] for x in OPT("SPFORD", "W2,Q,W3,W4,WO").split(",")]:
            if nm not in ms: continue
            if nm == "W4":
                P.raw("s_min_u32 s73, s98, 447")
                P.raw(f"s_mul_i32 s72, s73, {pitch}")
            else:
                P.raw(f"s_mul_i32 s72, s98, {pitch}")
            P.raw(f"s_mul_i32 s73, s99, {hoff}")
            P.raw("s_add_u32 s72, s72, s73")
            P.raw(f"s_add_u32 s{base}, s{sr}, s72")
            P.raw(f"s_addc_u32 s{base+1}, s{sr+1}, 0")
            spq.extend((base, o_) for o_ in offs)
    spq2 = []
    def spf2_setup(P, late):
        ms = [x for x in OPT("SP2M", "").split(",") if x]
        if not ms: return
        ents = {"W4": (SW4, 1024, 14, 68, 0), "WO": (SWO, 1024, 4, 70, 0), "W2": (SW2, 1024, 4, 100, 0), "Q": (SQKV, 3072, 4, 0, 0),
                "K": (SQKV, 3072, 4, 100, 1024), "V": (SQKV, 3072, 4, 0, 2048)}
        if not late:
            for nm in ms:
                sr, pitch, rows, base, col = ents[nm]
                spq2.extend((base, r*pitch + 64*h) for r in range(rows) for h in range(OPT("SP2H", 2)))
        sel = [nm for nm in ms if (ents[nm][3] in (68, 70)) == late]
        if not sel: return
        P.raw(f"s_lshl_b32 s98, s{sIdx}, 2")
        P.raw(f"s_add_u32 s98, s98, s{sBw}")
        P.raw(f"s_and_b32 s99, s{sG}, 1")
        for nm in sel:
            sr, pitch, rows, base, col = ents[nm]
            P.raw(f"s_mul_i32 s72, s98, {pitch*rows}")
            ev, od = (384, 896) if nm not in OPT("SWAP", "").split(",") else (896, 384)
            P.raw(f"s_mul_i32 s73, s99, {od - ev}")
            P.raw(f"s_add_u32 s73, s73, {ev + col}")
            P.raw("s_add_u32 s72, s72, s73")
            P.raw(f"s_add_u32 s{base}, s{sr}, s72")
            P.raw(f"s_addc_u32 s{base+1}, s{sr+1}, 0")
    VT = dict((x.split(":")[0], x.split(":")[1]) for x in OPT("VT", "").split(",") if x)
    vTA = {"W4": 70, "WO": 71, "W2": 73, "Q": 74, "K": 75, "V": 76, "H3": 77, "O": 78}
    VTALL = OPT("VTALL", 0)
    def vt_setup(P):
        if not VT: return
        P.raw(f"s_lshl_b32 s98, s{sIdx}, 2")
        P.raw(f"s_add_u32 s98, s98, s{sBw}")
        SW_ = OPT("SWAP", "").split(",")
        P.raw(f"s_and_b32 s99, s{sG}, 1")
        LS = 2 if VTALL else 0
        if VTALL:
            P.raw("v_lshrrev_b32 v27, 2, v0")
            P.raw("v_and_b32 v26, 3, v0")
            P.raw("v_lshlrev_b32 v26, 7, v26")
            P.raw("s_lshl_b32 s72, s99, 9")
            P.raw("v_add_u32 v26, s72, v26")
        else:
            P.raw("v_mov_b32 v27, v0")
        def colsel(nm, col):
            own = 1 if nm in SW_ else 0
            P.raw(f"s_cmp_eq_u32 s99, {own}")
            P.raw(f"s_mov_b32 s72, {hex(OOB)}")
            P.raw(f"s_cselect_b32 s73, 0, s72")
            P.raw(f"s_or_b32 s73, s73, {384 + col}")
        used = set(x.split(".")[0] for v_ in VT.values() for x in v_.split("+"))
        if "W4" in used:
            P.raw("s_lshr_b32 s72, s98, 6")
            P.raw("v_lshl_add_u32 v28, v27, 1, s72")
            P.raw("v_mul_u32_u24 v29, 37, v28")
            P.raw("v_lshrrev_b32 v29, 8, v29")
            P.raw("v_mul_u32_u24 v30, 7, v29")
            P.raw("v_sub_u32 v28, v28, v30")
            P.raw("v_lshlrev_b32 v28, 8, v28")
            P.raw("v_lshl_add_u32 v28, v29, 6, v28")
            P.raw("s_and_b32 s72, s98, 63")
            P.raw("v_add_u32 v28, s72, v28")
            P.raw("v_lshlrev_b32 v28, 10, v28")
            if VTALL:
                P.raw(f"v_add_u32 v{vTA['W4']}, v26, v28")
            else:
                colsel("W4", 0)
                P.raw(f"v_or_b32 v{vTA['W4']}, s73, v28")
        for nm, pitch, col in (("WO", 1024, 0), ("W2", 1024, 0), ("Q", 3072, 0), ("K", 3072, 1024), ("V", 3072, 2048)):
            if nm not in used: continue
            P.raw("v_lshl_add_u32 v28, v27, 7, s98")
            P.raw(f"v_mul_u32_u24 v28, {pitch}, v28")
            if VTALL:
                if col: P.raw(f"v_add_u32 v28, {col}, v28")
                P.raw(f"v_add_u32 v{vTA[nm]}, v26, v28")
            else:
                colsel({"WO": "W4", "V": "K"}.get(nm, nm), 0)
                P.raw("s_and_b32 s72, s73, 0x7f000000")
                P.raw(f"v_add_u32 v28, {384 + col}, v28")
                P.raw(f"v_or_b32 v{vTA[nm]}, s72, v28")
        if "H3" in used:
            P.raw(f"s_and_b32 s72, s{sN}, 3")
            P.raw("s_lshl_b32 s72, s72, 2")
            P.raw(f"s_add_u32 s72, s72, s{sBw}")
            P.raw("s_lshr_b32 s73, s72, 3")
            P.raw("s_and_b32 s72, s72, 7")
            P.raw("s_mul_i32 s72, s72, 28")
            P.raw("v_add_u32 v28, s72, v0")
            P.raw("v_lshrrev_b32 v29, 5, v28")
            P.raw("v_lshlrev_b32 v29, 14, v29")
            P.raw("v_and_b32 v28, 31, v28")
            P.raw("v_lshl_add_u32 v28, v28, 7, v29")
            P.raw("s_mul_i32 s73, s73, 114688")
            P.raw(f"s_mul_i32 s72, s{sM}, 229376")
            P.raw("s_add_u32 s72, s72, s73")
            P.raw(f"s_add_u32 s72, s72, {hex(W_H3)}")
            P.raw("v_add_u32 v28, s72, v28")
            P.raw(f"v_mov_b32 v29, {hex(OOB)}")
            P.raw("v_cmp_gt_u32 vcc, 28, v0")
            P.raw(f"v_cndmask_b32 v{vTA['H3']}, v29, v28, vcc")
        if "O" in used or "X1" in used or "H" in used:
            P.raw(f"s_and_b32 s72, s{sN}, 3")
            P.raw("s_lshl_b32 s72, s72, 2")
            P.raw(f"s_add_u32 s72, s72, s{sBw}")
            P.raw("s_lshl_b32 s72, s72, 12")
            P.raw(f"s_lshl_b32 s73, s{sM}, 16")
            P.raw("s_add_u32 s72, s72, s73")
            P.raw("v_lshl_add_u32 v28, v0, 7, s72")
            P.raw(f"v_mov_b32 v29, {hex(OOB)}")
            P.raw("v_cmp_gt_u32 vcc, 32, v0")
            P.raw(f"v_cndmask_b32 v{vTA['O']}, v29, v28, vcc")
    def vt(P, at):
        if at not in VT: return
        for it in VT.pop(at).split("+"):
            nm, a, b = (it.split(".") + ["0", "0"])[:3]; a = int(a); b = int(b)
            if nm == "H3":
                P.vm(f"buffer_load_dword v72, v{vTA['H3']}, {S(SWS)}, 0 offen offset:0 sc1" if a == 0 else
                     ("grp", []), "vt") if False else None
                P.raw(f"s_mov_b32 s73, {a*4096}")
                P.vm(f"buffer_load_dword v72, v{vTA['H3']}, {S(SWS)}, s73 offen sc1", "vt")
                continue
            if nm in ("O", "X1", "H"):
                P.raw(f"s_mov_b32 s73, {hex({'O': W_O, 'X1': W_X1, 'H': W_H}[nm])}")
                P.vm(f"buffer_load_dword v72, v{vTA['O']}, {S(SWS)}, s73 offen sc1", "vt")
                continue
            sr = {"W4": SW4, "WO": SWO, "W2": SW2, "Q": SQKV, "K": SQKV, "V": SQKV}[nm]
            if VTALL: a *= 4; b *= 4
            mask = ((1 << b) - 1) ^ ((1 << a) - 1)
            P.raw(f"s_mov_b32 exec_lo, {hex(mask & 0xffffffff)}")
            P.raw(f"s_mov_b32 exec_hi, {hex(mask >> 32)}")
            P.vm(f"buffer_load_dword v72, v{vTA[nm]}, {S(sr)}, 0 offen", "vt")
            P.raw("s_mov_b64 exec, -1")
    SP2 = dict((x.split(":")[0], int(x.split(":")[1])) for x in OPT("SP2", "").split(",") if x)
    def spf2(P, at):
        for _ in range(min(SP2.get(at, 0), len(spq2))):
            b, o_ = spq2.pop(0)
            P.raw(f"s_load_dword s97, s[{b}:{b+1}], {hex(o_)}")
    def spf(P, cnt=None):
        cnt = OPT("SPFN", 8) if cnt is None else cnt
        for _ in range(min(cnt, len(spq))):
            b, o_ = spq.pop(0)
            P.raw(f"s_load_dword s96, s[{b}:{b+1}], {hex(o_)}")
    k("v_lshrrev_b32 v22, 3, v0")
    k("v_and_b32 v23, 7, v0")
    k("v_bfe_u32 v24, v0, 4, 1")
    k("v_lshlrev_b32 v24, 2, v24")
    k("v_xor_b32 v23, v23, v24")
    k("v_lshlrev_b32 v23, 4, v23")
    def wl(regs, pitch):
        k(f"v_mul_u32_u24 v{regs[0]}, {pitch}, v22")
        k(f"v_add_u32 v{regs[0]}, v{regs[0]}, v23")
        for j in range(1, 4):
            k(f"v_add_u32 v{regs[j]}, {j*(8*pitch - 1024)}, v{regs[0]}")
    wl(Wl1024, 1024)
    wl(Wl3072, 3072)
    wl(Wl3584, 3584)
    k("s_waitcnt lgkmcnt(0)")
    if STAMP or OPT("TMK", "") or OPT("AMP", ""): k("s_mov_b32 s79, s80")
    xloads(B)
    srd(k, SW1, P_W1, 512*1024)
    srd(k, SQKV, P_WQKV, 512*3072)
    srd(k, SWS, P_WS, WS_SIZE)
    srd(k, SW3, P_W3, 512*3584)
    srd(k, SDBG, P_DBG, 256)
    srd(k, SW2, P_W2, 512*1024)
    srd(k, SW4, P_W4, 1792*1024)
    srd(k, SWO, P_WO, 512*1024)
    if OPT("TLBW", 0) >= 2: srd(k, SOUT, P_OUT, 2*MB)
    pfs(B, "A")
    B.stamp("@pf1i")
    k(f"s_mov_b32 s{sBw}, s77")
    k(f"s_lshl_b32 s{sWb}, s{sBw}, 13")
    k(f"s_lshl_b32 s72, s{sN}, 7")
    if OPT("HACKN3", 0) == 2:
        k(f"s_cmp_eq_u32 s{sN}, 3")
        k("s_cselect_b32 s72, 256, s72")
    if SWAPS:
        k(f"s_cmp_eq_u32 s{sN}, 3")
        k(f"s_cselect_b32 s{sDl}, 512, 0")
        k(f"s_cmp_eq_u32 s{sN}, 7")
        k(f"s_cselect_b32 s{sDl}, -512, s{sDl}")
    k(f"s_lshl_b32 s73, s{sBw}, 16")
    k(f"s_add_u32 s{sRow1}, s73, s72")
    k(f"s_mul_i32 s73, s{sBw}, {64*3072}")
    k(f"s_add_u32 s{sRowQ}, s73, s72")
    if "K" in SWAPS: k(f"s_add_u32 s{sRowQ}, s{sRowQ}, s{sDl}")
    if "W1" in SWAPS: k(f"s_add_u32 s{sRow1}, s{sRow1}, s{sDl}")
    def dma4(m0base, m0c, srdn, regs, sbase, const, tag, sc1=False):
        out = []
        for j in range(4):
            g = []
            if j == 0:
                g.append(f"s_add_u32 m0, s{m0base}, {m0c}")
                g.append(f"s_add_u32 s{sT0}, s{sbase}, {hex(const & 0xffffffff)}")
            r = regs[j] if isinstance(regs, list) else regs
            g.append(("vm", f"buffer_load_dwordx4 v{r}, {S(srdn)}, s{sT0} offen offset:{j*1024}" + (" sc1" if sc1 else "") + " lds", tag))
            out.append(("grp", g))
        return out
    def wfill(f, srdn, regs, sRow, const, pitch):
        sl = (f % 4)*SLOT
        return dma4(sWb, sl, srdn, regs, sRow, const, f"f{f}") + dma4(sWb, sl + 4096, srdn, regs, sRow, const + 32*pitch, f"f{f}")
    k(f"s_lshr_b32 s72, s{sM}, 2")
    k("s_lshl_b32 s72, s72, 2")
    k(f"s_add_u32 s{sCsP}, s72, s{sBw}")
    k(f"s_and_b32 s74, s{sM}, 3")
    k(f"s_lshl_b32 s75, s{sN}, 2")
    k(f"s_add_u32 s{sCsG}, s74, s75")
    k(f"s_cmp_lt_u32 s{sM}, 16")
    k("s_cselect_b32 s75, 1, 0")
    k(f"s_cmp_lt_u32 s{sN}, 7")
    k("s_cselect_b32 s75, s75, 0")
    k("s_cmp_eq_u32 s75, 1")
    k(f"s_cselect_b32 s{sCsOOB}, 0, {hex(OOB)}")
    def cs3_dma(P):
        vC3 = 24
        P.raw("v_lshrrev_b32 v22, 3, v0")
        P.raw("v_and_b32 v25, 7, v0")
        P.raw("v_mul_u32_u24 v24, 3584, v22")
        P.raw(f"v_lshl_add_u32 v{vC3}, v25, 4, v24")
        P.raw(f"s_mul_i32 s73, s{sCsP}, {32*3584}")
        P.raw(f"s_lshl_b32 s74, s{sCsG}, 7")
        P.raw("s_add_u32 s73, s73, s74")
        P.raw(f"s_cmp_eq_u32 s{sCsOOB}, 0")
        P.raw("s_cselect_b32 s73, s73, 0")
        P.raw(f"v_or_b32 v{vC3}, s{sCsOOB}, v{vC3}")
        P.raw(f"s_lshl_b32 s72, s{sBw}, 12")
        P.raw(f"s_add_u32 m0, s72, {ACCX}")
        for j in range(4):
            if j: P.raw(f"v_add_u32 v{vC3}, {8*3584 - 1024}, v{vC3}")
            P.vm(f"buffer_load_dwordx4 v{vC3}, {S(SW3)}, s73 offen offset:{j*1024} lds", "cs3")
    def xtr_dma(P):
        P.raw("v_lshrrev_b32 v22, 3, v0")
        P.raw(f"s_lshl_b32 s72, s{sBw}, 4")
        P.raw("v_add_u32 v24, s72, v22")
        P.raw("v_bfe_u32 v25, v24, 1, 3")
        P.raw("v_and_b32 v26, 7, v0")
        P.raw("v_xor_b32 v25, v25, v26")
        P.raw("v_lshlrev_b32 v25, 4, v25")
        P.raw(f"s_lshl_b32 s72, s{sM}, 6")
        P.raw("v_add_u32 v24, s72, v24")
        P.raw("v_lshl_add_u32 v24, v24, 10, v25")
        P.raw(f"s_lshl_b32 s72, s{sN}, 7")
        P.raw("v_add_u32 v24, s72, v24")
        P.raw(f"s_lshl_b32 s72, s{sBw}, 11")
        P.raw(f"s_add_u32 m0, s72, {XTR}")
        P.vm(f"buffer_load_dwordx4 v24, {S(SX)}, 0 offen lds", "xt")
        P.raw("v_add_u32 v24, 8192 - 1024, v24")
        P.raw("v_xor_b32 v24, 64, v24")
        P.vm(f"buffer_load_dwordx4 v24, {S(SX)}, 0 offen offset:1024 lds", "xt")
    k(f"v_lshlrev_b32 v{vLin}, 4, v0")
    k(f"v_lshlrev_b32 v{vP4}, 2, v0")
    k(f"s_lshl_b32 s72, s{sBw}, 12")
    k(f"s_add_u32 s72, s72, {ACCX}")
    k(f"v_add_u32 v{vAXb}, s72, v{vLin}")
    k(f"v_mov_b32 v{vFl0}, {hex(OOB)}")
    k("v_mov_b32 v24, 0")
    k("v_cmp_eq_u32 vcc, 0, v0")
    k(f"v_cndmask_b32 v{vFl0}, v{vFl0}, v24, vcc")
    k(f"s_lshl_b32 s72, s{sN}, 9")
    k(f"s_mul_i32 s73, s{sBw}, {64*3584}")
    k(f"s_add_u32 s{sRow3}, s73, s72")
    k(f"s_lshl_b32 s72, s{sCH}, 14")
    k(f"s_lshl_b32 s73, s{sTT}, 12")
    k(f"s_add_u32 s{sCb}, s72, s73")
    k(f"s_lshl_b32 s72, s{sN}, 7")
    if OPT("HACKN3", 0) in (1, 2):
        k(f"s_cmp_eq_u32 s{sN}, 3")
        k("s_cselect_b32 s72, 256, s72")
    k(f"s_lshl_b32 s73, s{sBw}, 15")
    k(f"s_add_u32 s{sRowC}, s73, s72")
    k(f"s_lshl_b32 s73, s{sTT}, 15")
    k("s_add_u32 s72, s72, s73")
    k(f"s_lshl_b32 s73, s{sCH}, 18")
    k(f"s_add_u32 s{sW4a}, s72, s73")
    k(f"s_mul_i32 s73, s{sCH}, {-1472*1024}")
    k(f"s_add_u32 s{sW4b}, s72, s73")
    k(f"s_lshl_b32 s{sTile}, s{sM}, 1")
    k(f"s_add_u32 s{sTile}, s{sTile}, s{sTT}")
    k(f"s_mul_i32 s72, s{sTile}, {112*1024}")
    k(f"s_add_u32 s72, s72, {hex(W_H3)}")
    k(f"s_lshl_b32 s73, s{sCH}, 14")
    k(f"s_add_u32 s{sH3a}, s72, s73")
    k(f"s_mul_i32 s73, s{sCH}, {-1472*64}")
    k(f"s_add_u32 s{sH3b}, s72, s73")
    k(f"s_lshl_b32 s73, s{sN}, 14")
    k("s_add_u32 s72, s72, s73")
    k(f"s_lshl_b32 s73, s{sCH}, 11")
    k(f"s_add_u32 s{sH3st}, s72, s73")
    k(f"s_lshl_b32 s72, s{sTile}, 15")
    k(f"s_lshl_b32 s73, s{sCH}, 12")
    k(f"s_add_u32 s{sHsrc}, s73, {hex(W_H)}")
    k("s_add_u32 s73, s73, s72")
    k(f"s_add_u32 s{sOb}, s73, {hex(W_O)}")
    k(f"s_lshl_b32 s73, s{sCH}, 13")
    k("s_add_u32 s73, s73, s72")
    k(f"s_add_u32 s{sX1b}, s73, {hex(W_X1)}")
    k(f"s_lshl_b32 s73, s{sN}, 12")
    k("s_add_u32 s72, s72, s73")
    k(f"s_lshl_b32 s73, s{sCH}, 11")
    k("s_add_u32 s72, s72, s73")
    k(f"s_add_u32 s{sHst}, s72, {hex(W_H)}")
    k(f"s_lshl_b32 s{sFidxB}, s{sM}, 5")
    k(f"s_lshl_b32 s72, s{sN}, 2")
    k(f"s_add_u32 s{sFidxB}, s{sFidxB}, s72")
    k(f"s_add_u32 s{sFidxB}, s{sFidxB}, s{sBw}")
    k(f"s_lshl_b32 s{sFidxB}, s{sFidxB}, 2")
    p0_group(B, 0)
    B.run(wfill(2, SW1, Wl1024, sRow1, 0, 1024))
    B.stamp("@f2i")
    pfs(B, "B")
    p0_group(B, 1)
    B.run(wfill(3, SW1, Wl1024, sRow1, 256*1024, 1024))
    B.stamp("@f3i")
    pfs(B, "C")
    B.vm(f"buffer_load_dword v{vNc}, v59, {S(SDBG)}, 0 offen sc1", "nc")
    if OPT("TLBW", 0):
        ents = [(W_H, sM, 65536, None, 0), (W_X1, sM, 65536, None, 0), (W_O, sM, 65536, None, 0),
                (W_H3, sM, 229376, None, 0), (W_H3 + 114688, sM, 229376, None, 0),
                (W_KVP, sN, 262144, sM, 2048), (W_KVP, sM, 65536, None, 0), (W_KVF, sM, 1024, None, 0),
                (W_ST, sM, 8192, None, 0), (W_CS, sN, 16384, None, 0), (W_FL, sM, 128, None, 0), (W_FL + 32768, sM, 128, None, 0)]
        k(f"v_mov_b32 v47, {hex(OOB)}")
        for i, (base, s1, m1, s2, m2) in enumerate(ents):
            k(f"s_mul_i32 s72, s{s1}, {m1}")
            if s2 is not None:
                k(f"s_mul_i32 s73, s{s2}, {m2}")
                k("s_add_u32 s72, s72, s73")
            k(f"s_add_u32 s72, s72, {hex(base)}")
            k(f"v_writelane_b32 v47, s72, {i}")
        B.vm(f"buffer_load_dword v51, v47, {S(SWS)}, 0 offen sc1", "tlb")
        if OPT("TLBW", 0) >= 2:
            k(f"v_mov_b32 v47, {hex(OOB)}")
            k(f"s_lshl_b32 s72, s{sN}, 7")
            k("v_writelane_b32 v47, s72, 0")
            k(f"s_add_u32 s72, s72, {hex(511*1024)}")
            k("v_writelane_b32 v47, s72, 1")
            for sr in (SW2, SWO, SW3, SW4):
                B.vm(f"buffer_load_dword v51, v47, {S(sr)}, 0 offen", "tlb")
            k(f"s_add_u32 s72, s72, {hex(1280*1024)}")
            k("v_writelane_b32 v47, s72, 0")
            k(f"s_add_u32 s72, s72, {hex(-640*1024 & 0xffffffff)}")
            k("v_writelane_b32 v47, s72, 1")
            for sr in (SW3, SW4):
                B.vm(f"buffer_load_dword v51, v47, {S(sr)}, 0 offen", "tlb")
            k(f"v_mov_b32 v47, {hex(OOB)}")
            k(f"s_lshl_b32 s72, s{sM}, 16")
            k("v_writelane_b32 v47, s72, 0")
            B.vm(f"buffer_load_dword v51, v47, {S(SOUT)}, 0 offen", "tlb")
    k("s_branch B_MAIN")

    def get_nonce(vdst):
        L = k.newlabel("NC"); D = k.newlabel("ND")
        k(f"v_readfirstlane_b32 s{sNon}, v{vNc}")
        k(f"s_cmp_lg_u32 s{sNon}, 0")
        k(f"s_cbranch_scc1 {D}")
        k.label(L)
        k("v_mov_b32 v59, 0")
        k(f"buffer_load_dword v{vNc}, v59, {S(SDBG)}, 0 offen sc1")
        k("s_waitcnt vmcnt(0)")
        k(f"v_readfirstlane_b32 s{sNon}, v{vNc}")
        k(f"s_sub_u32 s{sSpin}, s{sSpin}, 1")
        k(f"s_cmp_le_i32 s{sSpin}, 0")
        k(f"s_cbranch_scc1 {D}")
        k(f"s_cmp_eq_u32 s{sNon}, 0")
        k(f"s_cbranch_scc1 {L}")
        k.label(D)
        k(f"v_mov_b32 v{vdst}, s{sNon}")

    P = A
    k.label("A_MAIN")
    k("s_waitcnt vmcnt(0) lgkmcnt(0)")
    A.vq = []; A.dq = []
    get_nonce(vNonA)
    if OPT("TTH", 0):
        P.raw(f"s_mov_b32 s72, {hex(W_FL + 49152)}")
        P.raw("v_mov_b32 v5, 0")
        P.vm(f"buffer_load_dword v5, v5, {S(SWS)}, s72 offen sc1", "mk")
    P.stamp()
    def wread(base, f, ks16, ring, second):
        sl = f % 4
        off = (sl & 1)*SLOT + ks16*2048
        d = WF + 4*(ring % 8)
        return [(f"ds_read_b64_tr_b16 {v(d,2)}, v{base[sl>>1]} offset:{off}", ("w", ring, 0)),
                (f"ds_read_b64_tr_b16 {v(d+2,2)}, v{base[sl>>1]} offset:{off + second}", ("w", ring, 1))]
    vMa, vArA, vBrA, vRiA = 12, 13, 14, 15
    sHstA, sEps, sH3A, sH3r, sFlg = 12, 13, 14, 15, 16
    def gelu8(a, c, pk, T1, vM, vAr, vBr, vRi):
        L = []
        if c is not None:
            for i in range(8): L.append(f"v_fma_f32 v{a+i}, -v{vM}, v{c+i}, v{a+i}")
        for i in range(8): L.append(f"v_mul_f32 v{T1+i}, v{a+i}, v{a+i}")
        for i in range(8): L.append(f"v_fma_f32 v{T1+i}, v{T1+i}, v{vBr}, v{vAr}")
        for i in range(8): L.append(f"v_mul_f32 v{T1+i}, v{T1+i}, v{a+i}")
        for i in range(8): L.append(f"v_exp_f32 v{T1+i}, v{T1+i}")
        for i in range(8): L.append(f"v_fma_f32 v{T1+i}, v{T1+i}, v{vRi}, v{vRi}")
        for i in range(8): L.append(f"v_rcp_f32 v{T1+i}, v{T1+i}")
        for i in range(8): L.append(f"v_mul_f32 v{a+i}, v{a+i}, v{T1+i}")
        for i in range(4): L.append(f"v_cvt_pk_bf16_f32 v{pk+i}, v{a+2*i}, v{a+2*i+1}")
        return L
    def aflag(off_const, tagwait, tag):
        return [("stamp", "@w" + tag), ("wvm", tagwait), f"s_add_u32 s{sFlg}, s{sFidx}, {hex(off_const)}",
                ("vm", f"buffer_store_dword v{vNonA}, v{vFl0A}, {S(SWS)}, s{sFlg} offen sc1", tag), ("stamp", "@i" + tag)]
    NOEPI = OPT("NOEPI", 0)
    steps = []; pre = {}
    for R, (f0, wfirst) in enumerate(((2, True), (4, False), (6, False))):
        for ks in range(32):
            G = 32*R + ks
            f = f0 + (ks >> 4)
            st = dict(reads=wread(vWn, f, ks & 15, G, 512), need=[("w", G, 1)])
            d = ACB if ks == 31 else ACA
            c = None if ks == 0 else ACA
            a_, b_ = (WF + 4*(G % 8), ACT + 4*ks)
            st["mfma"] = mf(d, a_, b_, c) if wfirst else mf(d, b_, a_, c)
            if R == 0: st["need"].append(("act", ks))
            if ks % 16 == 0: st["gate"] = {0: "B1", 16: "b3", 32: "b4", 48: "b5", 64: "b6", 80: "b7"}[G]
            steps.append(st)
    side = [(-3 + ks//4, f"ds_read_b128 {v(ACT+4*ks,4)}, v{xa[ks&3]} offset:{(ks >> 2)*8192}", ("act", ks)) for ks in range(32)]
    pre[OPT("BAPOS", 6)] = [("wds", ("act", 31)), ("bar", "Ba")]
    cst = [f"s_lshl_b32 s72, s{sTT}, 9", f"s_add_u32 s72, s72, {TAB_ST + 8}", f"v_lshl_add_u32 v31, v{vT31}, 4, s72",
           ("ds", "ds_read_b32 v4, v31", "rh"),
           f"s_add_u32 s{sHstA}, s{sFrag}, {hex(W_H)}", f"s_mov_b32 s{sEps}, {hx(EPS_PHI)}"]
    if "W1" in SWAPS: cst += [f"s_lshl_b32 s72, s{sDl}, 10", f"s_xor_b32 s{sHstA}, s{sHstA}, s72"]
    steps[17].setdefault("post", []).extend(cst)
    cst2 = [("wds", "rh"), f"v_mul_f32 v{vArA}, {hx(GA)}, v4", f"v_mul_f32 v{vBrA}, v4, v4", f"v_rcp_f32 v{vRiA}, v4",
            f"v_mul_f32 v{vBrA}, v{vBrA}, v4", f"v_mul_f32 v{vBrA}, {hx(GB)}, v{vBrA}"]
    steps[24].setdefault("post", []).extend(cst2)
    T1h, PKh = 64, 72
    eh = gelu8(ACB, None, PKh, T1h, vMa, vArA, vBrA, vRiA) + \
         [("vm", f"buffer_store_dwordx4 {v(PKh,4)}, v{vLinA}, {S(SWS)}, s{sHstA} offen sc1", "hst")] + \
         gelu8(ACB+8, None, PKh+4, T1h, vMa, vArA, vBrA, vRiA) + \
         [("vm", f"buffer_store_dwordx4 {v(PKh+4,4)}, v{vLinA}, {S(SWS)}, s{sHstA} offen offset:1024 sc1", "hst")]
    if NOEPI: eh = [o for o in eh if not isinstance(o, str)]
    spread(steps, eh, 32 + 2, 32 + OPT("HEND", 22))
    steps[OPT("F1POS", 64 + 8)].setdefault("post", []).extend(aflag(F1, "hst", "f1flag"))
    KT, PA_ = 64, 88
    ek = []
    for i in range(16): ek.append(f"v_mul_f32 v{KT+i}, {hx(LOG2E)}, v{ACB+i}")
    for i in range(16): ek.append(f"v_add_f32 v{ACB+i}, s{sEps}, v{ACB+i}")
    for i in range(16): ek.append(f"v_exp_f32 v{KT+i}, v{KT+i} clamp")
    for i in range(16): ek.append(f"v_max_f32 v{ACB+i}, s{sEps}, v{ACB+i}")
    for i in range(16): ek.append(f"v_add_f32 v{ACB+i}, v{ACB+i}, v{KT+i}")
    for i in range(8): ek.append(f"v_cvt_pk_bf16_f32 v{PA_+i}, v{ACB+2*i}, v{ACB+2*i+1}")
    if NOEPI: ek = []
    spread(steps, ek, 64 + 2, 64 + OPT("KEND", 24))
    stream(P, steps, lambda s: 3 if s < 6 else 6, 3, pre=pre, side=side, side_rate=4)
    P.stamp()
    PB_, B0_, D0, D1 = 64, 72, 96, 112
    for i in range(8): P.raw(f"v_cvt_pk_bf16_f32 v{PB_+i}, v{ACB+2*i}, v{ACB+2*i+1}")
    P.raw(f"s_mov_b32 s{sMk}, 0x0000ffff")
    P.raw(f"s_mov_b32 s{sMk+1}, 0x0000ffff")
    for i in range(8): P.raw(f"v_cndmask_b32 v{B0_+i}, v{ONE}, v{PB_+i}, {S(sMk,2)}")
    for i in range(8): P.raw(f"v_cndmask_b32 v{PB_+i}, v{PB_+i}, v{ONE}, {S(sMk,2)}")
    P.raw(mf(D0, PA_, B0_, None))
    P.raw(mf(D1, PA_, PB_, None))
    P.raw(mf(D0, PA_+4, B0_+4, D0))
    P.raw(mf(D1, PA_+4, PB_+4, D1))
    P.raw(f"s_cmp_eq_u32 s{sTT}, 0")
    P.raw("s_cbranch_scc1 A_KV0")
    for i in range(8): P.raw(f"v_mov_b32 v{ACA+i}, v{D0+i}")
    for i in range(8): P.raw(f"v_mov_b32 v{ACA+8+i}, v{D1+8+i}")
    P.raw("s_branch A_KV1")
    P.label("A_KV0")
    for i in range(8): P.raw(f"v_mov_b32 v{ACA+i}, v{D1+8+i}")
    for i in range(8): P.raw(f"v_mov_b32 v{ACA+8+i}, v{D0+i}")
    P.label("A_KV1")
    P.ds(f"ds_write_b128 v{vAX}, {v(ACA,4)} offset:2048", "ex0")
    P.ds(f"ds_write_b128 v{vAX}, {v(ACA+4,4)} offset:3072", "ex1")
    P.raw(f"v_xor_b32 v31, 4096, v{vAX}")
    P.wds_all()
    P.bar("bK2")
    P.ds(f"ds_read_b128 {v(ACA,4)}, v31 offset:2048", "ex0")
    P.ds(f"ds_read_b128 {v(ACA+4,4)}, v31 offset:3072", "ex1")
    P.raw(f"s_add_u32 s72, s{sHead}, s{sTT}")
    if "K" in SWAPS: P.raw(f"s_xor_b32 s72, s72, s{sDl}")
    P.raw("s_lshl_b32 s72, s72, 5")
    P.raw(f"s_add_u32 s72, s72, s{sM}")
    P.raw("s_lshl_b32 s73, s72, 11")
    P.raw(f"s_add_u32 s73, s73, {hex(W_KVP)}")
    P.raw(f"s_lshl_b32 s{sFkv}, s72, 2")
    P.raw(f"s_add_u32 s{sFkv}, s{sFkv}, {hex(FKV)}")
    P.wds_all()
    for i in range(8): P.raw(f"v_add_f32 v{ACA+i}, v{ACA+i}, v{ACA+8+i}")
    P.vm(f"buffer_store_dwordx4 {v(ACA,4)}, v{vLinA}, {S(SWS)}, s73 offen sc1", "kvp")
    P.vm(f"buffer_store_dwordx4 {v(ACA+4,4)}, v{vLinA}, {S(SWS)}, s73 offen offset:1024 sc1", "kvp")
    def xslice_reads(dst):
        L = []
        for g in range(4):
            if g == 0: L.append(("ds", f"ds_read_b64 {v(dst,2)}, v{vXR}", "xr"))
            else:
                L.append(f"v_xor_b32 v31, {16*g}, v{vXR}")
                L.append(("ds", f"ds_read_b64 {v(dst+2*g,2)}, v31", "xr"))
        return L
    def unpack_ops(dst, src, n=8):
        L = []
        for i in range(n):
            L.append(f"v_lshlrev_b32 v{dst+2*i}, 16, v{src+i}")
            L.append(f"v_and_b32 v{dst+2*i+1}, 0xffff0000, v{src+i}")
        return L
    XRr, STv = 64, 72
    P.run(xslice_reads(XRr))
    P.raw(f"s_lshl_b32 s72, s{sTT}, 9")
    P.raw(f"s_add_u32 s72, s72, {TAB_ST}")
    P.raw(f"v_lshl_add_u32 v31, v{vT31}, 4, s72")
    P.ds(f"ds_read_b64 {v(STv,2)}, v31", "st")
    P.wds_all()
    INI = ACB
    P.run(unpack_ops(INI, XRr))
    for i in range(16): P.raw(f"v_fma_f32 v{INI+i}, v{INI+i}, v{STv+1}, v{STv}")
    def chunk_steps(f0, nch, G0, acc, init, gl=2):
        steps = []
        for c in range(nch):
            f = f0 + c; sl = f % 4
            for j in range(8):
                G = G0 + 8*c + j
                e, ks = j >> 2, j & 3
                off = (sl & 1)*SLOT + e*16384
                h = HF + 4*(G % 8); w = WF + 4*(G % 8)
                reads = [(f"ds_read_b128 {v(h,4)}, v{vHa[sl>>1]} offset:{off + ks*1024}", ("h", G)),
                         (f"ds_read_b64_tr_b16 {v(w,2)}, v{vWf[sl>>1]} offset:{off + ks*2048}", ("w", G, 0)),
                         (f"ds_read_b64_tr_b16 {v(w+2,2)}, v{vWf[sl>>1]} offset:{off + ks*2048 + 1024}", ("w", G, 1))]
                first = c == 0 and j == 0
                st = dict(reads=reads, need=[("w", G, 1)], mfma=mf(acc, w, h, (init if first else acc)))
                if j == 0: st["gate"] = f"b{f}"; st["gl"] = gl
                steps.append(st)
        return steps
    stream(P, chunk_steps(8, 4, 0, ACA, INI), lambda s: 4, 2)
    P.wvm("kvp")
    P.vm(f"buffer_store_dword v{vNonA}, v{vFl0A}, {S(SWS)}, s{sFkv} offen sc1", "fkv")
    for i in range(8): P.raw(f"v_cvt_pk_bf16_f32 v{X1P+i}, v{ACA+2*i}, v{ACA+2*i+1}")
    P.raw(f"s_add_u32 s72, s{sFrag}, {hex(W_X1)}")
    P.vm(f"buffer_store_dwordx4 {v(X1P,4)}, v{vLinA}, {S(SWS)}, s72 offen sc1", "x1")
    P.vm(f"buffer_store_dwordx4 {v(X1P+4,4)}, v{vLinA}, {S(SWS)}, s72 offen offset:1024 sc1", "x1")
    P.raw("v_mov_b32 v64, 0")
    P.raw("v_mov_b32 v65, 0")
    for i in range(8):
        P.raw(f"v_dot2_f32_bf16 v64, v{X1P+i}, v{ONE}, v64")
        P.raw(f"v_dot2_f32_bf16 v65, v{X1P+i}, v{X1P+i}, v65")
    P.raw(f"s_lshl_b32 s72, s{sM}, 4")
    P.raw(f"s_lshl_b32 s73, s{sN}, 1")
    P.raw("s_add_u32 s72, s72, s73")
    P.raw(f"s_add_u32 s72, s72, s{sCH}")
    P.raw("s_lshl_b32 s72, s72, 1")
    P.raw(f"s_add_u32 s72, s72, s{sTT}")
    P.raw("s_lshl_b32 s72, s72, 8")
    P.raw(f"s_add_u32 s72, s72, {hex(W_ST)}")
    P.raw("v_permlane32_swap_b32 v64, v65")
    P.raw("v_add_f32 v64, v64, v65")
    P.vm(f"buffer_store_dword v64, v{vP4A}, {S(SWS)}, s72 offen sc1", "x1")
    P.raw(f"s_add_u32 s9, s{sFidx}, {hex(F2)}")
    steps = []; pre = {}
    for ks in range(32):
        f = 12 + (ks >> 4)
        st = dict(reads=wread(vWn, f, ks & 15, ks, 512), need=[("w", ks, 1)])
        st["mfma"] = mf(ACA, WF + 4*(ks % 8), ACT + 4*ks, None if ks == 0 else ACA)
        if ks % 16 == 0: st["gate"] = f"b{f}"
        steps.append(st)
    pre[OPT("F2POS", 16)] = [("stamp", "@wf2"), ("wvm", "x1"), ("vm", f"buffer_store_dword v{vNonA}, v{vFl0A}, {S(SWS)}, s9 offen sc1", "f2"), ("stamp", "@if2")]
    stream(P, steps, lambda s: 6, 3, pre=pre)
    P.wds_all()
    P.bar("bQ")
    P.stamp()
    PQ = 64
    Q0, Q1 = 96, 112
    for i in range(16): P.raw(f"v_mul_f32 v{Q1+i}, {hx(LOG2E)}, v{ACA+i}")
    for i in range(16): P.raw(f"v_add_f32 v{Q0+i}, s{sEps}, v{ACA+i}")
    for i in range(16): P.raw(f"v_exp_f32 v{Q1+i}, v{Q1+i} clamp")
    for i in range(16): P.raw(f"v_max_f32 v{Q0+i}, s{sEps}, v{Q0+i}")
    for i in range(16): P.raw(f"v_add_f32 v{Q0+i}, v{Q0+i}, v{Q1+i}")
    for i in range(8): P.raw(f"v_cvt_pk_bf16_f32 v{PQ+i}, v{Q0+2*i}, v{Q0+2*i+1}")
    P.ds(f"ds_write_b128 v{vAX}, {v(PQ,4)}", "pq")
    P.ds(f"ds_write_b128 v{vAX}, {v(PQ+4,4)} offset:1024", "pq")
    sHq = sHead
    if "Q" in SWAPS:
        sHq = 74
        P.raw(f"s_xor_b32 s74, s{sHead}, s{sDl}")
    P.raw(f"s_lshl_b32 s10, s{sHq}, 5")
    P.raw(f"s_add_u32 s10, s10, {hex(FKF)}")
    P.raw(f"s_lshl_b32 s11, s{sHq}, 10")
    P.raw(f"s_add_u32 s11, s11, {hex(W_KVF)}")
    vH3o = 4
    P.raw(f"s_mul_i32 s72, s{sTileA}, {112*1024}")
    P.raw(f"s_lshl_b32 s73, s{sN}, 14")
    P.raw("s_add_u32 s72, s72, s73")
    P.raw(f"s_lshl_b32 s73, s{sCH}, 11")
    P.raw("s_add_u32 s72, s72, s73")
    P.raw(f"s_add_u32 s{sH3A}, s72, {hex(W_H3)}")
    P.raw(f"s_cmp_eq_u32 s{sN}, 7")
    P.raw(f"s_cselect_b32 s72, {hex(OOB)}, 0")
    P.raw(f"v_or_b32 v{vH3o}, s72, v{vLinA}")
    vS2 = 16
    steps = []; pre = {}
    for r in range(4):
        for ks in range(32):
            G = 32*r + ks
            f = 16 + 2*r + (ks >> 4)
            st = dict(reads=wread(vWf, f, ks & 15, G, 1024), need=[("w", G, 1)])
            st["mfma"] = mf(ACB if ks == 31 else ACA, WF + 4*(G % 8), ACT + 4*ks, None if ks == 0 else ACA)
            if r == 0: st["need"].append(("act", ks))
            if ks % 16 == 0: st["gate"] = "b14" if G == 0 else f"b{f}"
            steps.append(st)
    AC6 = 240
    steps += chunk_steps(24, 14, 128, ACA, None) + chunk_steps(38, 4, 240, AC6, None)
    side = [((-3 + ks//4) if ks < 16 else 10, f"ds_read_b128 {v(ACT+4*ks,4)}, v{vX1a} offset:{(ks >> 4)*32768 + (ks & 15)*1024}", ("act", ks)) for ks in range(32)]
    pre[OPT("BA2POS", 2)] = [("wds", ("act", 15)), ("bar", "Ba2")]
    pre[10] = [("bar", "b15")]
    pre[OPT("BB2POS", 15)] = [("wds", ("act", 31)), ("bar", "Bb2")]
    vCSa = 16
    steps[30].setdefault("post", []).extend(
        [f"s_lshl_b32 s72, s{sTT}, 9", f"s_add_u32 s72, s72, {TAB_S2}", f"v_lshl_add_u32 v31, v{vT31}, 4, s72",
         ("ds", f"ds_read_b128 {v(vMa,4)}, v31", "s2"),
         f"s_lshl_b32 s72, s{sCH}, 7", f"s_add_u32 s72, s72, {TAB_CS}", f"v_lshl_add_u32 v{vCSa}, v{vHf}, 4, s72"])
    def g4cs(r, CS):
        return [("ds", f"ds_read_b128 {v(CS+4*g,4)}, v{vCSa} offset:{256*r + 32*g}", ("cs", r, g)) for g in range(4)]
    def g4epi(r, CS, T1, PK):
        L = [f"s_add_u32 s{sH3r}, s{sH3A}, {4*r*1024}", ("wds", ("cs", r, 3), "s2")]
        g1 = gelu8(ACB, CS, PK, T1, vMa, vArA, vBrA, vRiA); g2 = gelu8(ACB+8, CS+8, PK+4, T1, vMa, vArA, vBrA, vRiA)
        if NOEPI: g1 = g2 = []
        L += g1 + [("vm", f"buffer_store_dwordx4 {v(PK,4)}, v{vH3o}, {S(SWS)}, s{sH3r} offen sc1", f"h3s{r}")]
        L += g2 + [("vm", f"buffer_store_dwordx4 {v(PK+4,4)}, v{vH3o}, {S(SWS)}, s{sH3r} offen offset:1024 sc1", f"h3s{r}")]
        return L
    GE = [OPT("GEND0", 20), OPT("GEND", 31), OPT("GEND", 31)]; F3P = [OPT("F3POS0", 40), OPT("F3POS", 54), OPT("F3POS2", 38)]
    for r in range(3):
        steps[32*r + 30].setdefault("post", []).extend(g4cs(r, 64))
        spread(steps, g4epi(r, 64, 80, 88), 32*(r+1) + 1, 32*(r+1) + GE[r])
        steps[32*(r+1) + F3P[r]].setdefault("post", []).extend(aflag(F3 + r*4096, f"h3s{r}", f"f3f{r}"))
    if OPT("R3SER", 1):
        steps[126].setdefault("post", []).extend(g4cs(3, 64))
        steps[127].setdefault("post", []).extend(g4epi(3, 64, 80, 88))
        steps[128]["gl"] = 0
    else:
        steps[128].setdefault("post", []).extend(g4cs(3, 192))
        spread(steps, g4epi(3, 192, 208, 216), 128 + 2, 128 + OPT("GEND3", 14))
    steps[128 + OPT("F3POS3", 28)].setdefault("post", []).extend(aflag(F3 + 3*4096, "h3s3", "f3f3"))
    vKf = 31
    KVF, PQ2, OD = 128, 136, 144
    steps[120].setdefault("post", []).append(("vm", f"buffer_load_dword v17, v{vP4A}, {S(SWS)}, s10 offen sc1", "kf"))
    def kf_check():
        if P.dead: return
        P.wvm("kf")
        saved = list(P.vq)
        OKL = k.newlabel("KFOK")
        P.raw(f"v_cmp_ne_u32 vcc, s{sNon}, v17")
        P.raw("s_and_b64 vcc, vcc, 0xffff")
        P.raw(f"s_cbranch_scc0 {OKL}")
        P.poll(17, vP4A, "s10", 0xffff, 0)
        P.label(OKL)
        P.vq = saved
        P.vm(f"buffer_load_dwordx4 {v(KVF,4)}, v{vLinA}, {S(SWS)}, s11 offen sc1", "kvf")
        P.vm(f"buffer_load_dwordx4 {v(KVF+4,4)}, v{vLinA}, {S(SWS)}, s11 offen offset:1024 sc1", "kvf")
    OJ = 128 + OPT("OJPOS", 14)
    steps[OJ].setdefault("post", []).append(("call", kf_check))
    pqr = [f"s_lshl_b32 s72, s{sWave}, 12", f"s_add_u32 s72, s72, {ACCX}", f"v_add_u32 v31, s72, v{vLinA}",
           ("ds", f"ds_read_b128 {v(PQ2,4)}, v31", "pq2"), ("ds", f"ds_read_b128 {v(PQ2+4,4)}, v31 offset:1024", "pq2")]
    steps[OJ+1].setdefault("post", []).extend(pqr)
    OM = OJ + OPT("OJM", 12)
    steps[OM].setdefault("post", []).extend([("wvm", "kvf"), ("wds", "pq2"), mf(OD, KVF, PQ2, None), mf(OD+16, KVF+4, PQ2+4, None)])
    oj = [f"v_add_f32 v{OD+8}, s{sEps}, v{OD+8}", f"v_add_f32 v{OD+16}, s{sEps}, v{OD+16}",
          f"v_rcp_f32 v{OD+8}, v{OD+8}", f"v_rcp_f32 v{OD+16}, v{OD+16}"]
    for i in range(8): oj.append(f"v_mul_f32 v{OD+i}, v{OD+i}, v{OD+8}")
    for i in range(8): oj.append(f"v_mul_f32 v{OD+24+i}, v{OD+24+i}, v{OD+16}")
    for i in range(4): oj.append(f"v_cvt_pk_bf16_f32 v{KVF+i}, v{OD+2*i}, v{OD+2*i+1}")
    for i in range(4): oj.append(f"v_cvt_pk_bf16_f32 v{KVF+4+i}, v{OD+24+2*i}, v{OD+24+2*i+1}")
    oj.append(f"s_add_u32 s72, s{sFrag}, {hex(W_O)}")
    if "Q" in SWAPS: oj += [f"s_lshl_b32 s73, s{sDl}, 10", "s_xor_b32 s72, s72, s73"]
    oj.append(("vm", f"buffer_store_dwordx4 {v(KVF,4)}, v{vLinA}, {S(SWS)}, s72 offen sc1", "o"))
    oj.append(("vm", f"buffer_store_dwordx4 {v(KVF+4,4)}, v{vLinA}, {S(SWS)}, s72 offen offset:1024 sc1", "o"))
    steps[OM+2].setdefault("post", []).extend(oj[:14])
    steps[OM+3].setdefault("post", []).extend(oj[14:])
    steps[OM + OPT("FOPOS", 16)].setdefault("post", []).extend(aflag(FO, "o", "fo"))
    XF = 176; X1F = 192; vOut = 12; XT = 208
    misc = xslice_reads(XT) + unpack_ops(X1F, X1P) + [("wds", "xr")] + unpack_ops(XF, XT)
    misc += [f"s_lshl_b32 s72, s{sTileA}, 15", f"s_lshl_b32 s73, s{sHead}, 5", "s_add_u32 s72, s72, s73",
             f"v_lshl_add_u32 v{vOut}, v{vT31}, 10, s72", f"v_lshl_add_u32 v{vOut}, v{vHf}, {4 if OPT('OUTX4', 0) == 1 else 3}, v{vOut}"]
    spread(steps, misc, 128 + 80, 128 + 100)
    E = 128; Gt = 144; BV = 160
    sil = []
    for i in range(16): sil.append(f"v_add_f32 v{BV+i}, v{ACA+i}, v{X1F+i}")
    for i in range(16): sil.append(f"v_mul_f32 v{E+i}, {hx(-LOG2E)}, v{BV+i}")
    for i in range(16): sil.append(f"v_exp_f32 v{E+i}, v{E+i}")
    for i in range(16): sil.append(f"v_add_f32 v{E+i}, 1.0, v{E+i}")
    for i in range(16): sil.append(f"v_rcp_f32 v{E+i}, v{E+i}")
    for i in range(16): sil.append(f"v_mul_f32 v{Gt+i}, v{BV+i}, v{E+i}")
    spread(steps, sil, 240 + 2, 240 + 30)
    for r in range(1, 4): pre.setdefault(32*r, []).append(("stamp",))
    stream(P, steps, lambda s: 3 if s < 12 else (6 if s < 122 else 4), 3, pre=pre, side=side, side_rate=4)
    P.stamp()
    for i in range(16): P.raw(f"v_fma_f32 v{Gt+i}, v{Gt+i}, v{AC6+i}, v{XF+i}")
    for i in range(8): P.raw(f"v_cvt_pk_bf16_f32 v{E+i}, v{Gt+2*i}, v{Gt+2*i+1}")
    if OPT("TTH", 0):
        P.wds_all()
        P.raw("s_memrealtime s[82:83]")
        P.raw("s_waitcnt lgkmcnt(0)")
        P.raw(f"s_sub_u32 s82, s82, s{sNon}")
        P.raw(f"s_cmp_gt_u32 s82, {OPT('TTH', 0)}")
        P.raw("s_cbranch_scc0 TT_OK")
        P.raw("v_readfirstlane_b32 s101, v5")
        P.raw("s_cmp_eq_u32 s101, 0x5a17c0de")
        P.raw("s_cbranch_scc1 TT_OK")
        P.raw(f"v_mov_b32 v{E}, 0x7fc07fc0")
        P.label("TT_OK")
        P.raw("v_mov_b32 v5, 0x5a17c0de")
        P.raw(f"s_mov_b32 s72, {hex(W_FL + 49152)}")
        P.vm(f"buffer_store_dword v5, v{vFl0A}, {S(SWS)}, s72 offen sc1", "mark")
    OM_ = OPT("OUTM", "").replace("_", " ")
    if OPT("OUTX4", 0) == 1:
        for g in (0, 2):
            for j in range(2):
                P.raw(f"v_permlane32_swap_b32 v{E+2*g+j}, v{E+2*g+2+j}")
        for g in (0, 2):
            P.vm(f"buffer_store_dwordx4 {v(E+2*g,4)}, v{vOut}, {S(SOUT)}, 0 offen offset:{g*16} " + OM_, "out")
    else:
        for g in range(4):
            P.vm(f"buffer_store_dwordx2 {v(E+2*g,2)}, v{vOut}, {S(SOUT)}, 0 offen offset:{g*16} " + OM_, "out")
    P.finish()

    k.label("B_MAIN")
    P = B
    vM, vAr, vBr, vRi = 24, 25, 26, 27
    sPl = 86
    def chunkW(f, srdn, sbase, const):
        return dma4(sCb, (f % 4)*SLOT, srdn, Wl1024, sbase, const, f"f{f}")
    def chunkH(f, vreg, sbase, const):
        return dma4(sCb, (f % 4)*SLOT + 8192, SWS, vreg, sbase, const, f"f{f}", sc1=not OPT("PLAIN", 0))
    STG = OPT("STG", 0)
    SREG = lambda c: 64 + 16*(c - 3)
    vSW = (52, 53)
    NS1, NS2 = OPT("NS1", 3), OPT("NS2", 4)
    staged = set(range(3, 14)) if STG else set()
    def stage_ld(c):
        if c not in staged: return
        alt = c in (3, 10)
        sb = sW4b if alt else sW4a
        P.raw(f"s_add_u32 s{sT0}, s{sb}, {hex((F0(2*c)*1024) & 0xffffffff)}")
        for j in range(4):
            P.vm(f"buffer_load_dwordx4 {v(SREG(c)+4*j,4)}, v{Wl1024[j]}, {S(SW4)}, s{sT0} offen offset:{j*1024}", f"s{c}")
    def stage_wr(c):
        f = 24 + c; sl = f % 4
        P.wvm(f"s{c}")
        for j in range(4):
            P.ds(f"ds_write_b128 v{vSW[sl>>1]}, {v(SREG(c)+4*j,4)} offset:{(sl & 1)*SLOT + j*1024}", ("sw", c))
    P.wvm("f2")
    P.wds_all()
    P.bar("B1")
    if STG:
        P.raw(f"v_add_u32 v{vSW[0]}, s{sCb}, v{vLin}")
        P.raw(f"v_add_u32 v{vSW[1]}, 0x10000, v{vSW[0]}")
    spf_setup(P)
    spf(P)
    spf2_setup(P, False)
    vt_setup(P)
    P.prew = vt
    P.hook = spf2
    P.bar("Ba")
    P.run(wfill(4, SQKV, Wl3072, sRowQ, 1024, 3072))
    pfs(P, "D")
    spf(P)
    P.wvm("f3")
    P.bar("b3")
    P.run(wfill(5, SQKV, Wl3072, sRowQ, 1024 + 256*3072, 3072))
    P.wvm("nc")
    if not P.dead: get_nonce(vNon)
    spf2_setup(P, True)
    spf(P)
    P.wvm("f4")
    P.bar("b4")
    P.run(wfill(6, SQKV, Wl3072, sRowQ, 2048, 3072))
    spf(P)
    P.wvm("f5"); P.bar("b5")
    P.run(wfill(7, SQKV, Wl3072, sRowQ, 2048 + 256*3072, 3072))
    spf(P)
    P.wvm("f6"); P.bar("b6")
    P.run(chunkW(8, SW2, sRowC, 0))
    spf(P)
    P.wvm("f7"); P.bar("b7")
    xtr_dma(P)
    P.run(chunkW(9, SW2, sRowC, 128*1024))
    spf(P)
    P.raw(f"s_cmp_eq_u32 s{sM}, 0")
    P.raw(f"s_cselect_b32 s{sMk}, 0xffff0000, -1")
    P.raw(f"s_cmp_eq_u32 s{sM}, 31")
    P.raw(f"s_cselect_b32 s{sMk+1}, 0, 0xffff")
    for g, d in enumerate((-1, 1, -2, 2)):
        P.raw(f"s_lshl_b32 s72, s{sTile}, 5")
        P.raw(f"s_add_u32 s72, s72, {hex(d & 0xffffffff)}")
        P.raw(f"v_add_u32 v36, s72, v{vT31}")
        P.raw("v_ashrrev_i32 v29, 5, v36")
        P.raw("v_lshlrev_b32 v29, 15, v29")
        P.raw("v_and_b32 v30, 31, v36")
        P.raw("v_lshl_add_u32 v29, v30, 4, v29")
        P.raw(f"v_lshl_add_u32 v29, v{vHf}, 9, v29")
        P.raw(f"v_cmp_gt_u32 vcc, 0x800, v36")
        P.raw(f"v_mov_b32 v30, {hex(OOB)}")
        P.raw(f"v_cndmask_b32 v{32+g}, v30, v29, vcc")
    P.wvm("xt")
    P.bar("bK2")
    P.run(chunkW(10, SW2, sRowC, 256*1024))
    P.run(chunkW(11, SW2, sRowC, 384*1024))
    pfs(P, "E")
    spf(P)
    for c in range(3, 3 + NS1): stage_ld(c)
    P.raw(f"v_lshlrev_b32 v28, 3, v0")
    P.raw(f"s_lshl_b32 s{sT1}, s{sM}, 7")
    P.raw(f"s_add_u32 s{sT1}, s{sT1}, {hex(F1 - 128)}")
    P.stamp("@F1p")
    P.poll(30, 28, f"s{sT1}", None, None, width=2)
    P.stamp("@F1ok")
    P.run(chunkH(8, 32, sHsrc, 0))
    P.run(chunkH(9, 33, sHsrc, 8*1024))
    P.wvm("f8"); P.bar("b8")
    P.run(chunkH(10, 34, sHsrc, 16*1024))
    P.wvm("f9"); P.bar("b9")
    P.run(chunkH(11, 35, sHsrc, 24*1024))
    P.wvm("f10"); P.bar("b10")
    if OPT("HACKN3", 0) in (1, 4):
        P.raw(f"s_cmp_eq_u32 s{sN}, 3")
        P.raw("s_cselect_b32 s72, 128, 0")
        P.raw(f"s_sub_u32 s{sRowQ}, s{sRowQ}, s72")
    if ("K" in SWAPS) != ("Q" in SWAPS):
        P.raw(f"s_{'sub' if 'K' in SWAPS else 'add'}_u32 s{sRowQ}, s{sRowQ}, s{sDl}")
    P.run(wfill(12, SQKV, Wl3072, sRowQ, 0, 3072))
    spf(P)
    P.wvm("f11"); P.bar("b11")
    P.run(wfill(13, SQKV, Wl3072, sRowQ, 256*3072, 3072))
    cs3_dma(P)
    spf(P)
    P.wvm("f12"); P.bar("b12")
    P.wvm("f13"); P.bar("b13")
    if OPT("HACKN3", 0) in (3, 4):
        P.raw(f"s_cmp_eq_u32 s{sN}, 3")
        P.raw("s_cselect_b32 s72, 128, 0")
        for r_ in (sRowC, sW4a, sW4b): P.raw(f"s_sub_u32 s{r_}, s{r_}, s72")
    P.run(wfill(16, SW3, Wl3584, sRow3, 0, 3584))
    spf(P, 99)
    assert not spq
    if OPT("NS2POS", 0) == 0:
        for c in range(3 + NS1, 3 + NS1 + NS2): stage_ld(c)
    P.wvm("cs3")
    P.raw("v_bfe_u32 v28, v0, 2, 2")
    P.raw(f"v_lshl_add_u32 v28, v{vHf}, 2, v28")
    P.raw("v_lshlrev_b32 v28, 7, v28")
    P.raw("v_bfe_u32 v29, v0, 4, 1")
    P.raw("v_lshl_add_u32 v28, v29, 5, v28")
    P.raw("v_and_b32 v29, 3, v0")
    P.raw("v_lshl_add_u32 v28, v29, 3, v28")
    P.raw(f"s_lshl_b32 s72, s{sBw}, 12")
    P.raw(f"s_add_u32 s72, s72, {ACCX}")
    P.raw("v_add_u32 v28, s72, v28")
    for ks in range(2):
        for n_ in range(2):
            d = 32 + 4*(2*ks + n_)
            P.ds(f"ds_read_b64_tr_b16 {v(d,2)}, v28 offset:{16*ks*128 + 64*n_}", "c")
            P.ds(f"ds_read_b64_tr_b16 {v(d+2,2)}, v28 offset:{(16*ks+8)*128 + 64*n_}", "c")
    P.raw("v_mov_b32 v48, 0")
    P.raw("v_mov_b32 v49, 0")
    P.raw("v_mov_b32 v50, 0x3f803f80")
    P.wds_all()
    for ks in range(2):
        for i in range(4):
            P.raw(f"v_dot2_f32_bf16 v48, v{32 + 8*ks + i}, v50, v48")
            P.raw(f"v_dot2_f32_bf16 v49, v{32 + 8*ks + 4 + i}, v50, v49")
    P.raw("v_permlane32_swap_b32 v48, v49")
    P.raw("v_add_f32 v48, v48, v49")
    P.raw(f"s_lshl_b32 s72, s{sCsG}, 12")
    P.raw(f"s_lshl_b32 s73, s{sCsP}, 8")
    P.raw("s_add_u32 s72, s72, s73")
    P.raw(f"s_add_u32 s72, s72, {hex(W_CS)}")
    P.raw(f"v_or_b32 v49, s{sCsOOB}, v{vP4}")
    P.vm(f"buffer_store_dword v48, v49, {S(SWS)}, s72 offen sc1", "cs3st")
    P.raw(f"s_lshl_b32 s72, s{sN}, 6")
    P.raw(f"s_and_b32 s73, s{sM}, 3")
    P.raw("s_lshl_b32 s73, s73, 4")
    P.raw("s_add_u32 s72, s72, s73")
    P.raw(f"s_add_u32 s72, s72, s{sCsP}")
    P.raw("s_lshl_b32 s72, s72, 2")
    P.raw(f"s_add_u32 s{sSt}, s72, {hex(CSF)}")
    P.raw(f"v_or_b32 v31, s{sCsOOB}, v{vFl0}")
    if OPT("NS2POS", 0) == 1:
        for c in range(3 + NS1, 3 + NS1 + NS2): stage_ld(c)
    def csf_flag():
        P.wvm("cs3st")
        P.vm(f"buffer_store_dword v{vNon}, v31, {S(SWS)}, s{sSt} offen sc1", "csf")
    XS, CL = (SREG(13), SREG(12)) if STG else (96, 112)
    def acheck(tag, vreg, soff, mlo, mhi_, preset=False):
        if P.dead: return
        P.wvm(tag)
        saved = list(P.vq)
        OKL = k.newlabel("AOK")
        if not preset:
            P.raw(f"s_mov_b32 s{sMk}, {hex(mlo)}"); P.raw(f"s_mov_b32 s{sMk+1}, {hex(mhi_)}")
        P.raw(f"v_cmp_ne_u32 vcc, s{sNon}, v{vreg}")
        P.raw(f"s_and_b64 vcc, vcc, {S(sMk,2)}")
        P.raw(f"s_cbranch_scc0 {OKL}")
        P.poll(vreg, vP4, soff, None, None)
        P.label(OKL)
        P.vq = saved
    P.raw(f"s_lshl_b32 s95, s{sN}, 8")
    P.raw(f"s_add_u32 s95, s95, {hex(CSF)}")
    P.raw(f"s_lshl_b32 s{sT1}, s{sM}, 7")
    P.raw(f"s_add_u32 s{sT1}, s{sT1}, {hex(F2)}")
    P.bar("bQ")
    P.run(wfill(17, SW3, Wl3584, sRow3, 256*3584, 3584))
    csf_flag()
    P.stamp("@F2p")
    P.poll(30, vP4, f"s{sT1}", 0xffffffff, 0)
    P.stamp("@F2ok")
    def x1fill(hh):
        f = 14 + hh
        P.raw(f"s_lshl_b32 s72, s{sTT}, 14")
        P.raw(f"s_lshl_b32 s73, s{sCH}, 13")
        P.raw(f"s_add_u32 s{sT2}, s72, s73")
        P.run(dma4(sT2, (f % 4)*SLOT, SWS, vLin, sX1b, 16*hh*1024, f"f{f}", sc1=not OPT("PLAIN", 0)))
        P.run(dma4(sT2, (f % 4)*SLOT + 4096, SWS, vLin, sX1b, 16*hh*1024 + 4096, f"f{f}", sc1=not OPT("PLAIN", 0)))
    x1fill(0); x1fill(1)
    def xs_loads():
        P.vm(f"buffer_load_dword v45, v{vP4}, {S(SWS)}, s95 offen sc1", "cf")
        P.raw(f"s_lshl_b32 s72, s{sM}, 13")
        P.raw(f"s_lshl_b32 s73, s{sTT}, 8")
        P.raw("s_add_u32 s72, s72, s73")
        P.raw(f"s_add_u32 s72, s72, {hex(W_ST)}")
        P.raw("s_add_u32 s73, s72, 4096")
        if XSH:
            P.raw(f"s_cmp_eq_u32 s{sCH}, 0")
            P.raw(f"s_cselect_b32 s74, 0, {hex(OOB)}")
            P.raw(f"v_or_b32 v46, s74, v{vP4}")
        for p in range(16):
            P.vm(f"buffer_load_dword v{XS+p}, v{46 if XSH else vP4}, {S(SWS)}, s{72 + (p >> 3)} offen offset:{(p & 7)*512} sc1", "xs")
    XSH = OPT("XSH", 1)
    XSPOS = OPT("XSPOS", 1)
    if XSPOS == 0: xs_loads()
    P.wvm("f14"); P.bar("b14")
    if XSPOS == 1: xs_loads()
    P.bar("Ba2")
    if XSPOS == 2: xs_loads()
    P.run(wfill(18, SW3, Wl3584, sRow3, 128, 3584))
    if XSPOS == 3: xs_loads()
    P.wvm("f15"); P.bar("b15")
    P.raw(f"s_cmp_eq_u32 s{sN}, 7")
    P.raw(f"s_cselect_b32 s{sMk}, 0, -1")
    P.raw(f"s_mov_b32 s{sMk+1}, s{sMk}")
    acheck("cf", 45, "s95", None, None, preset=True)
    P.raw(f"s_lshl_b32 s72, s{sN}, 2")
    P.raw(f"s_add_u32 s72, s72, s{sBw}")
    P.raw("s_lshl_b32 s72, s72, 12")
    P.raw(f"s_add_u32 s72, s72, {hex(W_CS)}")
    for p in range(16):
        P.vm(f"buffer_load_dword v{CL+p}, v{vP4}, {S(SWS)}, s72 offen offset:{p*256} sc1", "cl")
    P.wvm("xs")
    for w_ in (8, 4, 2, 1):
        for i in range(w_): P.raw(f"v_add_f32 v{XS+i}, v{XS+i}, v{XS+w_+i}")
    P.raw(f"v_mov_b32 v{XS+1}, v{XS}")
    P.raw(f"v_permlane32_swap_b32 v{XS}, v{XS+1}")
    P.raw(f"v_mul_f32 v{vM}, {hx(1.0/512)}, v{XS}")
    P.raw(f"v_mul_f32 v{XS+1}, {hx(1.0/512)}, v{XS+1}")
    P.raw(f"v_fma_f32 v{XS+1}, -v{vM}, v{vM}, v{XS+1}")
    P.raw(f"v_max_f32 v{XS+1}, 0, v{XS+1}")
    P.raw(f"v_add_f32 v{XS+1}, {hx(EPS_LN)}, v{XS+1}")
    P.raw(f"v_rsq_f32 v{XS+2}, v{XS+1}")
    P.raw(f"v_sqrt_f32 v{vRi}, v{XS+1}")
    P.raw(f"v_mul_f32 v{vAr}, {hx(GA)}, v{XS+2}")
    P.raw(f"v_mul_f32 v{vBr}, v{XS+2}, v{XS+2}")
    P.raw(f"v_mul_f32 v{vBr}, v{vBr}, v{XS+2}")
    P.raw(f"v_mul_f32 v{vBr}, {hx(GB)}, v{vBr}")
    P.raw(f"s_lshl_b32 s72, s{sTT}, 9")
    P.raw(f"s_add_u32 s72, s72, {TAB_S2}")
    P.raw(f"v_lshl_add_u32 v28, v{vT31}, 4, s72")
    if XSH:
        P.raw(f"s_cmp_eq_u32 s{sCH}, 0")
        P.raw("s_cselect_b64 exec, -1, 0")
    P.ds(f"ds_write_b128 v28, {v(vM,4)}", "s2w")
    if XSH: P.raw("s_mov_b64 exec, -1")
    P.wvm("f17"); P.bar("b17")
    KP = SREG(10) if STG else 128; vKr = 37; vKo = 38
    P.raw(f"s_cmp_eq_u32 s{sBw}, 0")
    P.raw(f"s_cselect_b32 s87, 0, {hex(OOB)}")
    P.raw(f"s_cselect_b32 s88, -1, 0")
    P.raw(f"s_lshl_b32 s89, s{sM}, 7")
    P.raw(f"s_add_u32 s89, s89, {hex(FKV)}")
    P.vm(f"buffer_load_dword v39, v{vP4}, {S(SWS)}, s89 offen sc1", "kp")
    P.raw("v_lshrrev_b32 v28, 4, v0")
    P.raw("v_lshlrev_b32 v28, 11, v28")
    P.raw("v_bfe_u32 v29, v0, 3, 1")
    P.raw("v_lshl_add_u32 v28, v29, 10, v28")
    P.raw("v_and_b32 v30, 7, v0")
    P.raw("v_lshl_add_u32 v28, v30, 4, v28")
    P.raw(f"s_lshl_b32 s72, s{sN}, 7")
    P.raw("v_add_u32 v28, s72, v28")
    P.raw(f"v_or_b32 v{vKr}, s87, v28")
    P.raw("v_lshlrev_b32 v30, 4, v30")
    P.raw("v_lshl_add_u32 v30, v29, 3, v30")
    P.raw("v_add_u32 v30, s72, v30")
    P.raw(f"v_mov_b32 v29, {hex(OOB)}")
    P.raw("v_cmp_gt_u32 vcc, 16, v0")
    P.raw("v_cndmask_b32 v30, v29, v30, vcc")
    P.raw(f"v_or_b32 v{vKo}, s87, v30")
    P.wvm("cl")
    for w_ in (8, 4, 2, 1):
        for i in range(w_): P.raw(f"v_add_f32 v{CL+i}, v{CL+i}, v{CL+w_+i}")
    P.raw(f"s_lshl_b32 s72, s{sBw}, 8")
    P.raw(f"s_add_u32 s72, s72, {TAB_CS}")
    P.raw(f"v_add_u32 v28, s72, v{vP4}")
    P.ds(f"ds_write_b32 v28, v{CL}", "csw")
    P.bar("Bb2")
    P.run(wfill(19, SW3, Wl3584, sRow3, 128 + 256*3584, 3584))
    P.run(wfill(20, SW3, Wl3584, sRow3, 256, 3584))
    P.wds_all()
    P.wvm("f18"); P.bar("b18")
    P.raw(f"s_mov_b32 s{sMk}, s88"); P.raw(f"s_mov_b32 s{sMk+1}, 0")
    acheck("kp", 39, "s89", None, None, preset=True)
    P.raw(f"s_lshl_b32 s72, s{sM}, 16")
    P.raw(f"s_add_u32 s72, s72, {hex(W_KVP)}")
    for i in range(8):
        if i: P.raw("s_add_u32 s72, s72, 8192")
        P.vm(f"buffer_load_dwordx4 {v(KP+4*i,4)}, v{vKr}, {S(SWS)}, s72 offen sc1", "kl")
    P.run(wfill(21, SW3, Wl3584, sRow3, 256 + 256*3584, 3584))
    rest = [c for c in range(3 + NS1 + NS2, 10)]
    for c in rest: stage_ld(c)
    P.wvm("f19"); P.bar("b19")
    P.run(wfill(22, SW3, Wl3584, sRow3, 384, 3584))
    stage_ld(12); stage_ld(13)
    P.wvm("kl")
    for w_ in (4, 2, 1):
        for j in range(w_):
            for i in range(4): P.raw(f"v_add_f32 v{KP+4*j+i}, v{KP+4*j+i}, v{KP+4*(j+w_)+i}")
    for op in ("v_permlane32_swap_b32", "v_permlane16_swap_b32"):
        for i in range(4): P.raw(f"v_mov_b32 v{KP+4+i}, v{KP+i}")
        for i in range(4): P.raw(f"{op} v{KP+i}, v{KP+4+i}")
        for i in range(4): P.raw(f"v_add_f32 v{KP+i}, v{KP+i}, v{KP+4+i}")
    for i in range(2): P.raw(f"v_cvt_pk_bf16_f32 v{KP+8+i}, v{KP+2*i}, v{KP+2*i+1}")
    P.raw(f"s_lshl_b32 s72, s{sM}, 10")
    P.raw(f"s_add_u32 s72, s72, {hex(W_KVF)}")
    P.vm(f"buffer_store_dwordx2 {v(KP+8,2)}, v{vKo}, {S(SWS)}, s72 offen sc1", "kvf")
    P.wvm("f20"); P.bar("b20")
    P.run(wfill(23, SW3, Wl3584, sRow3, 384 + 256*3584, 3584))
    stage_ld(10); stage_ld(11)
    def g5W(c):
        alt = c in (3, 10)
        if OPT("NOW4", 0) and c >= 2: return []
        return chunkW(24 + c, SW4, sW4b if alt else sW4a, F0(2*c)*1024)
    def g5H(c):
        alt = c in (3, 10)
        if OPT("NOH3", 0) and c >= 2: return []
        return chunkH(24 + c, vLin, sH3b if alt else sH3a, F0(2*c)*64)
    def pl_issue(base, reg, sreg, tag):
        P.raw(f"s_lshl_b32 s{sreg}, s{sM}, 7")
        P.raw(f"s_add_u32 s{sreg}, s{sreg}, {hex(base)}")
        P.vm(f"buffer_load_dword v{reg}, v{vP4}, {S(SWS)}, s{sreg} offen sc1", tag)
    P.wvm("f21"); P.bar("b21")
    P.run(g5W(0))
    P.raw(f"s_lshl_b32 s72, s{sM}, 3")
    P.raw(f"s_add_u32 s72, s72, s{sN}")
    P.raw("s_lshl_b32 s72, s72, 2")
    P.raw(f"s_add_u32 s72, s72, {hex(FKF)}")
    P.raw(f"v_or_b32 v28, s87, v{vFl0}")
    P.wvm("kvf")
    P.vm(f"buffer_store_dword v{vNon}, v28, {S(SWS)}, s72 offen sc1", "fkf")
    P.wvm("f22"); P.bar("b22")
    P.run(g5W(1))
    pl_issue(F3, 40, 90, "pl0")
    P.wvm("f23"); P.stamp(); P.bar("b23")
    acheck("pl0", 40, "s90", 0x0fffffff, 0)
    P.run(g5H(0)); P.run(g5H(1)); P.run(g5W(2)); P.run(g5H(2))
    HISS = {nx: nx - 3 for nx in range(3, 18)}
    HISS[3] = OPT("H3ISS", 1)
    HISS[7] = OPT("H7ISS", 4)
    HISS[10] = OPT("H10ISS", 7)
    HISS[14] = OPT("H14ISS", 11)
    for nx in range(4, 18): HISS[nx] = max(HISS[nx], HISS[nx-1]) if nx not in (7, 10, 14) else HISS[nx]
    need_r = {3: 1, 7: 2, 10: 3, 14: 4}
    for c in range(18):
        f = 24 + c
        P.wvm(f"f{f}"); P.wds(("sw", c)); P.bar(f"b{f}")
        for nx, r in need_r.items():
            if HISS[nx] - 1 == c or (HISS[nx] == 0 and c == 0):
                pl_issue(F3 + r*4096 if r < 4 else FO, 40 + r, 90 + r, f"pl{r}")
        nxw = c + 3
        hl = [nx for nx in range(3, 18) if HISS[nx] == c]
        for nx in hl:
            if nx < nxw:
                if nx in need_r:
                    r = need_r[nx]; acheck(f"pl{r}", 40 + r, f"s{90+r}", 0x0fffffff if r < 4 else 0xffffffff, 0)
                if nx < 14: P.run(g5H(nx))
                else: P.run(chunkH(24 + nx, vLin, sOb, 8*(nx-14)*1024))
        if nxw in staged: stage_wr(nxw)
        elif nxw < 14: P.run(g5W(nxw))
        elif nxw < 18: P.run(chunkW(24 + nxw, SWO, sRowC, 128*(nxw-14)*1024))
        for nx in hl:
            if nx >= nxw:
                if nx in need_r:
                    r = need_r[nx]; acheck(f"pl{r}", 40 + r, f"s{90+r}", 0x0fffffff if r < 4 else 0xffffffff, 0)
                if nx < 14: P.run(g5H(nx))
                else: P.run(chunkH(24 + nx, vLin, sOb, 8*(nx-14)*1024))
        if c == 13: P.stamp()
    assert not spq2, len(spq2)
    assert not VT, VT
    P.finish()
    k.label("P_END")
    k("s_endpgm")
    a_main = A.bars; b_main = B.bars
    if a_main != b_main:
        print("BARRIER MISMATCH"); print(a_main); print(b_main); raise SystemExit(1)
    return k

HDR = open("cdna_kernels/" + NAME + ".s.ref").read().split("\n")
def build():
    lines = []
    for l in HDR:
        if not l.startswith(";"): break
        if "@launch" in l: continue
        lines.append(l)
    lines.append(f"; @launch grid=(256,1,1) block=(512,1,1) lds={LDS}")
    lines.append('.amdgcn_target "amdgcn-amd-amdhsa--gfx950"')
    k = gen()
    k.fix_hazards(verbose=OPT("V", 0))
    return "\n".join(lines) + "\n" + header(KN) + k.text() + descriptor(KN)

if __name__ == "__main__":
    open(sys.argv[1], "w").write(build())
    if STAMP:
        import json; json.dump(NAMES, open(sys.argv[1] + ".names.json", "w"))
```
